```python
import torch

def _softmax(x, axis=-1):
    return torch.softmax(x, dim=axis)
def _gelu(x):
    return torch.nn.functional.gelu(x, approximate="tanh")
def _silu(x):
    return torch.nn.functional.silu(x)
def _sigmoid(x):
    return torch.sigmoid(x)
def _layernorm(x, axis=-1, eps=1e-5):
    m = x.mean(dim=axis, keepdim=True)
    v = x.var(dim=axis, keepdim=True, unbiased=False)
    return (x - m) / torch.sqrt(v + eps)
def _scatter_add(tgt, idx, src, axis=0):
    return tgt.clone().index_add_(axis, idx, src)
def _segment_sum(src, seg, n):
    out = torch.zeros((n,) + src.shape[1:], dtype=src.dtype)
    return out.index_add_(0, seg, src)
def _pad(x, pw):
    flat = tuple(v for pair in reversed(pw) for v in pair)
    return torch.nn.functional.pad(x, flat)

kernel_name = 'concat_heads__mha_block_cached__gqa_block_cached__near_ridge'

def setup_inputs():

    _w = (lambda a: (lambda t: t.to(torch.bfloat16) if t.is_floating_point() else t)(torch.as_tensor(a)))
    def _A_setup():
        B, Sq, D = 8, 192, 640
        H, Sk, Dh = 32, 1024, 128
        return {
            "x": _w((lambda *s: torch.randn(*s, dtype=torch.bfloat16) * 0.8)(B, Sq, D)),
            "k_cache": _w((lambda *s: torch.randn(*s, dtype=torch.bfloat16) * 0.8)(B, H, Sk, Dh)),
            "v_cache": _w((lambda *s: torch.randn(*s, dtype=torch.bfloat16) * 0.05)(B, H, Sk, Dh)),
            "wq": _w((lambda *s: torch.randn(*s, dtype=torch.bfloat16) * 0.8)(D, H * Dh) * (D ** -0.5)),
            "wo": _w((lambda *s: torch.randn(*s, dtype=torch.bfloat16) * 0.05)(H * Dh, D) * ((H * Dh) ** -0.5)),
        }
    _A_in = _A_setup()

    def _B_setup():
        B, Sq, D = 8, 192, 640
        Hq, Hkv, Sk, Dh = 32, 32, 1024, 128
        assert Hq % Hkv == 0, (Hq, Hkv)
        return {
            "x": _w((lambda *s: torch.randn(*s, dtype=torch.bfloat16) * 0.8)(B, Sq, D)),
            "k_cache": _w((lambda *s: torch.randn(*s, dtype=torch.bfloat16) * 0.8)(B, Hkv, Sk, Dh)),
            "v_cache": _w((lambda *s: torch.randn(*s, dtype=torch.bfloat16) * 0.05)(B, Hkv, Sk, Dh)),
            "wq": _w((lambda *s: torch.randn(*s, dtype=torch.bfloat16) * 0.8)(D, Hq * Dh) * (D ** -0.5)),
            "wo": _w((lambda *s: torch.randn(*s, dtype=torch.bfloat16) * 0.05)(Hq * Dh, D) * ((Hq * Dh) ** -0.5)),
        }
    _B_in = _B_setup()

    return {
        "A_x": _A_in["x"],
        "A_k_cache": _A_in["k_cache"],
        "A_v_cache": _A_in["v_cache"],
        "A_wq": _A_in["wq"],
        "A_wo": _A_in["wo"],
        "B_x": _B_in["x"],
        "B_k_cache": _B_in["k_cache"],
        "B_v_cache": _B_in["v_cache"],
        "B_wq": _B_in["wq"],
        "B_wo": _B_in["wo"],
    }

def reference(A_x, A_k_cache, A_v_cache, A_wq, A_wo, B_x, B_k_cache, B_v_cache, B_wq, B_wo):
    def _A_ref(x, k_cache, v_cache, wq, wo):
        B, Sq, D = x.shape
        H, Dh = 32, 128
        q = (lambda x, *d: x.permute(*d))((x @ wq).reshape(B, Sq, H, Dh), 0, 2, 1, 3)
        scores = torch.einsum("bhqd,bhkd->bhqk", q, k_cache) * (Dh ** -0.5)
        p = _softmax(scores, axis=-1)
        o = torch.einsum("bhqk,bhkd->bhqd", p, v_cache)
        return (lambda x, *d: x.permute(*d))(o, 0, 2, 1, 3).reshape(B, Sq, H * Dh) @ wo

    def _B_ref(x, k_cache, v_cache, wq, wo):
        B, Sq, D = x.shape
        Hq, Dh = 32, 128
        Hkv = k_cache.shape[1]
        rep = Hq // Hkv
        q = (lambda x, *d: x.permute(*d))((x @ wq).reshape(B, Sq, Hq, Dh), 0, 2, 1, 3)
        k = (lambda x, n, axis: torch.repeat_interleave(x, n, dim=axis))(k_cache, rep, axis=1)
        v = (lambda x, n, axis: torch.repeat_interleave(x, n, dim=axis))(v_cache, rep, axis=1)
        scores = torch.einsum("bhqd,bhkd->bhqk", q, k) * (Dh ** -0.5)
        p = _softmax(scores, axis=-1)
        o = torch.einsum("bhqk,bhkd->bhqd", p, v)
        return (lambda x, *d: x.permute(*d))(o, 0, 2, 1, 3).reshape(B, Sq, Hq * Dh) @ wo

    a = _A_ref(A_x, A_k_cache, A_v_cache, A_wq, A_wo)
    b = _B_ref(B_x, B_k_cache, B_v_cache, B_wq, B_wo)
    return torch.concatenate([a, b], axis=-1)
```

```python
import re

REG_RE = re.compile(r'\b([vas])(\d+)\b|\b([vas])\[(\d+):(\d+)\]|\b(vcc|exec|m0|scc)\b')

def regs_of(opnd):
    out = []
    for m in REG_RE.finditer(opnd):
        if m.group(1):
            out.append((m.group(1), int(m.group(2))))
        elif m.group(3):
            for r in range(int(m.group(4)), int(m.group(5)) + 1):
                out.append((m.group(3), r))
        else:
            out.append((m.group(6), 0))
    return out

TRANS = ("v_exp_f32", "v_rcp_f32", "v_log_f32", "v_rsq_f32", "v_sqrt_f32")

class Ins:
    __slots__ = ("text", "op", "kind", "rd", "wr", "srcc", "srcab", "nstates", "cmt")
    def __init__(self, text, cmt=None):
        self.text = text.strip()
        self.cmt = cmt
        t = self.text
        self.rd, self.wr, self.srcc, self.srcab = set(), set(), set(), set()
        self.nstates = 1
        if t.endswith(":"):
            self.op, self.kind, self.nstates = t, "label", 0
            return
        parts = t.split(None, 1)
        op = parts[0]
        for suf in ("_e32", "_e64"):
            if op.endswith(suf): op = op[:-4]
        self.op = op
        args = parts[1] if len(parts) > 1 else ""
        ops = [x.strip() for x in re.split(r',(?![^\[]*\])', args)] if args else []
        R = lambda i: regs_of(re.sub(r'(op_sel(_hi)?|neg_lo|neg_hi):\[[^\]]*\]', '', ops[i])) if i < len(ops) else []
        if op.startswith("v_mfma"):
            self.kind = "mfma"
            self.wr = set(R(0)); self.srcab = set(R(1)) | set(R(2)); self.srcc = set(R(3))
            self.rd = self.srcab | self.srcc
        elif op.startswith("v_cmp"):
            self.kind = "valu"
            self.wr = set(R(0)); self.rd = set(R(1)) | set(R(2))
        elif op.startswith("v_permlane"):
            self.kind = "perm"
            self.wr = set(R(0)) | set(R(1)); self.rd = set(self.wr)
        elif op in ("v_readfirstlane_b32", "v_readlane_b32"):
            self.kind = "rdlane"
            self.wr = set(R(0)); self.rd = set(R(1)) | set(R(2))
        elif op.startswith("v_"):
            self.kind = "trans" if op in TRANS else "valu"
            self.wr = set(R(0))
            for i in range(1, len(ops)): self.rd |= set(R(i))
            if op in ("v_fmac_f32",): self.rd |= self.wr
            if op.startswith("v_cndmask") and len(ops) == 3: self.rd.add(("vcc", 0))
            if op.startswith("v_add_co") or op.startswith("v_addc_co"):
                self.wr |= set(R(1))
        elif op.startswith("ds_read"):
            self.kind = "dsr"
            self.wr = set(R(0)); self.rd = set(R(1))
        elif op.startswith("ds_write"):
            self.kind = "dsw"
            for i in range(len(ops)): self.rd |= set(R(i))
        elif op.startswith("buffer_load"):
            if re.search(r'\blds\b', t):
                self.kind = "dma"
                for i in range(len(ops)): self.rd |= set(R(i))
                self.rd.add(("m0", 0))
            else:
                self.kind = "vld"
                self.wr = set(R(0))
                for i in range(1, len(ops)): self.rd |= set(R(i))
        elif op.startswith("buffer_store") or op.startswith("global_store") or op.startswith("buffer_atomic") or op.startswith("global_atomic"):
            self.kind = "vst"
            for i in range(len(ops)): self.rd |= set(R(i))
        elif op.startswith("global_load"):
            self.kind = "vld"
            self.wr = set(R(0))
            for i in range(1, len(ops)): self.rd |= set(R(i))
        elif op in ("buffer_wbl2", "buffer_inv"):
            self.kind = "vmisc"
        elif op == "s_waitcnt":
            self.kind = "wait"
        elif op == "s_nop":
            self.kind = "nop"; self.nstates = int(ops[0], 0) + 1
        elif op == "s_barrier":
            self.kind = "barrier"
        elif op.startswith("s_cbranch") or op == "s_branch" or op == "s_endpgm" or op in ("s_setprio", "s_sleep"):
            self.kind = "branch"
        elif op.startswith("s_load") or op in ("s_memtime", "s_memrealtime"):
            self.kind = "smem"
            self.wr = set(R(0))
            for i in range(1, len(ops)): self.rd |= set(R(i))
        elif op.startswith("s_cmp"):
            self.kind = "salu"
            for i in range(len(ops)): self.rd |= set(R(i))
        elif op.startswith("s_"):
            self.kind = "salu"
            self.wr = set(R(0))
            for i in range(1, len(ops)): self.rd |= set(R(i))
            if "saveexec" in op: self.wr.add(("exec", 0))
        else:
            raise ValueError("unknown instruction: " + t)
    def __repr__(self):
        return self.text

def is_valu(i): return i.kind in ("valu", "trans", "perm", "rdlane")
def is_vmem(i): return i.kind in ("vld", "vst", "dma")

def mfma_passes(i):
    if "16x16x32" in i.op: return 4
    if "32x32x16" in i.op: return 8
    raise ValueError(i.op)

def required_gap(p, c):
    need = 0
    vw = {r for r in p.wr if r[0] in "va"}
    sw = {r for r in p.wr if r[0] == "s" or r[0] == "vcc"}
    if p.kind == "mfma":
        n = mfma_passes(p)
        big = {4: 8, 8: 12}[n]; ovl = {4: 6, 8: 10}[n]; war = {4: 3, 8: 7}[n]
        if c.kind == "mfma":
            if p.wr & c.srcab: need = max(need, big)
            if p.wr & c.srcc and not (p.wr == c.srcc and p.op == c.op): need = max(need, ovl)
            if p.wr & c.wr and not (p.wr == c.srcc and p.op == c.op): need = max(need, ovl)
        elif is_valu(c) or c.kind in ("dsr", "dsw", "vld", "vst", "dma"):
            if p.wr & (c.rd | c.wr): need = max(need, big)
        if is_valu(c) and (p.srcc & c.wr): need = max(need, war)
    if is_valu(p):
        if c.kind == "mfma" and vw & c.rd: need = max(need, 2)
        if c.kind == "perm" and vw & c.rd: need = max(need, 2)
        if c.kind == "rdlane" and vw & c.rd: need = max(need, 1)
        if p.kind == "trans" and is_valu(c) and c.kind != "trans" and vw & c.rd: need = max(need, 1)
        if sw:
            if is_vmem(c) and sw & c.rd: need = max(need, 5)
            if is_valu(c) and sw & c.rd: need = max(need, 2 if c.kind != "rdlane" else 4)
            if c.kind == "salu" and sw & c.rd: need = max(need, 1)
        if ("exec", 0) in p.wr and c.kind == "mfma": need = max(need, 4)
    if p.kind == "salu" and ("m0", 0) in p.wr and c.kind == "dma": need = max(need, 1)
    if p.kind == "vst" and ("x4" in p.op or "x3" in p.op):
        data = set(regs_of(p.text.split(None, 1)[1].split(",")[0])) if p.op.startswith("buffer") else p.rd
        data = {r for r in p.rd if r[0] in "va"}
        if data & c.wr: need = max(need, 2)
    return need

def check_hazards(trace, name=""):
    errs = []
    for ci, c in enumerate(trace):
        if c.kind in ("label",): continue
        dist = 0
        pi = ci - 1
        while pi >= 0 and dist < 13:
            p = trace[pi]
            if p.kind != "label":
                need = required_gap(p, c)
                if need > dist:
                    errs.append(f"{name}: hazard need {need} have {dist}: [{pi}] {p.text}  ->  [{ci}] {c.text}")
                dist += p.nstates
            pi -= 1
    return errs

def check_waits(trace, name=""):
    errs = []
    lq = []
    vq = []
    smem_pending = []
    for idx, c in enumerate(trace):
        if c.kind == "wait":
            m = re.search(r'lgkmcnt\((\d+)\)', c.text)
            if m:
                n = int(m.group(1))
                if n == 0: smem_pending = []
                if smem_pending and n != 0: errs.append(f"{name}: counted lgkm wait with smem pending at [{idx}]")
                if len(lq) > n: lq = lq[len(lq) - n:] if n else []
            m = re.search(r'vmcnt\((\d+)\)', c.text)
            if m:
                n = int(m.group(1))
                if len(vq) > n: vq = vq[len(vq) - n:] if n else []
            continue
        touched = c.rd | c.wr
        for q in (lq, vq, smem_pending):
            for p in q:
                if p.wr & touched:
                    errs.append(f"{name}: missing wait: {p.text} -> [{idx}] {c.text}")
        if c.kind in ("dsr", "dsw"): lq.append(c)
        if is_vmem(c):
            vq.append(c)
            if len(vq) > 63: errs.append(f"{name}: vmcnt overflow at [{idx}] {c.text}")
        if c.kind == "smem": smem_pending.append(c)
    return errs

class Stream:
    def __init__(self):
        self.ins = []
    def __call__(self, text, cmt=None):
        for line in text.split("\n"):
            line = line.strip()
            if line: self.ins.append(Ins(line, cmt))
    def extend(self, other):
        self.ins.extend(other.ins if isinstance(other, Stream) else other)
    def text(self):
        out = []
        for i in self.ins:
            if i.kind == "label": out.append(i.text)
            else: out.append("    " + i.text + (f"    ; {i.cmt}" if i.cmt else ""))
        return "\n".join(out) + "\n"

def pad_hazards(ins_list, prefix=()):
    out = list(prefix)
    n0 = len(out)
    for c in ins_list:
        if c.kind != "label":
            dist = 0; need_extra = 0
            pi = len(out) - 1
            while pi >= 0 and dist < 13:
                p = out[pi]
                if p.kind != "label":
                    need = required_gap(p, c)
                    if need > dist: need_extra = max(need_extra, need - dist)
                    dist += p.nstates
                pi -= 1
            if need_extra:
                out.append(Ins(f"s_nop {need_extra - 1}"))
        out.append(c)
    return out[n0:]

def interleave(mfmas, fillers):
    s = Stream()
    for t in fillers.get(-1, []): s(t)
    for k, m in enumerate(mfmas):
        if m is not None: s(m)
        for t in fillers.get(k, []): s(t)
    return s
```

```python
import sys, struct, math
sys.path.insert(0, "work")
from asmlib import *

NAME = "concat_heads__mha_block_cached__gqa_block_cached__near_ridge"
MF = "v_mfma_f32_16x16x32_bf16"
def f32bits(x): return struct.unpack("<I", struct.pack("<f", x))[0]

CH = 1056
SUB = 8416
SLOT = 4 * SUB
QR0 = 2 * SLOT
XOFF = 2 * SUB
FLAG_OFF = 4 * SLOT
SCALE = math.log2(math.e) / math.sqrt(128.0)
THR = 2.0 ** 40
STAMP_OFF = 64 << 20

class Cfg:
    stamps = False
    nt_kv = "nt"
    nt_xw = "nt"
    nt_o = ""
    nt_k2o = ""
    nt_k2w = ""
    map1 = 0
    force_fb = False

def vr(b, n=4): return f"v[{b}:{b+n-1}]"
def ar(b, n=4): return f"a[{b}:{b+n-1}]"

O0 = 64
def OACC(i, dt): return O0 + 32 * i + 4 * dt
def SREG(par, kt): return 16 + 8 * par + 4 * kt
def PREG(par): return 32 + 4 * par
def NEGM(i): return 40 + 4 * i
def QF(i, kk): return 16 * i + 4 * kk
def KF(par, f): return 96 + 32 * par + 4 * f
def VF(par, dt): return 160 + 32 * par + 4 * dt
def LACC(i): return 224 + 4 * i
ONES = 248
def QA(par, dt): return 96 + 32 * par + 4 * dt
def QB(par, i): return 160 + 32 * par + 4 * i

def stamp(s, cfg, n, sreg0=80):
    if cfg.stamps:
        s(f"s_memrealtime s[{sreg0+2*n}:{sreg0+2*n+1}]")

def gen_k1(cfg):
    pro = Stream(); s = pro
    s("s_cmp_ge_u32 s2, 256")
    s("s_cbranch_scc1 K1_END")
    stamp(s, cfg, 0)
    s("s_load_dwordx16 s[16:31], s[0:1], 0")
    s("s_load_dwordx8 s[32:39], s[0:1], 64")
    s("s_load_dwordx2 s[40:41], s[0:1], 96")
    s("v_lshrrev_b32 v17, 6, v0")
    s("v_and_b32 v1, 63, v0")
    s("s_and_b32 s4, s2, 7")
    s("s_lshr_b32 s5, s2, 3")
    s("v_readfirstlane_b32 s60, v17")
    s("s_lshr_b32 s61, s4, 2")
    s("s_and_b32 s4, s4, 3")
    if cfg.map1 == 0:
        s("s_lshl_b32 s63, s4, 2")
        s("s_and_b32 s6, s5, 3")
        s("s_add_u32 s63, s63, s6")
        s("s_lshr_b32 s62, s5, 2")
    else:
        s("s_lshl_b32 s62, s4, 1")
        s("s_and_b32 s6, s5, 1")
        s("s_add_u32 s62, s62, s6")
        s("s_lshr_b32 s63, s5, 1")
    s("s_and_b32 s8, s60, 1")
    s("s_lshr_b32 s9, s60, 1")
    s("v_lshlrev_b32 v0, 4, v1")
    s("v_lshrrev_b32 v18, 4, v1")
    s("v_and_b32 v19, 15, v1")
    s("v_and_b32 v20, 3, v1")
    s("v_bfe_u32 v21, v1, 2, 2")
    s("v_and_b32 v22, 1, v18")
    s("v_lshl_add_u32 v22, v21, 1, v22")
    s(f"v_mul_u32_u24 v22, {CH}, v22")
    s("v_lshrrev_b32 v23, 1, v18")
    s("v_lshl_add_u32 v22, v23, 8, v22")
    s("v_lshl_add_u32 v12, v20, 3, v22")
    s("v_xor_b32 v24, 2, v20")
    s("v_lshl_add_u32 v13, v24, 3, v22")
    s("v_and_b32 v22, 1, v21")
    s("v_lshl_add_u32 v22, v20, 1, v22")
    s(f"v_mul_u32_u24 v22, {CH}, v22")
    s("v_lshrrev_b32 v23, 1, v21")
    s("v_lshl_add_u32 v22, v23, 8, v22")
    s("v_lshlrev_b32 v23, 1, v18")
    s("v_mov_b32 v24, 0x9c")
    s("v_lshrrev_b32 v23, v23, v24")
    s("v_and_b32 v23, 3, v23")
    s("v_lshl_add_u32 v2, v23, 4, v22")
    s("v_lshrrev_b32 v22, 3, v19")
    s("v_lshlrev_b32 v22, 1, v22")
    s("v_xor_b32 v22, v22, v18")
    s("v_lshlrev_b32 v22, 4, v22")
    s("v_lshl_add_u32 v11, v19, 6, v22")
    s("v_lshrrev_b32 v22, 2, v1")
    s("v_lshrrev_b32 v23, 5, v1")
    s("v_lshlrev_b32 v23, 1, v23")
    s("v_xor_b32 v23, v23, v20")
    s("v_mul_u32_u24 v22, 1280, v22")
    s("v_lshl_add_u32 v4, v23, 4, v22")
    s("v_lshrrev_b32 v22, 1, v18")
    s("v_lshlrev_b32 v22, 2, v22")
    s("v_and_b32 v23, 1, v18")
    s("v_lshl_add_u32 v22, v23, 4, v22")
    s("v_lshlrev_b32 v22, 13, v22")
    s("v_lshl_add_u32 v7, v19, 4, v22")
    s("s_mul_i32 s10, s60, 61440")
    s("v_add_u32 v4, s10, v4")
    s("v_add_u32 v5, 20480, v4")
    s("v_add_u32 v6, 40960, v4")
    s("s_lshl_b32 s10, s8, 16")
    s("s_lshl_b32 s11, s9, 8")
    s("s_add_u32 s10, s10, s11")
    s("v_add_u32 v7, s10, v7")
    s("v_add_u32 v8, 8192, v7")
    s("v_add_u32 v9, 16384, v7")
    s("v_add_u32 v10, 24576, v7")
    s(f"s_mul_i32 s10, s9, {2*SUB}")
    s("v_add_u32 v2, s10, v2")
    s(f"s_add_u32 s10, s10, {SUB}")
    s("v_add_u32 v3, s10, v12")
    s(f"s_mul_i32 s10, s9, {SUB}")
    s("v_add_u32 v12, s10, v12")
    s("v_add_u32 v13, s10, v13")
    s(f"s_mul_i32 s11, s8, {CH}")
    s("s_add_u32 s69, s10, s11")
    s("s_mul_i32 s10, s8, 6144")
    s(f"s_add_u32 s10, s10, {XOFF}")
    s("v_add_u32 v11, s10, v11")
    s("s_mul_i32 s70, s60, 3072")
    s(f"s_add_u32 s70, s70, {XOFF}")
    s(f"s_mul_i32 s75, s60, {SUB}")
    s("s_waitcnt lgkmcnt(0)")
    s("s_cmp_eq_u32 s61, 0")
    s("s_cselect_b64 s[44:45], s[16:17], s[26:27]")
    s("s_cselect_b64 s[48:49], s[22:23], s[32:33]")
    s("s_cselect_b64 s[12:13], s[18:19], s[28:29]")
    s("s_cselect_b64 s[14:15], s[20:21], s[30:31]")
    s("s_cmp_eq_u32 s8, 0")
    s("s_cselect_b64 s[52:53], s[12:13], s[14:15]")
    s("s_mul_i32 s10, s62, 245760")
    s("s_add_u32 s44, s44, s10")
    s("s_addc_u32 s45, s45, 0")
    s("s_and_b32 s45, s45, 0xffff")
    s("s_mov_b32 s46, 245760")
    s("s_mov_b32 s47, 0x20000")
    s("s_lshl_b32 s10, s63, 9")
    s("s_add_u32 s48, s48, s10")
    s("s_addc_u32 s49, s49, 0")
    s("s_and_b32 s49, s49, 0xffff")
    s("s_sub_u32 s50, 5242880, s10")
    s("s_mov_b32 s51, 0x20000")
    s("s_lshl_b32 s10, s62, 5")
    s("s_lshl_b32 s11, s63, 1")
    s("s_add_u32 s11, s11, s9")
    s("s_add_u32 s10, s10, s11")
    s("s_lshl_b32 s10, s10, 18")
    s("s_add_u32 s52, s52, s10")
    s("s_addc_u32 s53, s53, 0")
    s("s_and_b32 s53, s53, 0xffff")
    s("s_mov_b32 s54, 262144")
    s("s_mov_b32 s55, 0x20000")
    s("s_mov_b32 s64, 0")
    s("s_mov_b32 s65, 0")
    def qdma(slot_sreg_w, slot_sreg_x, base=0):
        l = []
        for t in range(3):
            l.append((f"s_add_u32 m0, {slot_sreg_x}, {base + 1024*t}",
                      f"buffer_load_dwordx4 v{4+t}, s[44:47], s64 offen {cfg.nt_xw} lds"))
        for rho in range(4):
            l.append((f"s_add_u32 m0, {slot_sreg_w}, {base + 2*CH*rho}",
                      f"buffer_load_dwordx4 v{7+rho}, s[48:51], s65 offen {cfg.nt_xw} lds"))
        return l
    for st in range(2):
        for m, d in qdma("s69", "s70", QR0 + st * SLOT):
            s(m); s("s_nop 0"); s(d)
        s("s_add_u32 s64, s64, 64")
        s("s_add_u32 s65, s65, 262144")
    s("s_lshl_b32 s10, s61, 3")
    s("s_add_u32 s10, s10, s62")
    s("s_mul_i32 s10, s10, 12")
    s("s_mul_i32 s12, s8, 6")
    s("s_add_u32 s10, s10, s12")
    s("s_lshl_b32 s10, s10, 17")
    s("s_lshl_b32 s11, s11, 12")
    s("s_add_u32 s10, s10, s11")
    s("s_add_u32 s56, s40, s10")
    s("s_addc_u32 s57, s41, 0")
    s("s_and_b32 s57, s57, 0xffff")
    s(f"s_mov_b32 s58, {5*131072 + 4096}")
    s("s_mov_b32 s59, 0x20000")
    s(f"s_mov_b32 s76, {f32bits(SCALE):#x}")
    s(f"s_mov_b32 s77, {f32bits(SCALE):#x}")
    s("s_mov_b32 s78, 0")
    s(f"s_mov_b32 s67, {QR0}")
    s(f"s_mov_b32 s66, {QR0 + 2*SLOT}")
    s("s_mov_b32 s71, 0")
    s("s_mov_b32 s72, 4096")
    for r in range(O0, 256): s(f"v_mov_b32 v{r}, 0")
    s("v_mov_b32 v17, 0x3f803f80")
    for r in range(4): s(f"v_accvgpr_write_b32 a{ONES+r}, v17")
    s("v_add_u32 v14, s67, v11")
    s("v_add_u32 v15, s67, v12")
    s("v_add_u32 v16, s67, v13")
    s("s_add_u32 s73, s66, s69")
    s("s_add_u32 s74, s66, s70")
    s("s_waitcnt vmcnt(7)")
    pro.ins = pad_hazards(pro.ins)

    def kvdma(m0base_sreg, base):
        l = []
        for c in range(8):
            l.append((f"s_add_u32 m0, {m0base_sreg}, {base + CH*c - 1024*(c&3)}",
                      f"buffer_load_dwordx4 v0, s[52:55], s{71 + (c>>2)} offen offset:{1024*(c&3)} {cfg.nt_kv} lds"))
        return l

    def qperiod(par, mf=True, reads=True, dmas=None, post=(), endwait=None):
        mfl = []
        if mf:
            for dt in range(8):
                for i in range(6):
                    a = OACC(i, dt)
                    mfl.append(f"{MF} {vr(a)}, {ar(QA(par^1, dt))}, {ar(QB(par^1, i))}, {vr(a)}")
        fl = []
        if reads:
            rl = []
            for i in range(6):
                rl.append(f"ds_read_b128 {ar(QB(par, i))}, v14 offset:{1024*i}")
            for dt in range(8):
                for w in range(2):
                    rl.append(f"ds_read_b64_tr_b16 {ar(QA(par, dt) + 2*w, 2)}, v{15 + (dt & 1)} offset:{512*w + 32*dt}")
        else:
            rl = []
        seq = []
        dl = list(dmas or [])
        dchain = []
        for k, (m, d) in enumerate(dl):
            if k == 0: dchain.append([m])
            nxt = [dl[k+1][0]] if k + 1 < len(dl) else []
            pre = []
            if isinstance(d, tuple): pre, d = list(d[0]), d[1]
            dchain.append(pre + [d] + nxt)
        gaps = {}
        g = 0
        ri = 0; di = 0
        while ri < len(rl) or di < len(dchain):
            if di < len(dchain):
                gaps.setdefault(g, []).extend(dchain[di]); di += 1; g += 1
            if ri < len(rl):
                gaps.setdefault(g, []).extend(rl[ri:ri+2]); ri += 2; g += 1
        for t in post:
            gaps.setdefault(g, []).append(t); g += 1
        s = Stream()
        s("s_barrier")
        if mf:
            assert g <= 48, g
            s.extend(interleave(mfl, gaps))
        else:
            for k in sorted(gaps):
                for t in gaps[k]: s(t)
        if endwait: s(endwait)
        return s

    ring_upd = [
        "s_add_u32 s64, s64, 64",
        "s_add_u32 s65, s65, 262144",
        "s_add_u32 s73, s67, s69",
        "s_add_u32 s74, s67, s70",
        f"s_add_u32 s67, s67, {SLOT}",
        f"s_cmp_eq_u32 s67, {QR0 + 3*SLOT}",
        f"s_cselect_b32 s67, {QR0}, s67",
        "v_add_u32 v14, s67, v11",
        "v_add_u32 v15, s67, v12",
        "v_add_u32 v16, s67, v13",
    ]
    W7 = "s_waitcnt vmcnt(7) lgkmcnt(0)"
    qd = qdma("s73", "s74")
    q0 = qperiod(0, mf=False, dmas=qd, post=ring_upd + ["s_mov_b32 s68, 7"], endwait=W7)
    q0.ins = pad_hazards(q0.ins)
    qloop = Stream()
    qloop("K1_QLOOP:")
    qloop.extend(qperiod(1, dmas=qd, post=ring_upd, endwait=W7))
    qloop.extend(qperiod(0, dmas=qd, post=ring_upd, endwait=W7))
    qloop("s_sub_u32 s68, s68, 1")
    qloop("s_cbranch_scc0 K1_QLOOP")
    kvadv = ["s_add_u32 s71, s71, 8192", "s_add_u32 s72, s72, 8192"]
    def kv_tiles(tiles):
        l = []
        for n, t in enumerate(tiles):
            x = kvdma("s75", t * SLOT)
            if n: x[0] = (x[0][0], (kvadv, x[0][1]))
            l += x
        return l
    qtail = Stream()
    qtail.extend(qperiod(1, dmas=qd, post=ring_upd, endwait=W7))
    qtail.extend(qperiod(0, dmas=kv_tiles([0, 1]), post=kvadv + ring_upd[4:], endwait="s_waitcnt vmcnt(16) lgkmcnt(0)"))
    qtail.extend(qperiod(1, dmas=kv_tiles([2]), post=kvadv, endwait="s_waitcnt lgkmcnt(0)"))
    qtail.extend(qperiod(0, reads=False, dmas=kv_tiles([3]), post=kvadv))
    stamp(qtail, cfg, 1)
    qe = Stream()
    frs = [(i, kk) for i in range(6) for kk in range(4)]
    for n in range(0, 24, 4):
        grp = frs[n:n+4]
        for (i, kk) in grp:
            b = OACC(i, 2*kk)
            for p in range(4): qe(f"v_pk_mul_f32 {vr(b+2*p,2)}, {vr(b+2*p,2)}, s[76:77]")
        for (i, kk) in grp:
            b = OACC(i, 2*kk)
            for p in range(4): qe(f"v_cvt_pk_bf16_f32 v{b+p}, v{b+2*p}, v{b+2*p+1}")
        for (i, kk) in grp:
            b = OACC(i, 2*kk)
            qe(f"v_permlane16_swap_b32 v{b}, v{b+2}")
            qe(f"v_permlane16_swap_b32 v{b+1}, v{b+3}")
        for (i, kk) in grp:
            b = OACC(i, 2*kk)
            for p in range(4): qe(f"v_accvgpr_write_b32 a{QF(i,kk)+p}, v{b+p}")
    qe.ins = pad_hazards(qe.ins, qtail.ins[-16:])
    def kreads(par, off):
        return [f"ds_read_b128 {ar(KF(par, f))}, v2 offset:{off + 512*(f>>2) + 64*(f&3)}" for f in range(8)]
    def vreads(par, off):
        return [f"ds_read_b64_tr_b16 {ar(VF(par, dt) + 2*w, 2)}, v3 offset:{off + 512*w + 32*dt}" for dt in range(8) for w in range(2)]
    st = Stream()
    st("K1_KVSTART:")
    st("s_mov_b32 s73, s75")
    st(f"s_mov_b32 s74, {2*SLOT}")
    st("s_mov_b32 s68, 14")
    st("s_waitcnt vmcnt(24)")
    st("s_barrier")
    for t in kreads(0, 0): st(t)
    for t in vreads(0, 0): st(t)
    st("s_cmp_lg_u32 s78, 0")
    st("s_cbranch_scc1 K1_REDUCE")
    st("s_waitcnt lgkmcnt(15)")
    mref = Stream()
    for kk in range(4):
        for i in range(6):
            c = "0" if kk == 0 else vr(NEGM(i))
            mref(f"{MF} {vr(NEGM(i))}, {ar(KF(0, kk))}, {ar(QF(i, kk))}, {c}")
    mref("s_nop 7")
    red = Stream()
    red("K1_REDUCE:")
    R6 = range(6)
    for i in R6: red(f"v_max3_f32 v{NEGM(i)}, v{NEGM(i)}, v{NEGM(i)+1}, v{NEGM(i)+2}")
    for i in R6: red(f"v_max_f32 v{NEGM(i)}, v{NEGM(i)}, v{NEGM(i)+3}")
    for op in ("v_permlane16_swap_b32", "v_permlane32_swap_b32"):
        for i in R6: red(f"v_mov_b32 v{NEGM(i)+1}, v{NEGM(i)}")
        for i in R6: red(f"{op} v{NEGM(i)}, v{NEGM(i)+1}")
        for i in R6: red(f"v_max_f32 v{NEGM(i)}, v{NEGM(i)}, v{NEGM(i)+1}")
    for i in R6:
        for r in (3, 2, 1, 0): red(f"v_sub_f32 v{NEGM(i)+r}, 0, v{NEGM(i)}")
    red("s_waitcnt vmcnt(16) lgkmcnt(0)")
    stamp(red, cfg, 2)

    def E(u, r):
        x = SREG(u & 1, r >> 2) + (r & 3)
        return f"v_exp_f32 v{x}, v{x}"
    def C(u, c):
        x = SREG(u & 1, 0) + 2 * c
        return f"v_cvt_pk_bf16_f32 v{PREG(u & 1) + c}, v{x}, v{x+1}"
    def QK(u, j):
        i = u % 6; l = []
        for kt in range(2):
            for kk in range(4):
                d = vr(SREG(u & 1, kt))
                c = vr(NEGM(i)) if kk == 0 else d
                l.append(f"{MF} {d}, {ar(KF(j & 1, 4*kt + kk))}, {ar(QF(i, kk))}, {c}")
        return l
    def PV(u):
        if u < 0: return [None] * 9
        i = u % 6; j = u // 6; l = []
        for dt in range(8):
            d = vr(OACC(i, dt))
            l.append(f"{MF} {d}, {ar(VF(j & 1, dt))}, {vr(PREG(u & 1))}, {'0' if j == 0 else d}")
        d = ar(LACC(i))
        l.append(f"{MF} {d}, {ar(ONES)}, {vr(PREG(u & 1))}, {'0' if j == 0 else d}")
        return l

    def window(j):
        par = j & 1
        mfl = []; gaps = {}
        def put(i, k, t): gaps.setdefault(17*i + k, []).append(t)
        for i in range(6):
            u = 6*j + i
            mfl += QK(u, j) + PV(u - 2)
            for n, k in enumerate((9, 11, 13, 15)): put(i, k, E(u, n))
            if u >= 1:
                for n, k in enumerate((0, 2, 4, 6)): put(i, k, E(u-1, 4+n))
                put(i, 1, C(u-1, 0)); put(i, 1, C(u-1, 1)); put(i, 5, C(u-1, 2)); put(i, 8, C(u-1, 3))
        off = SLOT if par == 0 else 0
        kr = kreads(par ^ 1, off); vrd = vreads(par ^ 1, off)
        for n, k in enumerate((3, 7, 10, 12)):
            put(0, k, kr[2*n]); put(0, k, kr[2*n+1])
        dl = kvdma("s73", SLOT * par)
        put(0, 8, dl[0][0])
        dpos = [(0, 14), (0, 16), (1, 3), (1, 7), (1, 10), (1, 12), (1, 14), (1, 16)]
        for c, (i, k) in enumerate(dpos):
            put(i, k, dl[c][1])
            if c < 7: put(i, k, dl[c+1][0])
        vpos = [(i, k) for i in (2, 3, 4, 5) for k in (3, 7)]
        for n, (i, k) in enumerate(vpos):
            put(i, k, vrd[2*n]); put(i, k, vrd[2*n+1])
        put(2, 10, kvadv[0]); put(2, 10, kvadv[1])
        if par == 0:
            put(2, 12, "v_add_u32 v2, s74, v2")
            put(5, 10, "v_add_u32 v3, s74, v3")
        else:
            put(2, 12, "s_add_u32 s73, s73, s74")
            put(2, 12, "s_sub_u32 s74, 0, s74")
        s = Stream()
        s("s_barrier")
        s.extend(interleave(mfl, gaps))
        s("s_waitcnt vmcnt(16) lgkmcnt(0)")
        return s
    w0 = Stream(); w0.extend(window(0)); w0.extend(window(1))
    w0.ins = pad_hazards(w0.ins, red.ins[-16:])
    loop = Stream()
    loop("K1_LOOP:")
    loop.extend(window(2)); loop.extend(window(3))
    loop("s_sub_u32 s68, s68, 1")
    loop("s_cbranch_scc0 K1_LOOP")
    tail = Stream()
    U = 6*4 - 1
    tg = {0: [E(U,4)], 1: [C(U,0), C(U,1)], 2: [E(U,5)], 3: [E(U,6)], 4: [C(U,2)], 5: [E(U,7)], 7: [C(U,3)]}
    tail.extend(interleave(PV(U-1) + PV(U), tg))
    stamp(tail, cfg, 3)
    tail.ins = pad_hazards(tail.ins, loop.ins[-16:])
    ep = Stream()
    for i in R6: ep(f"v_accvgpr_read_b32 v{16+2*i}, a{LACC(i)}")
    ep(f"s_mov_b32 s10, {f32bits(THR if not cfg.force_fb else 1.0):#x}")
    ep("s_mov_b64 s[12:13], 0")
    for i in R6:
        ep(f"v_cmp_nge_f32 vcc, s10, v{16+2*i}")
        ep("s_nop 1")
        ep("s_or_b64 s[12:13], s[12:13], vcc")
    for i in R6: ep(f"v_rcp_f32 v{16+2*i}, v{16+2*i}")
    ep("s_mov_b32 s11, 0")
    for i in R6:
        for p in range(16):
            b = OACC(i, 0) + 2*p
            ep(f"v_pk_mul_f32 {vr(b,2)}, {vr(b,2)}, {vr(16+2*i,2)} op_sel_hi:[1,0]")
        for dtp in range(4):
            b = OACC(i, 2*dtp)
            for p in range(4): ep(f"v_cvt_pk_bf16_f32 v{b+p}, v{b+2*p}, v{b+2*p+1}")
            ep(f"buffer_store_dwordx4 {vr(b)}, v0, s[56:59], s11 offen offset:{1024*dtp} {cfg.nt_o}")
        if i < 5: ep("s_add_u32 s11, s11, 131072")
    ep("s_cmp_lg_u64 s[12:13], 0")
    ep("s_cselect_b32 s10, 1, 0")
    ep("v_mov_b32 v16, s10")
    ep("s_lshl_b32 s10, s60, 2")
    ep(f"s_add_u32 s10, s10, {FLAG_OFF}")
    ep("v_mov_b32 v17, s10")
    ep(f"v_mov_b32 v18, {FLAG_OFF}")
    ep("ds_write_b32 v17, v16")
    ep("s_waitcnt lgkmcnt(0)")
    ep("s_barrier")
    ep("ds_read_b128 v[20:23], v18")
    ep("s_waitcnt lgkmcnt(0)")
    ep("v_or_b32 v20, v20, v21")
    ep("v_or3_b32 v20, v20, v22, v23")
    ep("v_readfirstlane_b32 s10, v20")
    ep("s_andn2_b32 s10, s10, s78")
    ep("s_cmp_eq_u32 s10, 0")
    ep("s_cbranch_scc1 K1_DONE")
    ep.ins = pad_hazards(ep.ins, tail.ins[-16:])
    fb = Stream()
    fb("s_mov_b32 s78, 1")
    fb("s_mov_b32 s71, 0")
    fb("s_mov_b32 s72, 4096")
    fb("s_mov_b32 s68, 31")
    for i in R6: fb(f"v_mov_b32 v{NEGM(i)}, 0xff800000")
    fb("s_waitcnt vmcnt(0)")
    fbl = Stream()
    fbl("K1_FBLOOP:")
    fbl("s_barrier")
    for m, d in kvdma("s75", 0):
        fbl(m); fbl("s_nop 0"); fbl(d)
    for t in kvadv: fbl(t)
    fbl("s_waitcnt vmcnt(0)")
    fbl("s_barrier")
    for t in kreads(0, 0): fbl(t)
    fbl("s_waitcnt lgkmcnt(0)")
    for kt in range(2):
        for kk in range(4):
            for i in R6:
                d = vr(O0 + 8*i + 4*kt)
                fbl(f"{MF} {d}, {ar(KF(0, 4*kt+kk))}, {ar(QF(i, kk))}, {'0' if kk == 0 else d}")
    fbl("s_nop 7")
    for p in range(4):
        for i in R6:
            fbl(f"v_max3_f32 v{NEGM(i)}, v{NEGM(i)}, v{O0+8*i+2*p}, v{O0+8*i+2*p+1}")
    fbl("s_sub_u32 s68, s68, 1")
    fbl("s_cbranch_scc0 K1_FBLOOP")
    fb2 = Stream()
    for i in R6:
        for r in (1, 2, 3): fb2(f"v_mov_b32 v{NEGM(i)+r}, v{NEGM(i)}")
    fb2("s_mov_b32 s71, 0")
    fb2("s_mov_b32 s72, 4096")
    fb2("s_barrier")
    for t in range(4):
        for m, d in kvdma("s75", t * SLOT):
            fb2(m); fb2("s_nop 0"); fb2(d)
        for x in kvadv: fb2(x)
    fb2("s_branch K1_KVSTART")
    done = Stream()
    done("K1_DONE:")
    if cfg.stamps:
        stamp(done, cfg, 4)
        done("s_waitcnt vmcnt(0)")
        stamp(done, cfg, 5)
        done("s_waitcnt lgkmcnt(0)")
        done(f"s_add_u32 s40, s40, {STAMP_OFF}")
        done("s_addc_u32 s41, s41, 0")
        for n in range(6): done(f"v_mov_b32 v{16+n}, s{80+2*n}")
        done("s_lshl_b32 s10, s2, 2")
        done("s_add_u32 s10, s10, s60")
        done("s_lshl_b32 s10, s10, 5")
        done("v_mov_b32 v24, s10")
        done("global_store_dwordx4 v24, v[16:19], s[40:41]")
        done("global_store_dwordx2 v24, v[20:21], s[40:41] offset:16")
    done("K1_END:")
    done("s_endpgm")
    parts = [pro, q0, qloop, qtail, qe, st, mref, red, w0, loop, tail, ep, fb, fbl, fb2, done]
    tr = []
    for p in [pro, q0, qloop, qloop, qtail, qe, st, mref, red, w0, loop, loop, tail, ep, fb, fbl, fbl, fb2, st, red, w0, loop, tail, ep, done]:
        tr += p.ins
    errs = check_hazards(tr, "K1")
    if not cfg.stamps: errs += check_waits(tr, "K1")
    return parts, errs

def gen_k2(cfg):
    ACC = 128
    def acc(i, nt): return ACC + 4 * (5 * i + nt)
    def OF(st, i): return 24 * st + 4 * i
    def WF(par, nt): return 192 + 20 * par + 4 * nt
    D = 6
    s = pro = Stream()
    s("s_cmp_ge_u32 s2, 256")
    s("s_cbranch_scc1 K2_END")
    stamp(s, cfg, 0)
    s("s_load_dwordx2 s[16:17], s[0:1], 32")
    s("s_load_dwordx4 s[20:23], s[0:1], 72")
    s("s_load_dwordx2 s[40:41], s[0:1], 96")
    s("v_lshrrev_b32 v17, 6, v0")
    s("v_and_b32 v1, 63, v0")
    s("s_and_b32 s4, s2, 7")
    s("s_lshr_b32 s5, s2, 3")
    s("v_readfirstlane_b32 s60, v17")
    s("s_lshr_b32 s61, s4, 2")
    s("s_and_b32 s4, s4, 3")
    s("s_lshl_b32 s62, s4, 2")
    s("s_and_b32 s6, s5, 3")
    s("s_add_u32 s62, s62, s6")
    s("s_lshr_b32 s63, s5, 2")
    s("v_lshlrev_b32 v0, 4, v1")
    for i in range(6): s(f"v_add_u32 v{2+i}, {131072*i}, v0")
    for t in range(5):
        s(f"v_add_u32 v17, {64*t}, v1")
        s("v_mul_u32_u24 v18, 6554, v17")
        s("v_lshrrev_b32 v18, 16, v18")
        s("v_mul_u32_u24 v19, 10, v18")
        s("v_sub_u32 v19, v17, v19")
        s("v_mul_u32_u24 v18, 1280, v18")
        s(f"v_lshl_add_u32 v{8+t}, v19, 4, v18")
    s("v_lshrrev_b32 v17, 2, v1")
    s("v_mul_u32_u24 v17, 160, v17")
    s("v_and_b32 v18, 3, v1")
    s("v_lshl_add_u32 v13, v18, 3, v17")
    s("s_mul_i32 s64, s60, 40960")
    s("v_add_u32 v13, s64, v13")
    s("v_and_b32 v17, 15, v1")
    s("v_mul_u32_u24 v17, 2560, v17")
    s("v_lshrrev_b32 v18, 4, v1")
    s("v_lshl_add_u32 v14, v18, 3, v17")
    s("s_waitcnt lgkmcnt(0)")
    s("s_mul_i32 s10, s61, 96")
    s("s_mul_i32 s11, s62, 6")
    s("s_add_u32 s10, s10, s11")
    s("s_lshl_b32 s10, s10, 17")
    s("s_lshl_b32 s11, s60, 15")
    s("s_add_u32 s10, s10, s11")
    s("s_add_u32 s44, s40, s10")
    s("s_addc_u32 s45, s41, 0")
    s("s_and_b32 s45, s45, 0xffff")
    s(f"s_mov_b32 s46, {5*131072 + 32768}")
    s("s_mov_b32 s47, 0x20000")
    s("s_cmp_eq_u32 s61, 0")
    s("s_cselect_b64 s[48:49], s[16:17], s[20:21]")
    s(f"s_mul_i32 s10, s60, {1024*1280}")
    s("s_mul_i32 s11, s63, 160")
    s("s_add_u32 s10, s10, s11")
    s("s_add_u32 s48, s48, s10")
    s("s_addc_u32 s49, s49, 0")
    s("s_and_b32 s49, s49, 0xffff")
    s("s_sub_u32 s50, 5242880, s10")
    s("s_mov_b32 s51, 0x20000")
    s("s_mov_b32 s65, 0")
    s("s_mov_b32 s66, 0")
    def loads(step):
        l = []
        for t in range(5):
            l.append([f"s_add_u32 m0, s64, {5120*(step & 7) + 1024*t}"])
            l.append([f"buffer_load_dwordx4 v{8+t}, s[48:51], s66 offen {cfg.nt_k2w} lds"])
        for i in range(6):
            l.append([f"buffer_load_dwordx4 {ar(OF(step & 7, i))}, v{2+i}, s[44:47], s65 offen {cfg.nt_k2o}"])
        return l
    for st in range(D - 1):
        for x in loads(st):
            s(x[0])
        s("s_add_u32 s65, s65, 1024")
        s("s_add_u32 s66, s66, 40960")
    s(f"s_mul_i32 s10, s62, {96*2560}")
    s("s_mul_i32 s11, s61, 1280")
    s("s_add_u32 s10, s10, s11")
    s("s_mul_i32 s11, s63, 160")
    s("s_add_u32 s10, s10, s11")
    s("s_add_u32 s52, s22, s10")
    s("s_addc_u32 s53, s23, 0")
    s("s_and_b32 s53, s53, 0xffff")
    s("s_sub_u32 s54, 3932160, s10")
    s("s_mov_b32 s55, 0x20000")
    for r in range(ACC, ACC + 120): s(f"v_mov_b32 v{r}, 0")
    def treads(step):
        return [f"ds_read_b64_tr_b16 {ar(WF(step & 1, nt) + 2*w, 2)}, v13 offset:{5120*(step & 7) + 2560*w + 32*nt}"
                for nt in range(5) for w in range(2)]
    s(f"s_waitcnt vmcnt({11*(D-2)})")
    stamp(s, cfg, 1)
    for t in treads(0): s(t)
    for x in loads(D - 1):
        s(x[0])
    s("s_add_u32 s65, s65, 1024")
    s("s_add_u32 s66, s66, 40960")
    s("s_mov_b32 s68, 3")
    s(f"s_waitcnt vmcnt({11*(D-2)}) lgkmcnt(0)")
    pro.ins = pad_hazards(pro.ins)
    loop = Stream()
    loop("K2_LOOP:")
    loop("s_cmp_eq_u32 s68, 0")
    loop("s_cselect_b32 s67, 0x40000000, 0")
    for u in range(8):
        mfl = []
        for i in range(6):
            for nt in range(5):
                mfl.append(f"{MF} {vr(acc(i,nt))}, {ar(WF(u & 1, nt))}, {ar(OF(u, i))}, {vr(acc(i,nt))}")
        gaps = {}
        tl = treads(u + 1)
        for n in range(5): gaps[n] = tl[2*n:2*n+2]
        g = 5
        if u == 8 - D:
            gaps[g] = ["s_add_u32 s65, s65, s67", "s_add_u32 s66, s66, s67"]; g += 1
        for x in loads(u + D):
            gaps[g] = x; g += 1
        gaps[g] = ["s_add_u32 s65, s65, 1024", "s_add_u32 s66, s66, 40960"]
        assert g < 30
        loop.extend(interleave(mfl, gaps))
        loop(f"s_waitcnt vmcnt({11*(D-2)}) lgkmcnt(0)")
    loop("s_sub_u32 s68, s68, 1")
    loop("s_cbranch_scc0 K2_LOOP")
    ep = Stream()
    stamp(ep, cfg, 2)
    ep("s_waitcnt vmcnt(0)")
    ep("s_barrier")
    ep("s_lshl_b32 s10, s60, 10")
    ep("v_add_u32 v15, s10, v0")
    ep("v_add_u32 v16, 0x10000, v15")
    for T in range(30):
        i, nt = T // 5, T % 5
        if T < 16: ep(f"ds_write_b128 v15, {vr(acc(i,nt))} offset:{4096*T}")
        else: ep(f"ds_write_b128 v16, {vr(acc(i,nt))} offset:{4096*(T-16)}")
    ep("s_lshl_b32 s10, s60, 12")
    ep("v_add_u32 v15, s10, v0")
    ep("v_add_u32 v16, 0x10000, v15")
    ep("s_waitcnt lgkmcnt(0)")
    ep("s_barrier")
    for m in range(8):
        for p in range(4):
            d = 32 + 16*m + 4*p
            ep(f"ds_read_b128 {vr(d)}, v{15 + (m >> 2)} offset:{16384*(m & 3) + 1024*p}")
        if m == 3: ep("s_waitcnt lgkmcnt(8)")
    for m in range(8):
        d = 32 + 16*m
        if m in (2, 4, 6): ep(f"s_waitcnt lgkmcnt({max(0, 28 - 4*m - 4) if m < 6 else 0})" if m > 2 else "s_waitcnt lgkmcnt(15)")
        for h in range(2):
            ep(f"v_pk_add_f32 {vr(d+2*h,2)}, {vr(d+2*h,2)}, {vr(d+4+2*h,2)}")
            ep(f"v_pk_add_f32 {vr(d+8+2*h,2)}, {vr(d+8+2*h,2)}, {vr(d+12+2*h,2)}")
        for h in range(2):
            ep(f"v_pk_add_f32 {vr(d+2*h,2)}, {vr(d+2*h,2)}, {vr(d+8+2*h,2)}")
        ep(f"v_cvt_pk_bf16_f32 v{d}, v{d}, v{d+1}")
        ep(f"v_cvt_pk_bf16_f32 v{d+1}, v{d+2}, v{d+3}")
        ep(f"s_add_u32 s10, s60, {4*m}")
        ep("s_mul_i32 s11, s10, 13")
        ep("s_lshr_b32 s11, s11, 6")
        ep("s_mul_i32 s12, s11, 5")
        ep("s_sub_u32 s12, s10, s12")
        ep(f"s_mul_i32 s11, s11, {16*2560}")
        ep("s_lshl_b32 s12, s12, 5")
        ep("s_add_u32 s11, s11, s12")
        if m == 7:
            ep("s_cmp_ge_u32 s10, 30")
            ep("s_cselect_b32 s11, 0x40000000, s11")
        ep(f"buffer_store_dwordx2 {vr(d,2)}, v14, s[52:55], s11 offen")
    if cfg.stamps:
        ep("s_waitcnt vmcnt(0)")
        stamp(ep, cfg, 3)
        ep("s_waitcnt lgkmcnt(0)")
        ep(f"s_add_u32 s40, s40, {STAMP_OFF + 65536}")
        ep("s_addc_u32 s41, s41, 0")
        for n in range(4): ep(f"v_mov_b32 v{16+n}, s{80+2*n}")
        ep("s_lshl_b32 s10, s2, 2")
        ep("s_add_u32 s10, s10, s60")
        ep("s_lshl_b32 s10, s10, 5")
        ep("v_mov_b32 v24, s10")
        ep("global_store_dwordx4 v24, v[16:19], s[40:41]")
    ep("K2_END:")
    ep("s_endpgm")
    ep.ins = pad_hazards(ep.ins, loop.ins[-16:])
    tr = pro.ins + loop.ins + loop.ins + ep.ins
    errs = check_hazards(tr, "K2")
    if not cfg.stamps: errs += check_waits(tr, "K2")
    return [pro, loop, ep], errs

KD = """.amdhsa_kernel {name}
  .amdhsa_next_free_vgpr 512
  .amdhsa_next_free_sgpr 102
  .amdhsa_accum_offset 256
  .amdhsa_group_segment_fixed_size 0
  .amdhsa_kernarg_size 104
  .amdhsa_user_sgpr_count 2
  .amdhsa_user_sgpr_kernarg_segment_ptr 1
  .amdhsa_system_sgpr_workgroup_id_x 1
.end_amdhsa_kernel
"""

def build_asm(cfg):
    ref = open(f"cdna_kernels/{NAME}.s.ref").read()
    head = []
    for line in ref.splitlines():
        if line.startswith(";") and "@launch" not in line and "Override launch" not in line and "grid=ceil" not in line:
            head.append(line)
        elif not line.startswith(";"): break
    out = "\n".join(head) + "\n"
    out += "; @launch kernel=attn_kernel grid=(256,1,1) block=(256,1,1) lds=163840\n"
    out += "; @launch kernel=oproj_kernel grid=(256,1,1) block=(256,1,1) lds=163840\n"
    out += '.amdgcn_target "amdgcn-amd-amdhsa--gfx950"\n.text\n'
    errs = []
    for nm, g in (("attn_kernel", gen_k1), ("oproj_kernel", gen_k2)):
        parts, e = g(cfg)
        errs += e
        out += f".globl {nm}\n.p2align 8\n.type {nm},@function\n{nm}:\n"
        for p in parts: out += p.text()
    out += '.section .rodata,"a"\n'
    for nm in ("attn_kernel", "oproj_kernel"):
        out += ".p2align 6\n" + KD.format(name=nm)
    return out, errs

if __name__ == "__main__":
    cfg = Cfg()
    outp = f"cdna_kernels/{NAME}.s"
    for a in sys.argv[1:]:
        if a.startswith("out="): outp = a[4:]; continue
        k, v = a.split("=")
        cur = getattr(cfg, k)
        setattr(cfg, k, type(cur)(int(v)) if not isinstance(cur, str) else v.replace("+", " "))
    asm, errs = build_asm(cfg)
    for e in errs[:40]: print(e)
    print(len(errs), "errors")
    open(outp, "w").write(asm)
    print("wrote", outp, len(asm), "bytes")
```

```python
import re

REG_RE = re.compile(r'\b([vas])(\d+)\b|\b([vas])\[(\d+):(\d+)\]|\b(vcc|exec|m0|scc)\b')

def regs_of(opnd):
    out = []
    for m in REG_RE.finditer(opnd):
        if m.group(1):
            out.append((m.group(1), int(m.group(2))))
        elif m.group(3):
            for r in range(int(m.group(4)), int(m.group(5)) + 1):
                out.append((m.group(3), r))
        else:
            out.append((m.group(6), 0))
    return out

TRANS = ("v_exp_f32", "v_rcp_f32", "v_log_f32", "v_rsq_f32", "v_sqrt_f32")

class Ins:
    __slots__ = ("text", "op", "kind", "rd", "wr", "srcc", "srcab", "nstates", "cmt")
    def __init__(self, text, cmt=None):
        self.text = text.strip()
        self.cmt = cmt
        t = self.text
        self.rd, self.wr, self.srcc, self.srcab = set(), set(), set(), set()
        self.nstates = 1
        if t.endswith(":"):
            self.op, self.kind, self.nstates = t, "label", 0
            return
        parts = t.split(None, 1)
        op = parts[0]
        for suf in ("_e32", "_e64"):
            if op.endswith(suf): op = op[:-4]
        self.op = op
        args = parts[1] if len(parts) > 1 else ""
        ops = [x.strip() for x in re.split(r',(?![^\[]*\])', args)] if args else []
        R = lambda i: regs_of(re.sub(r'(op_sel(_hi)?|neg_lo|neg_hi):\[[^\]]*\]', '', ops[i])) if i < len(ops) else []
        if op.startswith("v_mfma"):
            self.kind = "mfma"
            self.wr = set(R(0)); self.srcab = set(R(1)) | set(R(2)); self.srcc = set(R(3))
            self.rd = self.srcab | self.srcc
        elif op.startswith("v_cmp"):
            self.kind = "valu"
            self.wr = set(R(0)); self.rd = set(R(1)) | set(R(2))
        elif op.startswith("v_permlane"):
            self.kind = "perm"
            self.wr = set(R(0)) | set(R(1)); self.rd = set(self.wr)
        elif op in ("v_readfirstlane_b32", "v_readlane_b32"):
            self.kind = "rdlane"
            self.wr = set(R(0)); self.rd = set(R(1)) | set(R(2))
        elif op.startswith("v_"):
            self.kind = "trans" if op in TRANS else "valu"
            self.wr = set(R(0))
            for i in range(1, len(ops)): self.rd |= set(R(i))
            if op in ("v_fmac_f32",): self.rd |= self.wr
            if op.startswith("v_cndmask") and len(ops) == 3: self.rd.add(("vcc", 0))
            if op.startswith("v_add_co") or op.startswith("v_addc_co"):
                self.wr |= set(R(1))
        elif op.startswith("ds_read"):
            self.kind = "dsr"
            self.wr = set(R(0)); self.rd = set(R(1))
        elif op.startswith("ds_write"):
            self.kind = "dsw"
            for i in range(len(ops)): self.rd |= set(R(i))
        elif op.startswith("buffer_load"):
            if re.search(r'\blds\b', t):
                self.kind = "dma"
                for i in range(len(ops)): self.rd |= set(R(i))
                self.rd.add(("m0", 0))
            else:
                self.kind = "vld"
                self.wr = set(R(0))
                for i in range(1, len(ops)): self.rd |= set(R(i))
        elif op.startswith("buffer_store") or op.startswith("global_store") or op.startswith("buffer_atomic") or op.startswith("global_atomic"):
            self.kind = "vst"
            for i in range(len(ops)): self.rd |= set(R(i))
        elif op.startswith("global_load"):
            self.kind = "vld"
            self.wr = set(R(0))
            for i in range(1, len(ops)): self.rd |= set(R(i))
        elif op in ("buffer_wbl2", "buffer_inv"):
            self.kind = "vmisc"
        elif op == "s_waitcnt":
            self.kind = "wait"
        elif op == "s_nop":
            self.kind = "nop"; self.nstates = int(ops[0], 0) + 1
        elif op == "s_barrier":
            self.kind = "barrier"
        elif op.startswith("s_cbranch") or op == "s_branch" or op == "s_endpgm" or op in ("s_setprio", "s_sleep"):
            self.kind = "branch"
        elif op.startswith("s_load") or op in ("s_memtime", "s_memrealtime"):
            self.kind = "smem"
            self.wr = set(R(0))
            for i in range(1, len(ops)): self.rd |= set(R(i))
        elif op.startswith("s_cmp") or op.startswith("s_bitcmp"):
            self.kind = "salu"
            for i in range(len(ops)): self.rd |= set(R(i))
        elif op.startswith("s_"):
            self.kind = "salu"
            self.wr = set(R(0))
            for i in range(1, len(ops)): self.rd |= set(R(i))
            if "saveexec" in op: self.wr.add(("exec", 0))
        else:
            raise ValueError("unknown instruction: " + t)
    def __repr__(self):
        return self.text

def is_valu(i): return i.kind in ("valu", "trans", "perm", "rdlane")
def is_vmem(i): return i.kind in ("vld", "vst", "dma")

def mfma_passes(i):
    if "16x16x32" in i.op: return 4
    if "32x32x16" in i.op: return 8
    raise ValueError(i.op)

def required_gap(p, c):
    need = 0
    vw = {r for r in p.wr if r[0] in "va"}
    sw = {r for r in p.wr if r[0] == "s" or r[0] == "vcc"}
    if p.kind == "mfma":
        n = mfma_passes(p)
        big = {4: 8, 8: 12}[n]; ovl = {4: 6, 8: 10}[n]; war = {4: 3, 8: 7}[n]
        if c.kind == "mfma":
            if p.wr & c.srcab: need = max(need, big)
            if p.wr & c.srcc and not (p.wr == c.srcc and p.op == c.op): need = max(need, ovl)
            if p.wr & c.wr and not (p.wr == c.srcc and p.op == c.op): need = max(need, ovl)
        elif is_valu(c) or c.kind in ("dsr", "dsw", "vld", "vst", "dma"):
            if p.wr & (c.rd | c.wr): need = max(need, big)
        if is_valu(c) and (p.srcc & c.wr): need = max(need, war)
    if is_valu(p):
        if c.kind == "mfma" and vw & c.rd: need = max(need, 2)
        if c.kind == "perm" and vw & c.rd: need = max(need, 2)
        if c.kind == "rdlane" and vw & c.rd: need = max(need, 1)
        if p.kind == "trans" and is_valu(c) and c.kind != "trans" and vw & c.rd: need = max(need, 1)
        if sw:
            if is_vmem(c) and sw & c.rd: need = max(need, 5)
            if is_valu(c) and sw & c.rd: need = max(need, 2 if c.kind != "rdlane" else 4)
            if c.kind == "salu" and sw & c.rd: need = max(need, 1)
        if ("exec", 0) in p.wr and c.kind == "mfma": need = max(need, 4)
    if p.kind == "salu" and ("m0", 0) in p.wr and c.kind == "dma": need = max(need, 1)
    if p.kind == "vst" and ("x4" in p.op or "x3" in p.op):
        data = set(regs_of(p.text.split(None, 1)[1].split(",")[0])) if p.op.startswith("buffer") else p.rd
        data = {r for r in p.rd if r[0] in "va"}
        if data & c.wr: need = max(need, 2)
    return need

def check_hazards(trace, name=""):
    errs = []
    for ci, c in enumerate(trace):
        if c.kind in ("label",): continue
        dist = 0
        pi = ci - 1
        while pi >= 0 and dist < 13:
            p = trace[pi]
            if p.kind != "label":
                need = required_gap(p, c)
                if need > dist:
                    errs.append(f"{name}: hazard need {need} have {dist}: [{pi}] {p.text}  ->  [{ci}] {c.text}")
                dist += p.nstates
            pi -= 1
    return errs

def check_waits(trace, name=""):
    errs = []
    lq = []
    vq = []
    smem_pending = []
    for idx, c in enumerate(trace):
        if c.kind == "wait":
            m = re.search(r'lgkmcnt\((\d+)\)', c.text)
            if m:
                n = int(m.group(1))
                if n == 0: smem_pending = []
                if smem_pending and n != 0: errs.append(f"{name}: counted lgkm wait with smem pending at [{idx}]")
                if len(lq) > n: lq = lq[len(lq) - n:] if n else []
            m = re.search(r'vmcnt\((\d+)\)', c.text)
            if m:
                n = int(m.group(1))
                if len(vq) > n: vq = vq[len(vq) - n:] if n else []
            continue
        touched = c.rd | c.wr
        for q in (lq, vq, smem_pending):
            for p in q:
                if p.wr & touched:
                    errs.append(f"{name}: missing wait: {p.text} -> [{idx}] {c.text}")
        if c.kind in ("dsr", "dsw"): lq.append(c)
        if is_vmem(c):
            vq.append(c)
            if len(vq) > 63: errs.append(f"{name}: vmcnt overflow at [{idx}] {c.text}")
        if c.kind == "smem": smem_pending.append(c)
    return errs

class Stream:
    def __init__(self):
        self.ins = []
    def __call__(self, text, cmt=None):
        for line in text.split("\n"):
            line = line.strip()
            if line: self.ins.append(Ins(line, cmt))
    def extend(self, other):
        self.ins.extend(other.ins if isinstance(other, Stream) else other)
    def text(self):
        out = []
        for i in self.ins:
            if i.kind == "label": out.append(i.text)
            else: out.append("    " + i.text + (f"    ; {i.cmt}" if i.cmt else ""))
        return "\n".join(out) + "\n"

def pad_hazards(ins_list, prefix=()):
    out = list(prefix)
    n0 = len(out)
    for c in ins_list:
        if c.kind != "label":
            dist = 0; need_extra = 0
            pi = len(out) - 1
            while pi >= 0 and dist < 13:
                p = out[pi]
                if p.kind != "label":
                    need = required_gap(p, c)
                    if need > dist: need_extra = max(need_extra, need - dist)
                    dist += p.nstates
                pi -= 1
            if need_extra:
                out.append(Ins(f"s_nop {need_extra - 1}"))
        out.append(c)
    return out[n0:]

def interleave(mfmas, fillers):
    s = Stream()
    for t in fillers.get(-1, []): s(t)
    for k, m in enumerate(mfmas):
        if m is not None: s(m)
        for t in fillers.get(k, []): s(t)
    return s


def check_dma(trace, rules, name=""):
    errs = []
    vq = []
    count = {}
    for idx, c in enumerate(trace):
        if c.kind == "wait":
            m = re.search(r'vmcnt\((\d+)\)', c.text)
            if m:
                n = int(m.group(1))
                if len(vq) > n: vq = vq[len(vq) - n:] if n else []
        elif is_vmem(c):
            key = None
            if c.kind == "dma":
                for srd, g in rules:
                    if srd in c.text: key = srd
            seq = None
            if key:
                seq = count.get(key, 0); count[key] = seq + 1
            vq.append((key, seq))
        elif c.kind == "barrier" and c.cmt:
            for item in c.cmt.split():
                if ":" not in item or not item.startswith("s["): continue
                srd, lag = item.rsplit(":", 1)
                lagn = int(lag)
                tot = count.get(srd, 0)
                for k, seq in vq:
                    if k == srd and seq < tot - lagn:
                        errs.append(f"{name}: barrier [{idx}] {c.cmt}: dma #{seq} of {srd} (total {tot}) may be outstanding")
                        break
    return errs
```

```python
import sys, struct, math
sys.path.insert(0, "work")
from asmlib import *

NAME = "concat_heads__mha_block_cached__gqa_block_cached__near_ridge"
MF = "v_mfma_f32_16x16x32_bf16"
def f32bits(x): return struct.unpack("<I", struct.pack("<f", x))[0]

CH = 1056
SUB = 8416
SLOT = 4 * SUB
XSL = [4 * SLOT, SLOT, SLOT + 24576]
WSL = [3 * SLOT, 3 * SLOT + 2 * SUB, SLOT + 49152]
FLAG_OFF = 160000
WOR = [139264, 98304, 118784]
P_OFF = 32 << 20
F_OFF = 63 << 20
SCALE = math.log2(math.e) / math.sqrt(128.0)
THR = 2.0 ** 40
STAMP_OFF = 64 << 20
SPIN_MAX = 1 << 20

class Cfg:
    stamps = False
    nt_kv = "nt"
    nt_xw = "nt"
    nt_wo = ""
    rot = 1
    qrot = 1
    kvw = 4
    pollp = 2
    force_fb = False
    warm_wo = 1
    local_o = 1
    pbf16 = 0
    force_remote = 0

def vr(b, n=4): return f"v[{b}:{b+n-1}]"
def ar(b, n=4): return f"a[{b}:{b+n-1}]"

O0 = 64
def OACC(i, dt): return O0 + 32 * i + 4 * dt
def SREG(par, kt): return 16 + 8 * par + 4 * kt
def PREG(par): return 32 + 4 * par
def NEGM(i): return 40 + 4 * i
def QF(i, kk): return 16 * i + 4 * kk
def KF(par, f): return 96 + 32 * par + 4 * f
def VF(par, dt): return 160 + 32 * par + 4 * dt
def LACC(i): return 224 + 4 * i
ONES = 248
def QA(par, dt): return 96 + 32 * par + 4 * dt
def QB(par, i): return 160 + 32 * par + 4 * i
def TACC(i, nt): return 64 + 4 * (10 * i + nt)
def TA(par, nt): return (184 if par == 0 else 16) + 4 * nt
def TB_(u, i): return 12 * u + 4 * i
def TOWN(u, i): return 96 + 12 * u + 4 * i

NST = 12
def stamp(s, cfg, n):
    if cfg.stamps:
        s("s_memrealtime s[98:99]")
        s("s_waitcnt lgkmcnt(0)")
        s(f"v_writelane_b32 v15, s98, {n}")

def spread(gaps, items, lo, hi, cap=2):
    n = len(items)
    last = lo
    for k, it in enumerate(items):
        g = max(lo + (k * (hi - lo)) // n, last)
        while len(gaps.get(g, [])) + len(it) > cap: g += 1
        gaps.setdefault(g, []).extend(it)
        last = g

def dma_chain(dl):
    out = []
    for k, x in enumerate(dl):
        if k == 0: out.append([x[0]])
        nxt = [dl[k+1][0]] if k + 1 < len(dl) else []
        out.append([x[1]] + nxt)
    return out

def gen(cfg):
    R6 = range(6)
    pro = Stream(); s = pro
    s("s_cmp_ge_u32 s2, 256")
    s("s_cbranch_scc1 L_END")
    s("s_load_dwordx16 s[16:31], s[0:1], 0")
    s("s_load_dwordx8 s[32:39], s[0:1], 64")
    s("s_load_dwordx2 s[40:41], s[0:1], 96")
    s("s_memrealtime s[96:97]")
    s("v_lshrrev_b32 v17, 6, v0")
    s("v_and_b32 v1, 63, v0")
    s("s_and_b32 s4, s2, 7")
    s("s_lshr_b32 s5, s2, 3")
    s("v_readfirstlane_b32 s60, v17")
    s("s_lshr_b32 s61, s4, 2")
    s("s_and_b32 s4, s4, 3")
    s("s_lshl_b32 s63, s4, 2")
    s("s_and_b32 s6, s5, 3")
    s("s_add_u32 s63, s63, s6")
    s("s_lshr_b32 s62, s5, 2")
    s("s_lshl_b32 s7, s61, 3")
    s("s_add_u32 s7, s7, s62")
    s("s_and_b32 s8, s60, 1")
    s("s_lshr_b32 s9, s60, 1")
    s("v_lshrrev_b32 v18, 4, v1")
    s("v_and_b32 v19, 15, v1")
    s("v_lshrrev_b32 v22, 3, v1")
    s("v_lshlrev_b32 v23, 1, v18")
    s("v_and_b32 v24, 7, v1")
    s("v_xor_b32 v23, v23, v24")
    s("v_mul_u32_u24 v22, 1280, v22")
    s("v_lshl_add_u32 v4, v23, 4, v22")
    s("s_mul_i32 s10, s60, 61440")
    s("v_add_u32 v4, s10, v4")
    for t in range(1, 6): s(f"v_add_u32 v{4+t}, {10240*t}, v4")
    s("v_lshrrev_b32 v22, 1, v18")
    s("v_lshlrev_b32 v22, 2, v22")
    s("v_and_b32 v23, 1, v18")
    s("v_lshl_add_u32 v22, v23, 4, v22")
    s("v_lshlrev_b32 v22, 13, v22")
    s("v_lshl_add_u32 v10, v19, 4, v22")
    s("s_lshl_b32 s10, s8, 16")
    s("s_lshl_b32 s11, s9, 8")
    s("s_add_u32 s10, s10, s11")
    s("v_add_u32 v10, s10, v10")
    for t in range(1, 4): s(f"v_add_u32 v{10+t}, {8192*t}, v10")
    s(f"s_mul_i32 s10, s9, {SUB}")
    s(f"s_mul_i32 s11, s8, {CH}")
    s("s_add_u32 s69, s10, s11")
    s("s_mul_i32 s70, s60, 6144")
    if cfg.qrot:
        s("s_lshl_b32 s10, s6, 1")
        s("s_add_u32 s10, s10, s62")
        s("s_mul_i32 s10, s10, 5")
        s("s_lshr_b32 s10, s10, 2")
        s("s_sub_u32 s11, s10, 10")
        s("s_cmp_ge_u32 s10, 10")
        s("s_cselect_b32 s10, s11, s10")
        s("s_lshl_b32 s64, s10, 7")
        s("s_lshl_b32 s65, s10, 19")
    else:
        s("s_mov_b32 s64, 0")
        s("s_mov_b32 s65, 0")
    s("s_waitcnt lgkmcnt(0)")
    if cfg.stamps:
        s("v_mov_b32 v15, 0")
        s("s_nop 0")
        s("v_writelane_b32 v15, s96, 0")
    s("s_or_b32 s10, s63, s60")
    s("s_cmp_lg_u32 s10, 0")
    s("s_cbranch_scc1 L_NOLEAD")
    s("s_lshl_b32 s10, s7, 3")
    s("s_or_b32 s96, s96, 1")
    s("v_mov_b32 v22, s10")
    s("v_mov_b32 v24, s96")
    s("v_mov_b32 v25, s97")
    s("global_store_dwordx2 v22, v[24:25], s[38:39] sc1")
    s("L_NOLEAD:")
    s("s_cmp_eq_u32 s61, 0")
    s("s_cselect_b64 s[44:45], s[16:17], s[26:27]")
    s("s_cselect_b64 s[48:49], s[22:23], s[32:33]")
    s("s_cselect_b64 s[12:13], s[18:19], s[28:29]")
    s("s_cselect_b64 s[14:15], s[20:21], s[30:31]")
    s("s_cselect_b64 s[84:85], s[24:25], s[34:35]")
    s("s_mul_i32 s10, s62, 245760")
    s("s_add_u32 s44, s44, s10")
    s("s_addc_u32 s45, s45, 0")
    s("s_and_b32 s45, s45, 0xffff")
    s("s_mov_b32 s46, 245760")
    s("s_mov_b32 s47, 0x20000")
    s("s_lshl_b32 s10, s63, 9")
    s("s_add_u32 s48, s48, s10")
    s("s_addc_u32 s49, s49, 0")
    s("s_and_b32 s49, s49, 0xffff")
    s("s_sub_u32 s50, 5242880, s10")
    s("s_mov_b32 s51, 0x20000")
    XADV = ["s_add_u32 s64, s64, 128", "s_cmp_eq_u32 s64, 1280", "s_cselect_b32 s64, 0, s64"]
    WADV = ["s_add_u32 s65, s65, 262144", "s_cmp_eq_u32 s65, 5242880", "s_cselect_b32 s65, 0, s65"]
    def xdma(sreg, base, ts):
        return [(f"s_add_u32 m0, {sreg}, {base + 1024*t}", f"buffer_load_dwordx4 v{4+t}, s[44:47], s64 offen {cfg.nt_xw} lds") for t in ts]
    def wdma(sreg, base):
        return [(f"s_add_u32 m0, {sreg}, {base + 2*CH*r}", f"buffer_load_dwordx4 v{10+r}, s[48:51], s65 offen {cfg.nt_xw} lds") for r in range(4)]
    for st in range(2):
        for grp in dma_chain(xdma("s70", XSL[st], range(6)) + wdma("s69", WSL[st])):
            for t in grp: s(t)
        for t in XADV + WADV: s(t)
    s("v_lshlrev_b32 v0, 4, v1")
    s("v_and_b32 v20, 3, v1")
    s("v_bfe_u32 v21, v1, 2, 2")
    s("v_and_b32 v22, 1, v18")
    s("v_lshl_add_u32 v22, v21, 1, v22")
    s(f"v_mul_u32_u24 v22, {CH}, v22")
    s("v_lshrrev_b32 v23, 1, v18")
    s("v_lshl_add_u32 v22, v23, 8, v22")
    s("v_lshl_add_u32 v26, v20, 3, v22")
    s("v_xor_b32 v24, 2, v20")
    s("v_lshl_add_u32 v27, v24, 3, v22")
    s("v_and_b32 v22, 1, v21")
    s("v_lshl_add_u32 v22, v20, 1, v22")
    s(f"v_mul_u32_u24 v22, {CH}, v22")
    s("v_lshrrev_b32 v23, 1, v21")
    s("v_lshl_add_u32 v22, v23, 8, v22")
    s("v_lshlrev_b32 v23, 1, v18")
    s("v_mov_b32 v24, 0x9c")
    s("v_lshrrev_b32 v23, v23, v24")
    s("v_and_b32 v23, 3, v23")
    s("v_lshl_add_u32 v2, v23, 4, v22")
    s("v_and_b32 v22, 6, v19")
    s("v_xor_b32 v22, v22, v18")
    s("v_lshlrev_b32 v22, 4, v22")
    s("v_lshl_add_u32 v28, v19, 7, v22")
    s("s_mul_i32 s10, s8, 12288")
    s("v_add_u32 v28, s10, v28")
    s("v_xor_b32 v29, 64, v28")
    s(f"s_mul_i32 s10, s9, {2*SUB}")
    s("v_add_u32 v2, s10, v2")
    s(f"s_add_u32 s10, s10, {SUB}")
    s("v_add_u32 v3, s10, v26")
    s(f"s_mul_i32 s10, s9, {SUB}")
    s("v_add_u32 v26, s10, v26")
    s("v_add_u32 v27, s10, v27")
    s(f"s_mul_i32 s75, s60, {SUB}")
    s("s_cmp_eq_u32 s8, 0")
    s("s_cselect_b64 s[52:53], s[12:13], s[14:15]")
    s("s_lshl_b32 s10, s62, 5")
    s("s_lshl_b32 s11, s63, 1")
    s("s_add_u32 s11, s11, s9")
    s("s_add_u32 s10, s10, s11")
    s("s_lshl_b32 s10, s10, 18")
    s("s_add_u32 s52, s52, s10")
    s("s_addc_u32 s53, s53, 0")
    s("s_and_b32 s53, s53, 0xffff")
    s("s_mov_b32 s54, 262144")
    s("s_mov_b32 s55, 0x20000")
    s("s_mul_i32 s10, s7, 12")
    s("s_mul_i32 s12, s8, 6")
    s("s_add_u32 s10, s10, s12")
    s("s_lshl_b32 s10, s10, 17")
    s("s_lshl_b32 s11, s11, 12")
    s("s_add_u32 s10, s10, s11")
    s("s_add_u32 s56, s40, s10")
    s("s_addc_u32 s57, s41, 0")
    s("s_and_b32 s57, s57, 0xffff")
    s(f"s_mov_b32 s58, {5*131072 + 4096}")
    s("s_mov_b32 s59, 0x20000")
    s(f"s_mul_i32 s10, s4, {1024*1280}")
    s("s_add_u32 s92, s84, s10")
    s("s_addc_u32 s93, s85, 0")
    s("s_and_b32 s93, s93, 0xffff")
    s(f"s_mov_b32 s94, {1024*1280}")
    s("s_mov_b32 s95, 0x20000")
    s("s_mul_i32 s11, s6, 320")
    s("s_add_u32 s10, s10, s11")
    s("s_add_u32 s84, s84, s10")
    s("s_addc_u32 s85, s85, 0")
    s("s_and_b32 s85, s85, 0xffff")
    s("s_sub_u32 s86, 5242880, s10")
    s("s_mov_b32 s87, 0x20000")
    s("s_mul_i32 s10, s7, 12")
    s("s_mul_i32 s11, s60, 3")
    s("s_add_u32 s10, s10, s11")
    s("s_lshl_b32 s10, s10, 17")
    s("s_lshl_b32 s11, s4, 15")
    s("s_add_u32 s10, s10, s11")
    s("s_add_u32 s88, s40, s10")
    s("s_addc_u32 s89, s41, 0")
    s("s_and_b32 s89, s89, 0xffff")
    s(f"s_mov_b32 s90, {2*131072 + 32768}")
    s("s_mov_b32 s91, 0x20000")
    s(f"s_mov_b32 s76, {f32bits(SCALE):#x}")
    s(f"s_mov_b32 s77, {f32bits(SCALE):#x}")
    s("s_mov_b32 s78, 0")
    s("s_lshl_b32 s71, s5, 13" if cfg.rot else "s_mov_b32 s71, 0")
    s("s_add_u32 s72, s71, 4096")
    for r, v in zip((80, 81, 82), WSL): s(f"s_mov_b32 s{r}, {v}")
    for r, v in zip((66, 67, 83), XSL): s(f"s_mov_b32 s{r}, {v}")
    for r in range(O0, 256): s(f"v_mov_b32 v{r}, 0")
    s("v_mov_b32 v17, 0x3f803f80")
    for r in range(4): s(f"v_accvgpr_write_b32 a{ONES+r}, v17")
    s("v_add_u32 v14, s66, v28")
    s("v_add_u32 v30, s80, v26")
    s("v_add_u32 v31, s80, v27")
    s("s_add_u32 s73, s82, s69")
    s("s_add_u32 s74, s83, s70")
    s("s_waitcnt vmcnt(10)")
    stamp(s, cfg, 1)
    pro.ins = pad_hazards(pro.ins)

    def kvdma(m0base_sreg, base):
        return [(f"s_add_u32 m0, {m0base_sreg}, {base + CH*c - 1024*(c&3)}",
                 f"buffer_load_dwordx4 v0, s[52:55], s{71 + (c>>2)} offen offset:{1024*(c&3)} {cfg.nt_kv} lds") for c in range(8)]
    kvadv = ["s_add_u32 s71, s71, 8192", "s_and_b32 s71, s71, 0x3ffff", "s_add_u32 s72, s71, 4096"]

    def qper(par, dmas, post, endwait, reads=True, mf=True, need=None):
        mfl = []
        if mf:
            for dt in range(8):
                for i in range(6):
                    a = OACC(i, dt)
                    mfl.append(f"{MF} {vr(a)}, {ar(QA(par^1, dt))}, {ar(QB(par^1, i))}, {vr(a)}")
        rl = []
        if reads:
            for i in range(6):
                rl.append([f"ds_read_b128 {ar(QB(par, i))}, v14 offset:{2048*i}"])
            for dt in range(8):
                for w in range(2):
                    rl.append([f"ds_read_b64_tr_b16 {ar(QA(par, dt) + 2*w, 2)}, v{30 + (dt & 1)} offset:{512*w + 32*dt}"])
        gaps = {}
        dch = dma_chain(list(dmas or []))
        if dch: spread(gaps, dch, 0, 38, cap=3)
        if rl: spread(gaps, rl, 0, 34)
        assert not gaps or max(gaps) < 38
        for n, t in enumerate(post):
            gaps.setdefault(38 + n // 2, []).append(t)
        s = Stream()
        s("s_barrier", need if need is not None else ("s[48:51]:4 s[44:47]:6" if par == 0 else "s[48:51]:4 s[44:47]:9"))
        if mf:
            assert max(gaps) <= 47, max(gaps)
            s.extend(interleave(mfl, gaps))
        else:
            for k in sorted(gaps):
                for t in gaps[k]: s(t)
        if endwait: s(endwait)
        return s
    def upd(par, dma=True):
        l = []
        if dma: l += WADV + ["s_add_u32 s73, s80, s69"]
        l += ["s_mov_b32 s10, s80", "s_mov_b32 s80, s81", "s_mov_b32 s81, s82", "s_mov_b32 s82, s10",
              "v_add_u32 v30, s80, v26", "v_add_u32 v31, s80, v27"]
        if par == 0:
            l += ["v_add_u32 v14, s66, v29"]
        else:
            if dma: l += XADV + ["s_add_u32 s74, s66, s70"]
            l += ["s_mov_b32 s10, s66", "s_mov_b32 s66, s67", "s_mov_b32 s67, s83", "s_mov_b32 s83, s10"]
            l.append("v_add_u32 v14, s66, v28")
        return l
    W7 = "s_waitcnt vmcnt(7) lgkmcnt(0)"
    def qd(par): return xdma("s74", 0, range(3*par, 3*par+3)) + wdma("s73", 0)
    q0 = qper(0, qd(0), upd(0) + ["s_mov_b32 s68, 6"], W7, mf=False)
    q0.ins = pad_hazards(q0.ins)
    qloop = Stream()
    qloop("L_QLOOP:")
    qloop.extend(qper(1, qd(1), upd(1), W7))
    qloop.extend(qper(0, qd(0), upd(0), W7))
    qloop("s_sub_u32 s68, s68, 1")
    qloop("s_cbranch_scc0 L_QLOOP")
    kv0 = kvdma("s75", 0)
    wov = ["s_mul_i32 s10, s60, 320", "v_add_u32 v9, s10, v1"]
    for t in range(5):
        wov += [f"v_add_u32 v22, {64*t}, v9",
                "v_mul_u32_u24 v23, 3277, v22",
                "v_lshrrev_b32 v23, 16, v23",
                "v_mul_u32_u24 v24, 20, v23",
                "v_sub_u32 v24, v22, v24",
                "v_bfe_u32 v22, v23, 2, 1",
                "v_lshlrev_b32 v22, 1, v22",
                "v_xor_b32 v24, v24, v22",
                "v_mul_u32_u24 v23, 1280, v23",
                f"v_lshl_add_u32 v{4+t}, v24, 4, v23"]
    qtail = Stream()
    qtail.extend(qper(1, qd(1), upd(1), W7))
    qtail.extend(qper(0, wdma("s73", 0) + kv0[:4], upd(0), "s_waitcnt vmcnt(8) lgkmcnt(0)"))
    qtail.extend(qper(1, wdma("s73", 0) + kv0[4:], upd(1, False) + kvadv, "s_waitcnt vmcnt(12) lgkmcnt(0)", need="s[48:51]:4 s[44:47]:6"))
    qtail.extend(qper(0, kvdma("s75", SLOT), upd(0, False) + kvadv, "s_waitcnt vmcnt(12) lgkmcnt(0)", need="s[48:51]:4 s[44:47]:0"))
    qtail.extend(qper(1, kvdma("s75", 2*SLOT), kvadv + wov[:16], "s_waitcnt lgkmcnt(0)", need="s[48:51]:0 s[44:47]:0"))
    qtail.extend(qper(0, kvdma("s75", 3*SLOT), kvadv + wov[16:32], None, reads=False))
    stamp(qtail, cfg, 2)
    qe = Stream()
    for t in wov[32:]: qe(t)
    frs = [(i, kk) for i in range(6) for kk in range(4)]
    for n in range(0, 24, 4):
        grp = frs[n:n+4]
        for (i, kk) in grp:
            b = OACC(i, 2*kk)
            for p in range(4): qe(f"v_pk_mul_f32 {vr(b+2*p,2)}, {vr(b+2*p,2)}, s[76:77]")
        for (i, kk) in grp:
            b = OACC(i, 2*kk)
            for p in range(4): qe(f"v_cvt_pk_bf16_f32 v{b+p}, v{b+2*p}, v{b+2*p+1}")
        for (i, kk) in grp:
            b = OACC(i, 2*kk)
            qe(f"v_permlane16_swap_b32 v{b}, v{b+2}")
            qe(f"v_permlane16_swap_b32 v{b+1}, v{b+3}")
        for (i, kk) in grp:
            b = OACC(i, 2*kk)
            for p in range(4): qe(f"v_accvgpr_write_b32 a{QF(i,kk)+p}, v{b+p}")
    qe("v_lshrrev_b32 v22, 2, v1")
    qe("v_mul_u32_u24 v23, 320, v22")
    qe("v_lshl_add_u32 v23, v20, 3, v23")
    qe("v_bfe_u32 v22, v1, 4, 1")
    qe("v_lshl_add_u32 v9, v22, 5, v23")
    qe("v_xor_b32 v22, 1, v22")
    qe("v_lshl_add_u32 v10, v22, 5, v23")
    qe("v_add_u32 v11, 131072, v0")
    qe("v_add_u32 v12, 262144, v0")
    qe("s_mul_i32 s64, s6, 327680")
    qe("s_mul_i32 s70, s60, 5120")
    qe.ins = pad_hazards(qe.ins, qtail.ins[-16:])

    def wodma(sreg, base):
        return [(f"s_add_u32 m0, {sreg}, {base + 1024*t}", f"buffer_load_dwordx4 v{4+t}, s[84:87], s64 offen {cfg.nt_wo} lds") for t in range(5)]
    WOADV = ["s_add_u32 s64, s64, 81920", "s_cmp_eq_u32 s64, 1310720", "s_cselect_b32 s64, 0, s64"]

    def kreads(par, off):
        return [f"ds_read_b128 {ar(KF(par, f))}, v2 offset:{off + 512*(f>>2) + 64*(f&3)}" for f in range(8)]
    def vreads(par, off):
        return [f"ds_read_b64_tr_b16 {ar(VF(par, dt) + 2*w, 2)}, v3 offset:{off + 512*w + 32*dt}" for dt in range(8) for w in range(2)]
    st = Stream()
    st("L_KVSTART:")
    st("s_mov_b32 s73, s75")
    st(f"s_mov_b32 s74, {2*SLOT}")
    st("s_mov_b32 s68, 14")
    st("s_waitcnt vmcnt(24)")
    st("s_barrier", "s[52:55]:24")
    for t in kreads(0, 0): st(t)
    for t in vreads(0, 0): st(t)
    st("s_cmp_lg_u32 s78, 0")
    st("s_cbranch_scc1 L_REDUCE")
    st("s_waitcnt lgkmcnt(15)")
    mref = Stream()
    for kk in range(4):
        for i in range(6):
            c = "0" if kk == 0 else vr(NEGM(i))
            mref(f"{MF} {vr(NEGM(i))}, {ar(KF(0, kk))}, {ar(QF(i, kk))}, {c}")
    mref("s_nop 7")
    red = Stream()
    red("L_REDUCE:")
    for i in R6: red(f"v_max3_f32 v{NEGM(i)}, v{NEGM(i)}, v{NEGM(i)+1}, v{NEGM(i)+2}")
    for i in R6: red(f"v_max_f32 v{NEGM(i)}, v{NEGM(i)}, v{NEGM(i)+3}")
    for op in ("v_permlane16_swap_b32", "v_permlane32_swap_b32"):
        for i in R6: red(f"v_mov_b32 v{NEGM(i)+1}, v{NEGM(i)}")
        for i in R6: red(f"{op} v{NEGM(i)}, v{NEGM(i)+1}")
        for i in R6: red(f"v_max_f32 v{NEGM(i)}, v{NEGM(i)}, v{NEGM(i)+1}")
    for i in R6:
        for r in (3, 2, 1, 0): red(f"v_sub_f32 v{NEGM(i)+r}, 0, v{NEGM(i)}")
    red("s_waitcnt vmcnt(16) lgkmcnt(0)")
    stamp(red, cfg, 3)

    def E(u, r):
        x = SREG(u & 1, r >> 2) + (r & 3)
        return f"v_exp_f32 v{x}, v{x}"
    def C(u, c):
        x = SREG(u & 1, 0) + 2 * c
        return f"v_cvt_pk_bf16_f32 v{PREG(u & 1) + c}, v{x}, v{x+1}"
    def QK(u, j):
        i = u % 6; l = []
        for kt in range(2):
            for kk in range(4):
                d = vr(SREG(u & 1, kt))
                c = vr(NEGM(i)) if kk == 0 else d
                l.append(f"{MF} {d}, {ar(KF(j & 1, 4*kt + kk))}, {ar(QF(i, kk))}, {c}")
        return l
    def PV(u):
        if u < 0: return [None] * 9
        i = u % 6; j = u // 6; l = []
        for dt in range(8):
            d = vr(OACC(i, dt))
            l.append(f"{MF} {d}, {ar(VF(j & 1, dt))}, {vr(PREG(u & 1))}, {'0' if j == 0 else d}")
        d = ar(LACC(i))
        l.append(f"{MF} {d}, {ar(ONES)}, {vr(PREG(u & 1))}, {'0' if j == 0 else d}")
        return l

    def window(j, head=(), endw=None):
        par = j & 1
        mfl = []; gaps = {}
        def put(i, k, t): gaps.setdefault(17*i + k, []).append(t)
        for i in range(6):
            u = 6*j + i
            mfl += QK(u, j) + PV(u - 2)
            for n, k in enumerate((9, 11, 13, 15)): put(i, k, E(u, n))
            if u >= 1:
                for n, k in enumerate((0, 2, 4, 6)): put(i, k, E(u-1, 4+n))
                put(i, 1, C(u-1, 0)); put(i, 1, C(u-1, 1)); put(i, 5, C(u-1, 2)); put(i, 8, C(u-1, 3))
        off = SLOT if par == 0 else 0
        kr = kreads(par ^ 1, off); vrd = vreads(par ^ 1, off)
        for t in head: put(0, 3, t)
        kpos = [(0, 7), (0, 12), (1, 3), (1, 7)]
        for n, (i, k) in enumerate(kpos):
            put(i, k, kr[2*n]); put(i, k, kr[2*n+1])
        dl = kvdma("s73", SLOT * par)
        put(0, 8, dl[0][0])
        dpos = [(0, 10), (0, 16), (1, 12), (2, 10), (3, 10), (3, 16), (4, 12), (5, 10)]
        for c, (i, k) in enumerate(dpos):
            put(i, k, dl[c][1])
            if c < 7: put(i, k, dl[c+1][0])
        vpos = [(i, k) for i in (2, 3, 4, 5) for k in (3, 7)]
        for n, (i, k) in enumerate(vpos):
            put(i, k, vrd[2*n]); put(i, k, vrd[2*n+1])
        put(5, 12, kvadv[0]); put(5, 12, kvadv[1]); put(5, 14, kvadv[2])
        if par == 0:
            put(2, 12, "v_add_u32 v2, s74, v2")
            put(5, 14, "v_add_u32 v3, s74, v3")
        else:
            put(5, 10, "s_add_u32 s73, s73, s74")
            put(5, 14, "s_sub_u32 s74, 0, s74")
        s = Stream()
        s("s_barrier", "s[52:55]:16")
        s.extend(interleave(mfl, gaps))
        s(endw or f"s_waitcnt vmcnt({cfg.kvw}) lgkmcnt(0)")
        return s
    w0 = Stream()
    wo0 = []
    for m, d in wodma("s70", WOR[0]): wo0 += [m, "s_nop 0", d]
    if cfg.local_o:
        red("s_cmp_lg_u32 s60, 0")
        red("s_cbranch_scc1 L_NOXCC")
        red("s_getreg_b32 s10, hwreg(HW_REG_XCC_ID, 0, 4)")
        red("s_and_b32 s10, s10, 7")
        red("s_or_b32 s10, s10, 8")
        red("s_and_b32 s11, s4, 1")
        red("s_lshl_b32 s11, s11, 2")
        red("s_add_u32 s11, s11, s6")
        red("s_lshl_b32 s11, s11, 2")
        red("s_lshl_b32 s10, s10, s11")
        red("s_lshl_b32 s11, s7, 3")
        red("s_lshr_b32 s12, s4, 1")
        red("s_lshl_b32 s12, s12, 2")
        red("s_add_u32 s11, s11, s12")
        red("v_mov_b32 v16, s11")
        red("v_mov_b32 v17, s10")
        red("s_mov_b64 exec, 1")
        red("global_atomic_or v16, v17, s[38:39] offset:128 sc1")
        red("s_mov_b64 exec, -1")
        red("L_NOXCC:")
    w0.extend(window(0, head=["s_mul_i32 s64, s6, 327680"] + wo0 + WOADV, endw="s_waitcnt vmcnt(16) lgkmcnt(0)"))
    w0.extend(window(1, endw="s_waitcnt vmcnt(8) lgkmcnt(0)"))
    w0.ins = pad_hazards(w0.ins, red.ins[-16:])
    loop = Stream()
    loop("L_LOOP:")
    if cfg.warm_wo:
        loop("s_cmp_lg_u32 s68, 1")
        loop("s_cbranch_scc1 L_NOWARM")
        loop("s_lshl_b32 s10, s5, 2")
        loop("s_add_u32 s10, s10, s60")
        loop("s_mul_i32 s10, s10, 10240")
        loop("v_mul_u32_u24 v13, 160, v1")
        loop("buffer_load_dword v14, v13, s[92:95], s10 offen")
        loop("buffer_load_dword v14, v13, s[92:95], s10 offen offset:80")
        loop("L_NOWARM:")
    loop.extend(window(2, head=["s_cmp_lt_u32 s68, 2", "s_cselect_b32 s54, 0, s54", "s_cselect_b32 s73, 0x30000, s73"])); loop.extend(window(3))
    loop("s_sub_u32 s68, s68, 1")
    loop("s_cbranch_scc0 L_LOOP")
    tail = Stream()
    U = 6*4 - 1
    tg = {0: [E(U,4)], 1: [C(U,0), C(U,1)], 2: [E(U,5)], 3: [E(U,6)], 4: [C(U,2)], 5: [E(U,7)], 7: [C(U,3)]}
    d1 = dma_chain(wodma("s70", WOR[1]))
    for n, grp in enumerate(d1): tg.setdefault(8 + n, []).extend(grp)
    tg[14] = ["s_lshl_b32 s10, s7, 3", "v_mov_b32 v13, s10"]
    tg[15] = WOADV
    tg[16] = ["global_load_dwordx2 v[56:57], v13, s[38:39] sc1"]
    if cfg.local_o: tg[17] = ["global_load_dwordx2 v[62:63], v13, s[38:39] offset:128 sc1"]
    tail.extend(interleave(PV(U-1) + PV(U), tg))
    stamp(tail, cfg, 4)
    tail.ins = pad_hazards(tail.ins, loop.ins[-16:])
    ep = Stream()
    for i in R6: ep(f"v_accvgpr_read_b32 v{16+2*i}, a{LACC(i)}")
    ep(f"s_mov_b32 s10, {f32bits(THR if not cfg.force_fb else 1.0):#x}")
    ep("s_mov_b64 s[12:13], 0")
    for i in R6:
        ep(f"v_cmp_nge_f32 vcc, s10, v{16+2*i}")
        ep("s_nop 1")
        ep("s_or_b64 s[12:13], s[12:13], vcc")
    for i in R6: ep(f"v_rcp_f32 v{16+2*i}, v{16+2*i}")
    ep("s_mov_b32 s11, 0")
    ep("s_mul_i32 s10, s9, 49152")
    ep("s_mul_i32 s14, s8, 6144")
    ep("s_add_u32 s10, s10, s14")
    ep("v_add_u32 v30, s10, v0")
    for i in R6:
        for p in range(16):
            b = OACC(i, 0) + 2*p
            ep(f"v_pk_mul_f32 {vr(b,2)}, {vr(b,2)}, {vr(16+2*i,2)} op_sel_hi:[1,0]")
        for dtp in range(4):
            b = OACC(i, 2*dtp)
            for p in range(4): ep(f"v_cvt_pk_bf16_f32 v{b+p}, v{b+2*p}, v{b+2*p+1}")
            ep(f"buffer_store_dwordx4 {vr(b)}, v0, s[56:59], s11 offen offset:{1024*dtp} {'' if cfg.local_o else 'sc1'}")
            ep(f"ds_write_b128 v30, {vr(b)} offset:{12288*dtp + 1024*i}")
        if i < 5: ep("s_add_u32 s11, s11, 131072")
    ep("s_cmp_lg_u64 s[12:13], 0")
    ep("s_cselect_b32 s10, 1, 0")
    ep("v_mov_b32 v16, s10")
    ep("s_lshl_b32 s10, s60, 2")
    ep(f"s_add_u32 s10, s10, {FLAG_OFF}")
    ep("v_mov_b32 v17, s10")
    ep(f"v_mov_b32 v18, {FLAG_OFF}")
    ep("ds_write_b32 v17, v16")
    ep("s_lshl_b32 s10, s7, 4")
    ep("s_add_u32 s11, s10, s63")
    ep("s_lshl_b32 s11, s11, 2")
    ep("s_add_u32 s11, s11, s60")
    ep("s_lshl_b32 s11, s11, 6")
    ep(f"s_add_u32 s11, s11, {F_OFF}")
    ep("v_mov_b32 v58, s11")
    ep("v_add_u32 v60, 65536, v58")
    ep("s_lshl_b32 s11, s4, 2")
    ep("s_add_u32 s11, s11, s10")
    ep("s_lshl_b32 s11, s11, 2")
    ep("s_add_u32 s11, s11, s9")
    ep("s_lshl_b32 s11, s11, 6")
    ep(f"s_add_u32 s11, s11, {F_OFF}")
    ep("v_and_b32 v59, 7, v1")
    ep("v_lshlrev_b32 v59, 7, v59")
    ep("v_add_u32 v59, s11, v59")
    ep("s_add_u32 s11, s10, s6")
    ep("s_lshl_b32 s11, s11, 2")
    ep("s_add_u32 s11, s11, s4")
    ep("s_lshl_b32 s11, s11, 6")
    ep(f"s_add_u32 s11, s11, {F_OFF + 65536}")
    ep("v_and_b32 v61, 3, v1")
    ep("v_lshlrev_b32 v61, 10, v61")
    ep("v_add_u32 v61, s11, v61")
    if cfg.local_o:
        ep("s_waitcnt vmcnt(24)")
        ep("v_readfirstlane_b32 s14, v62")
        ep("v_readfirstlane_b32 s15, v63")
        ep("s_lshl_b32 s10, s4, 4")
        ep("s_lshr_b64 s[14:15], s[14:15], s10")
        ep("s_and_b32 s14, s14, 0xffff")
        ep("s_and_b32 s15, s14, 15")
        ep("s_mul_i32 s15, s15, 0x1111")
        ep("s_xor_b32 s15, s15, s14")
        ep("s_andn2_b32 s14, 8, s14")
        ep("s_or_b32 s67, s14, s15")
        if cfg.force_remote: ep("s_mov_b32 s67, 1")
    ep("s_mul_i32 s10, s60, 3072")
    ep("v_add_u32 v62, s10, v0")
    ep("v_add_u32 v63, 49152, v62")
    ep(f"v_add_u32 v13, {WOR[0]}, v9")
    ep(f"v_add_u32 v14, {WOR[0]}, v10")
    ep("s_waitcnt lgkmcnt(0)")
    ep("s_barrier", "s[84:87]:5")
    ep("ds_read_b128 v[20:23], v18")
    def treads(par, half):
        return [f"ds_read_b64_tr_b16 {vr(TA(par, nt) + 2*w, 2)}, v{13 + (nt & 1)} offset:{10240*half + 5120*w + 32*(nt & ~1)}"
                for nt in range(10) for w in range(2)]
    for t in treads(0, 0): ep(t)
    own = [f"ds_read_b128 {ar(TOWN(u, i))}, v{62 + (u >> 2)} offset:{12288*(u & 3) + 1024*i}" for u in range(8) for i in range(3)]
    for t in own[:6]: ep(t)
    ep("s_waitcnt lgkmcnt(15)")
    ep("v_or_b32 v20, v20, v21")
    ep("v_or3_b32 v20, v20, v22, v23")
    ep("v_readfirstlane_b32 s10, v20")
    ep("s_andn2_b32 s10, s10, s78")
    ep("s_cmp_lg_u32 s10, 0")
    ep("s_cbranch_scc1 L_FALLBACK")
    stamp(ep, cfg, 5)
    ep("s_waitcnt vmcnt(0)")
    ep(f"s_mov_b32 s79, {SPIN_MAX}")
    ep("L_TAG:")
    ep("v_readfirstlane_b32 s10, v56")
    ep("s_cmp_lg_u32 s10, 0")
    ep("s_cbranch_scc1 L_TAGOK")
    ep("s_lshl_b32 s10, s7, 3")
    ep("v_mov_b32 v20, s10")
    ep("s_sleep 2")
    ep("global_load_dwordx2 v[56:57], v20, s[38:39] sc1")
    ep("s_sub_u32 s79, s79, 1")
    ep("s_waitcnt vmcnt(0)")
    ep("s_cbranch_scc0 L_TAG")
    ep("L_TAGOK:")
    if cfg.local_o:
        ep("s_cmp_eq_u32 s67, 0")
        ep("s_cbranch_scc1 L_LOCAL")
        ep("buffer_wbl2 sc1")
        ep("s_waitcnt vmcnt(0)")
        ep("L_LOCAL:")
    ep("global_store_dwordx2 v58, v[56:57], s[40:41] sc1")
    for grp in dma_chain(wodma("s70", WOR[2])):
        for t in grp: ep(t)
    for t in WOADV: ep(t)
    for r, v in zip((80, 81, 82), WOR): ep(f"s_mov_b32 s{r}, {v}")
    ep("s_add_u32 s65, s6, 1")
    ep("s_and_b32 s65, s65, 3")
    ep("s_lshl_b32 s65, s65, 13")
    ep("s_add_u32 s66, s65, 4096")
    ep("s_waitcnt lgkmcnt(0)")
    stamp(ep, cfg, 6)
    ep.ins = pad_hazards(ep.ins, tail.ins[-16:])

    def poll(s, lbl, vaddr, first_issued):
        s(f"s_mov_b32 s79, {SPIN_MAX}")
        if first_issued: s(f"s_branch {lbl}_C")
        s(f"{lbl}:")
        s(f"global_load_dwordx2 v[224:225], {vaddr}, s[40:41] sc1")
        s(f"{lbl}_C:")
        s("s_waitcnt vmcnt(0)")
        s("v_cmp_ne_u64 vcc, v[224:225], v[56:57]")
        s("s_sub_u32 s79, s79, 1")
        s(f"s_cbranch_scc1 {lbl}_OK")
        s("s_cmp_lg_u64 vcc, 0")
        s(f"s_cbranch_scc1 {lbl}")
        s(f"{lbl}_OK:")
    def oloads(u):
        return [[f"buffer_load_dwordx4 {ar(TB_(u, i))}, v{(0, 11, 12)[i]}, s[88:91], s{65 + (u >> 2)} offen offset:{1024*(u & 3)} sc1"] for i in range(3)]
    OADV = ["s_add_u32 s65, s65, 8192", "s_and_b32 s65, s65, 0x7fff", "s_add_u32 s66, s65, 4096"]
    def tper(u, first, extra=(), vm=None, pre=()):
        par = u & 1
        mfl = []
        for nt in range(10):
            for i in range(3):
                a = vr(TACC(i, nt))
                b = ar(TOWN(u, i)) if first else ar(TB_(u, i))
                mfl.append(f"{MF} {a}, {vr(TA(par, nt))}, {b}, {'0' if (first and u == 0) else a}")
        gaps = {}
        s = Stream()
        vm_items = []
        if par == 1:
            s("s_barrier", "s[84:87]:5")
            vm_items += dma_chain(wodma("s73", 0))
        vm_items += list(extra)
        for n, t in enumerate(pre): gaps.setdefault(0, []).append(t)
        if vm_items: spread(gaps, vm_items, 1 if pre else 0, 25, cap=2)
        spread(gaps, [[t] for t in treads(par ^ 1, par ^ 1)], 0, 22, cap=2)
        post = []
        if par == 1: post += WOADV
        else:
            post += ["s_add_u32 s73, s80, s70", "s_mov_b32 s10, s80", "s_mov_b32 s80, s81", "s_mov_b32 s81, s82", "s_mov_b32 s82, s10",
                     "v_add_u32 v13, s80, v9", "v_add_u32 v14, s80, v10"]
        g0 = max(max(gaps) + 1, 26)
        assert g0 <= 28, g0
        for n, t in enumerate(post): gaps.setdefault(min(29, g0 + n // 2), []).append(t)
        s.extend(interleave(mfl, gaps))
        s(f"s_waitcnt vmcnt({vm}) lgkmcnt(0)" if vm is not None else "s_waitcnt lgkmcnt(0)")
        return s
    t0 = Stream()
    allo = [x for u in range(7) for x in oloads(u)]
    npost = 8 - cfg.pollp
    chunks = [allo[(k*len(allo))//min(npost, 4):((k+1)*len(allo))//min(npost, 4)] for k in range(min(npost, 4))] + [[]] * 8
    vmq = []
    for u in range(8):
        extra = []
        if u < 3: extra += [[t] for t in own[6 + 6*u: 12 + 6*u]]
        if u == cfg.pollp - 1: extra += [["global_load_dwordx2 v[224:225], v59, s[40:41] sc1"]]
        if u == cfg.pollp:
            poll(t0, "L_PA", "v59", cfg.pollp > 0); vmq = []
            stamp(t0, cfg, 7)
        if u >= cfg.pollp: extra += chunks[u - cfg.pollp]
        if u & 1: vmq += [("w", (u + 1)//2 + 2)] * 5
        vmq += [("o", 0)] * sum(1 for x in extra if "load" in x[0])
        vm = None
        if u % 2 == 0:
            need = u // 2 + 1
            idx = [k for k, x in enumerate(vmq) if x == ("w", need)]
            vm = (len(vmq) - 1 - idx[-1]) if idx else None
            if need == 2 and not idx and u < cfg.pollp: vm = len(vmq)
        if u == 7:
            lasto = max(k for k, x in enumerate(vmq) if x[0] == "o")
            lasto = max([lasto] + [k for k, x in enumerate(vmq) if x == ("w", 5)])
            vm = len(vmq) - 1 - lasto
        t0.extend(tper(u, True, extra=extra, vm=vm))
    t0("s_mov_b32 s68, 2")
    tl = Stream()
    tl("L_TLOOP:")
    for u in range(8):
        pre = []
        if u == 1: pre = OADV + ["s_cmp_eq_u32 s68, 0", "s_cselect_b32 s90, 0, s90"]
        if u == 3: pre = ["s_cmp_eq_u32 s68, 0", "s_cselect_b32 s86, 0, s86"]
        tl.extend(tper(u, False, extra=oloads((u - 1) & 7), vm=(14 if u % 2 == 0 else None), pre=pre))
    tl("s_sub_u32 s68, s68, 1")
    tl("s_cbranch_scc0 L_TLOOP")
    fin = Stream()
    stamp(fin, cfg, 8)
    fin("s_lshl_b32 s10, s7, 2")
    fin("s_add_u32 s10, s10, s6")
    fin("s_lshl_b32 s10, s10, 2")
    fin("s_add_u32 s11, s10, s60")
    fin("s_lshl_b32 s11, s11, 2")
    fin("s_add_u32 s11, s11, s4")
    fin("s_mul_i32 s11, s11, 30720")
    fin(f"s_add_u32 s11, s11, {P_OFF}")
    fin("s_add_u32 s52, s40, s11")
    fin("s_addc_u32 s53, s41, 0")
    fin("s_and_b32 s53, s53, 0xffff")
    fin("s_mov_b32 s54, 30720")
    fin("s_mov_b32 s11, 0")
    for T in range(30):
        fin(f"buffer_store_dwordx4 {vr(64 + 4*T)}, v0, s[52:55], s11 offen offset:{1024*(T & 3)} sc1")
        if T & 3 == 3: fin("s_add_u32 s11, s11, 4096")
    fin("s_add_u32 s11, s10, s4")
    fin(f"s_mul_i32 s11, s11, {4*30720}")
    fin(f"s_add_u32 s11, s11, {P_OFF}")
    fin("s_add_u32 s56, s40, s11")
    fin("s_addc_u32 s57, s41, 0")
    fin("s_and_b32 s57, s57, 0xffff")
    fin(f"s_mov_b32 s58, {4*30720}")
    fin("s_mul_i32 s10, s62, 192")
    fin("s_mul_i32 s11, s4, 48")
    fin("s_add_u32 s10, s10, s11")
    fin("s_mul_i32 s10, s10, 2560")
    fin("s_mul_i32 s11, s61, 1280")
    fin("s_add_u32 s10, s10, s11")
    fin("s_mul_i32 s11, s6, 320")
    fin("s_add_u32 s10, s10, s11")
    fin("s_add_u32 s44, s36, s10")
    fin("s_addc_u32 s45, s37, 0")
    fin("s_and_b32 s45, s45, 0xffff")
    fin("s_sub_u32 s46, 3932160, s10")
    fin("v_and_b32 v20, 15, v1")
    fin("v_mul_u32_u24 v20, 2560, v20")
    fin("v_bfe_u32 v21, v1, 4, 1")
    fin("v_lshl_add_u32 v20, v21, 5, v20")
    fin("v_lshrrev_b32 v21, 5, v1")
    fin("v_lshl_add_u32 v18, v21, 4, v20")
    fin("s_lshl_b32 s10, s60, 11")
    fin("v_add_u32 v16, s10, v0")
    for k in range(1, 4): fin(f"v_add_u32 v{20+k}, {30720*k}, v16")
    fin("s_waitcnt vmcnt(0)")
    fin("global_store_dwordx2 v60, v[56:57], s[40:41] sc1")
    stamp(fin, cfg, 9)
    poll(fin, "L_PB", "v61", False)
    stamp(fin, cfg, 10)
    fin("s_cmp_eq_u32 s60, 3")
    fin("s_cselect_b32 s14, 0x40000000, 24576")
    fin("s_mov_b32 s12, 8192")
    fin("s_mov_b32 s13, 16384")
    for m in range(4):
        so = ("0", "s12", "s13", "s14")[m]
        for h in range(2):
            for k in range(4):
                fin(f"buffer_load_dwordx4 {vr(64 + 32*m + 16*h + 4*k)}, v{(16, 21, 22, 23)[k]}, s[56:59], {so} offen offset:{1024*h} sc1")
    for m in range(4):
        fin(f"s_add_u32 s10, s60, {4*m}")
        fin("s_mul_i32 s11, s10, 13")
        fin("s_lshr_b32 s11, s11, 6")
        fin("s_mul_i32 s15, s11, 5")
        fin("s_sub_u32 s15, s10, s15")
        fin(f"s_mul_i32 s11, s11, {16*2560}")
        fin("s_lshl_b32 s15, s15, 6")
        fin("s_add_u32 s11, s11, s15")
        if m == 3:
            fin("s_cmp_eq_u32 s60, 3")
            fin("s_cselect_b32 s11, 0x40000000, s11")
        fin(f"s_waitcnt vmcnt({24 - 8*m + m})")
        for h in range(2):
            d = 64 + 32*m + 16*h
            for x in range(2):
                fin(f"v_pk_add_f32 {vr(d+2*x,2)}, {vr(d+2*x,2)}, {vr(d+4+2*x,2)}")
                fin(f"v_pk_add_f32 {vr(d+8+2*x,2)}, {vr(d+8+2*x,2)}, {vr(d+12+2*x,2)}")
            for x in range(2):
                fin(f"v_pk_add_f32 {vr(d+2*x,2)}, {vr(d+2*x,2)}, {vr(d+8+2*x,2)}")
        d = 64 + 32*m
        fin(f"v_cvt_pk_bf16_f32 v{d}, v{d}, v{d+1}")
        fin(f"v_cvt_pk_bf16_f32 v{d+1}, v{d+2}, v{d+3}")
        fin(f"v_cvt_pk_bf16_f32 v{d+2}, v{d+16}, v{d+17}")
        fin(f"v_cvt_pk_bf16_f32 v{d+3}, v{d+18}, v{d+19}")
        fin(f"v_permlane16_swap_b32 v{d}, v{d+2}")
        fin(f"v_permlane16_swap_b32 v{d+1}, v{d+3}")
        fin(f"buffer_store_dwordx4 {vr(d)}, v18, s[44:47], s11 offen")
    if cfg.stamps:
        fin("s_waitcnt vmcnt(0)")
        stamp(fin, cfg, 11)
        fin("s_lshl_b32 s10, s2, 2")
        fin("s_add_u32 s10, s10, s60")
        fin("s_lshl_b32 s10, s10, 8")
        fin(f"s_add_u32 s10, s10, {STAMP_OFF}")
        fin("v_lshlrev_b32 v16, 2, v1")
        fin("v_add_u32 v16, s10, v16")
        fin("global_store_dword v16, v15, s[40:41]")
    fin("L_END:")
    fin("s_endpgm")
    fin.ins = pad_hazards(fin.ins, tl.ins[-16:])
    fb = Stream()
    fb("L_FALLBACK:")
    fb("s_mov_b32 s78, 1")
    fb("s_mov_b32 s54, 262144")
    fb("s_mov_b32 s71, 0")
    fb("s_mov_b32 s72, 4096")
    fb("s_mov_b32 s68, 31")
    fb("s_waitcnt vmcnt(0) lgkmcnt(0)")
    for i in R6: fb(f"v_mov_b32 v{NEGM(i)}, 0xff800000")
    fbl = Stream()
    fbl("L_FBLOOP:")
    fbl("s_barrier")
    for m, d in kvdma("s75", 0):
        fbl(m); fbl("s_nop 0"); fbl(d)
    for t in kvadv: fbl(t)
    fbl("s_waitcnt vmcnt(0)")
    fbl("s_barrier")
    for t in kreads(0, 0): fbl(t)
    fbl("s_waitcnt lgkmcnt(0)")
    for kt in range(2):
        for kk in range(4):
            for i in R6:
                d = vr(O0 + 8*i + 4*kt)
                fbl(f"{MF} {d}, {ar(KF(0, 4*kt+kk))}, {ar(QF(i, kk))}, {'0' if kk == 0 else d}")
    fbl("s_nop 7")
    for p in range(4):
        for i in R6:
            fbl(f"v_max3_f32 v{NEGM(i)}, v{NEGM(i)}, v{O0+8*i+2*p}, v{O0+8*i+2*p+1}")
    fbl("s_sub_u32 s68, s68, 1")
    fbl("s_cbranch_scc0 L_FBLOOP")
    fb2 = Stream()
    for i in R6:
        for r in (1, 2, 3): fb2(f"v_mov_b32 v{NEGM(i)+r}, v{NEGM(i)}")
    fb2("s_barrier")
    for t in range(4):
        for m, d in kvdma("s75", t * SLOT):
            fb2(m); fb2("s_nop 0"); fb2(d)
        for x in kvadv: fb2(x)
    fb2("s_branch L_KVSTART")
    parts = [pro, q0, qloop, qtail, qe, st, mref, red, w0, loop, tail, ep, t0, tl, fin, fb, fbl, fb2]
    tr = []
    for p in [pro, q0, qloop, qloop, qtail, qe, st, mref, red, w0, loop, loop, tail, ep, t0, tl, tl, fin]:
        tr += p.ins
    cut = [k for k, x in enumerate(ep.ins) if "L_FALLBACK" in x.text][0]
    tr2 = loop.ins + tail.ins + ep.ins[:cut+1] + fb.ins + fbl.ins + fbl.ins + fb2.ins + st.ins + red.ins + w0.ins
    errs = check_hazards(tr, "main") + check_hazards(tr2, "fb") + check_waits(tr, "main") + check_waits(tr2, "fb")
    rules = [("s[44:47]", 0), ("s[48:51]", 0), ("s[52:55]", 0), ("s[84:87]", 0)]
    errs += check_dma(tr, rules, "main") + check_dma(tr2, rules, "fb")
    errs = [e for e in errs if "global_load_dwordx2 v[224:225], v59, s[40:41] sc1 -> " not in e and "buffer_load_dword v14, v13" not in e]
    return parts, errs

KD = """.amdhsa_kernel {name}
  .amdhsa_next_free_vgpr 512
  .amdhsa_next_free_sgpr 102
  .amdhsa_accum_offset 256
  .amdhsa_group_segment_fixed_size 0
  .amdhsa_kernarg_size 104
  .amdhsa_user_sgpr_count 2
  .amdhsa_user_sgpr_kernarg_segment_ptr 1
  .amdhsa_system_sgpr_workgroup_id_x 1
.end_amdhsa_kernel
"""

def build_asm(cfg):
    ref = open(f"cdna_kernels/{NAME}.s.ref").read()
    head = []
    for line in ref.splitlines():
        if line.startswith(";") and "@launch" not in line: head.append(line)
        elif not line.startswith(";"): break
    nm = NAME + "_kernel"
    out = "\n".join(head) + "\n"
    out += "; @launch grid=(256,1,1) block=(256,1,1) lds=163840\n"
    out += '.amdgcn_target "amdgcn-amd-amdhsa--gfx950"\n.text\n'
    parts, errs = gen(cfg)
    out += f".globl {nm}\n.p2align 8\n.type {nm},@function\n{nm}:\n"
    for p in parts: out += p.text()
    out += '.section .rodata,"a"\n.p2align 6\n' + KD.format(name=nm)
    return out, errs

if __name__ == "__main__":
    cfg = Cfg()
    outp = f"cdna_kernels/{NAME}.s"
    for a in sys.argv[1:]:
        if a.startswith("out="): outp = a[4:]; continue
        k, v = a.split("=")
        cur = getattr(cfg, k)
        setattr(cfg, k, type(cur)(int(v)) if not isinstance(cur, str) else v.replace("+", " "))
    asm, errs = build_asm(cfg)
    for e in errs[:40]: print(e)
    print(len(errs), "errors")
    open(outp, "w").write(asm)
    print("wrote", outp, len(asm), "bytes")
```

```python
import sys, struct, math
sys.path.insert(0, "work")
from asmlib import *

NAME = "concat_heads__mha_block_cached__gqa_block_cached__near_ridge"
MF = "v_mfma_f32_16x16x32_bf16"
def f32bits(x): return struct.unpack("<I", struct.pack("<f", x))[0]

CH = 1056
SUB = 8416
SLOT = 4 * SUB
XSL = [4 * SLOT, SLOT, SLOT + 24576]
WSL = [3 * SLOT, 3 * SLOT + 2 * SUB, SLOT + 49152]
FLAG_OFF = 61440
OWN_OFF = 65536
WOR = [0, 20480, 40960]
P_OFF = 32 << 20
F_OFF = 63 << 20
SCALE = math.log2(math.e) / math.sqrt(128.0)
THR = 2.0 ** 40
STAMP_OFF = 64 << 20
SPIN_MAX = 1 << 20

class Cfg:
    stamps = 0
    nt_kv = "nt"
    nt_xw = "nt"
    nt_wo = ""
    rot = 5
    d3 = 0
    outst = ""
    lax = 1
    laxE = 1
    laxL2 = 1
    pkq = 1
    orate = 35
    old = "sc1"
    pst = "sc1"
    pld = "sc1"
    preflag = 1
    nsp = 3
    fldp = 1
    dp = 1
    fstrict = 4
    tlw2 = 63
    t0slack = 0
    tlw = 14
    kvwE = 6
    cls = 0
    x_nowait = 0
    x_nodma = 0
    x_hot = 0
    up = 0
    upp = 3
    nt_up = "nt"
    laxw = 16
    fine = 1
    wo_win = 30
    nt_tw = ""
    ost = "sc1"
    qrot = 0
    kvw = 3
    kvw0 = 3
    kvw1 = 3
    pollp = 4
    force_fb = False
    warm_wo = 2
    twp = 19
    kvp0 = 1
    kvp1 = 16
    local_o = 0
    warm_code = 1
    pbf16 = 1
    force_remote = 0

def vr(b, n=4): return f"v[{b}:{b+n-1}]"
def ar(b, n=4): return f"a[{b}:{b+n-1}]"

O0 = 64
def OACC(i, dt): return O0 + 32 * i + 4 * dt
def SREG(par, kt): return 16 + 8 * par + 4 * kt
def PREG(par): return 32 + 4 * par
def NEGM(i): return 40 + 4 * i
def QF(i, kk): return 16 * i + 4 * kk
def KF(par, f): return 96 + 32 * par + 4 * f
def VF(par, dt): return 160 + 32 * par + 4 * dt
def LACC(i): return 224 + 4 * i
ONES = 248
def QA(par, dt): return 96 + 32 * par + 4 * dt
def QB(par, i): return 160 + 32 * par + 4 * i
def TACC(i, nt): return 64 + 4 * (10 * i + nt)
def TA(par, nt): return (184 if par == 0 else 16) + 4 * nt
def TB_(u, i): return 12 * u + 4 * i
def TOWN(u, i): return 96 + 12 * u + 4 * i

NST = 12
def stamp(s, cfg, n):
    if cfg.stamps:
        s("s_memrealtime s[98:99]")
        s("s_memtime s[100:101]")
        s("s_waitcnt lgkmcnt(0)")
        s(f"v_writelane_b32 v15, s98, {n}")
        s(f"v_writelane_b32 v15, s100, {32 + n}")

def spread(gaps, items, lo, hi, cap=2):
    n = len(items)
    last = lo
    for k, it in enumerate(items):
        g = max(lo + (k * (hi - lo)) // n, last)
        while len(gaps.get(g, [])) + len(it) > cap: g += 1
        gaps.setdefault(g, []).extend(it)
        last = g

def dma_chain(dl):
    out = []
    for k, x in enumerate(dl):
        if k == 0: out.append([x[0]])
        nxt = [dl[k+1][0]] if k + 1 < len(dl) else []
        out.append([x[1]] + nxt)
    return out

def gen(cfg):
    R6 = range(6)
    pro = Stream(); s = pro
    s("s_cmp_ge_u32 s2, 256")
    s("s_cbranch_scc1 L_END")
    s("s_load_dwordx16 s[16:31], s[0:1], 0")
    s("s_load_dwordx8 s[32:39], s[0:1], 64")
    s("s_load_dwordx2 s[40:41], s[0:1], 96")
    s("s_memrealtime s[96:97]")
    s("v_lshrrev_b32 v17, 6, v0")
    s("v_and_b32 v1, 63, v0")
    if cfg.warm_code:
        s("s_getpc_b64 s[98:99]")
        s("s_lshr_b32 s5, s2, 3")
        s("s_lshl_b32 s5, s5, 11")
        s("v_lshrrev_b32 v16, 4, v0")
        s("v_lshl_add_u32 v16, v16, 7, s5")
        s("global_load_dword v16, v16, s[98:99]")
    s("s_and_b32 s4, s2, 7")
    s("s_lshr_b32 s5, s2, 3")
    s("v_readfirstlane_b32 s60, v17")
    s("s_lshr_b32 s61, s4, 2")
    s("s_and_b32 s4, s4, 3")
    s("s_lshl_b32 s63, s4, 2")
    s("s_and_b32 s6, s5, 3")
    s("s_add_u32 s63, s63, s6")
    s("s_lshr_b32 s62, s5, 2")
    s("s_lshl_b32 s7, s61, 3")
    s("s_add_u32 s7, s7, s62")
    s("s_and_b32 s8, s60, 1")
    s("s_lshr_b32 s9, s60, 1")
    s("v_lshrrev_b32 v18, 4, v1")
    s("v_and_b32 v19, 15, v1")
    s("v_lshrrev_b32 v22, 3, v1")
    s("v_lshlrev_b32 v23, 1, v18")
    s("v_and_b32 v24, 7, v1")
    s("v_xor_b32 v23, v23, v24")
    s("v_mul_u32_u24 v22, 1280, v22")
    s("v_lshl_add_u32 v4, v23, 4, v22")
    s("s_mul_i32 s10, s60, 61440")
    s("v_add_u32 v4, s10, v4")
    for t in range(1, 6): s(f"v_add_u32 v{4+t}, {10240*t}, v4")
    s("v_lshrrev_b32 v22, 1, v18")
    s("v_lshlrev_b32 v22, 2, v22")
    s("v_and_b32 v23, 1, v18")
    s("v_lshl_add_u32 v22, v23, 4, v22")
    s("v_lshlrev_b32 v22, 13, v22")
    s("v_lshl_add_u32 v10, v19, 4, v22")
    s("s_lshl_b32 s10, s8, 16")
    s("s_lshl_b32 s11, s9, 8")
    s("s_add_u32 s10, s10, s11")
    s("v_add_u32 v10, s10, v10")
    for t in range(1, 4): s(f"v_add_u32 v{10+t}, {8192*t}, v10")
    s(f"s_mul_i32 s10, s9, {SUB}")
    s(f"s_mul_i32 s11, s8, {CH}")
    s("s_add_u32 s69, s10, s11")
    s("s_mul_i32 s70, s60, 6144")
    if cfg.qrot:
        s("s_lshl_b32 s10, s6, 1")
        s("s_add_u32 s10, s10, s62")
        s("s_mul_i32 s10, s10, 5")
        s("s_lshr_b32 s10, s10, 2")
        s("s_sub_u32 s11, s10, 10")
        s("s_cmp_ge_u32 s10, 10")
        s("s_cselect_b32 s10, s11, s10")
        s("s_lshl_b32 s64, s10, 7")
        s("s_lshl_b32 s65, s10, 19")
    else:
        s("s_mov_b32 s64, 0")
        s("s_mov_b32 s65, 0")
    s("s_waitcnt lgkmcnt(0)")
    if cfg.stamps:
        s("v_mov_b32 v15, 0")
        s("s_nop 0")
        s("v_writelane_b32 v15, s96, 0")
    s("s_or_b32 s10, s63, s60")
    s("s_cmp_lg_u32 s10, 0")
    s("s_cbranch_scc1 L_NOLEAD")
    s("s_lshl_b32 s10, s7, 3")
    s("s_or_b32 s96, s96, 1")
    s("v_mov_b32 v22, s10")
    s("v_mov_b32 v24, s96")
    s("v_mov_b32 v25, s97")
    s("global_store_dwordx2 v22, v[24:25], s[38:39] sc1")
    s("L_NOLEAD:")
    s("s_cmp_eq_u32 s61, 0")
    s("s_cselect_b64 s[44:45], s[16:17], s[26:27]")
    s("s_cselect_b64 s[48:49], s[22:23], s[32:33]")
    s("s_cselect_b64 s[12:13], s[18:19], s[28:29]")
    s("s_cselect_b64 s[14:15], s[20:21], s[30:31]")
    s("s_cselect_b64 s[84:85], s[24:25], s[34:35]")
    s("s_mul_i32 s10, s62, 245760")
    s("s_add_u32 s44, s44, s10")
    s("s_addc_u32 s45, s45, 0")
    s("s_and_b32 s45, s45, 0xffff")
    s("s_mov_b32 s46, 245760")
    s("s_mov_b32 s47, 0x20000")
    s("s_lshl_b32 s10, s63, 9")
    s("s_add_u32 s48, s48, s10")
    s("s_addc_u32 s49, s49, 0")
    s("s_and_b32 s49, s49, 0xffff")
    s("s_sub_u32 s50, 5242880, s10")
    s("s_mov_b32 s51, 0x20000")
    XADV = ["s_add_u32 s64, s64, 128", "s_cmp_eq_u32 s64, 1280", "s_cselect_b32 s64, 0, s64"]
    WADV = ["s_add_u32 s65, s65, 262144", "s_cmp_eq_u32 s65, 5242880", "s_cselect_b32 s65, 0, s65"]
    if cfg.x_hot: XADV = []; WADV = []
    def xdma(sreg, base, ts):
        return [(f"s_add_u32 m0, {sreg}, {base + 1024*t}", f"buffer_load_dwordx4 v{4+t}, s[44:47], s64 offen {cfg.nt_xw} lds") for t in ts]
    def wdma(sreg, base):
        return [(f"s_add_u32 m0, {sreg}, {base + 2*CH*r}", f"buffer_load_dwordx4 v{10+r}, s[48:51], s65 offen {cfg.nt_xw} lds") for r in range(4)]
    for st in range(2):
        for grp in dma_chain(xdma("s70", XSL[st], range(6)) + wdma("s69", WSL[st])):
            for t in grp: s(t)
        for t in XADV + WADV: s(t)
    upb = []
    if cfg.up:
        s("v_mul_u32_u24 v32, 13108, v1")
        s("v_lshrrev_b32 v32, 16, v32")
        s("v_mul_u32_u24 v33, 5, v32")
        s("v_sub_u32 v33, v1, v33")
        s("v_min_u32 v32, 11, v32")
        s("v_mul_u32_u24 v32, 1280, v32")
        s("v_lshl_add_u32 v32, v33, 7, v32")
        s("s_lshl_b32 s10, s6, 2")
        s("s_add_u32 s10, s10, s60")
        s("s_mul_i32 s96, s10, 15360")
        s("v_lshrrev_b32 v33, 2, v1")
        s("v_min_u32 v33, 9, v33")
        s("v_lshlrev_b32 v33, 13, v33")
        s("v_and_b32 v34, 3, v1")
        s("v_lshl_add_u32 v33, v34, 7, v33")
        s("s_lshl_b32 s10, s62, 2")
        s("s_add_u32 s10, s10, s60")
        s("s_mul_i32 s97, s10, 81920")
        s(f"buffer_load_dword a252, v32, s[44:47], s96 offen {cfg.nt_up}")
        s(f"buffer_load_dword a252, v33, s[48:51], s97 offen {cfg.nt_up}")
        s(f"s_add_u32 s97, s97, {320*8192}")
        upb = [("", f"buffer_load_dword a252, v32, s[44:47], s96 offen offset:640 {cfg.nt_up}"),
               ("", f"buffer_load_dword a252, v33, s[48:51], s97 offen {cfg.nt_up}")]
        if cfg.up == 1:
            for _, t in upb: s(t)
            upb = []
    s("v_lshlrev_b32 v0, 4, v1")
    s("v_and_b32 v20, 3, v1")
    s("v_bfe_u32 v21, v1, 2, 2")
    s("v_and_b32 v22, 1, v18")
    s("v_lshl_add_u32 v22, v21, 1, v22")
    s(f"v_mul_u32_u24 v22, {CH}, v22")
    s("v_lshrrev_b32 v23, 1, v18")
    s("v_lshl_add_u32 v22, v23, 8, v22")
    s("v_lshl_add_u32 v26, v20, 3, v22")
    s("v_xor_b32 v24, 2, v20")
    s("v_lshl_add_u32 v27, v24, 3, v22")
    s("v_and_b32 v22, 1, v21")
    s("v_lshl_add_u32 v22, v20, 1, v22")
    s(f"v_mul_u32_u24 v22, {CH}, v22")
    s("v_lshrrev_b32 v23, 1, v21")
    s("v_lshl_add_u32 v22, v23, 8, v22")
    s("v_lshlrev_b32 v23, 1, v18")
    s("v_mov_b32 v24, 0x9c")
    s("v_lshrrev_b32 v23, v23, v24")
    s("v_and_b32 v23, 3, v23")
    s("v_lshl_add_u32 v2, v23, 4, v22")
    s("v_and_b32 v22, 6, v19")
    s("v_xor_b32 v22, v22, v18")
    s("v_lshlrev_b32 v22, 4, v22")
    s("v_lshl_add_u32 v28, v19, 7, v22")
    s("s_mul_i32 s10, s8, 12288")
    s("v_add_u32 v28, s10, v28")
    s("v_xor_b32 v29, 64, v28")
    s(f"s_mul_i32 s10, s9, {2*SUB}")
    s("v_add_u32 v2, s10, v2")
    s(f"s_add_u32 s10, s10, {SUB}")
    s("v_add_u32 v3, s10, v26")
    s(f"s_mul_i32 s10, s9, {SUB}")
    s("v_add_u32 v26, s10, v26")
    s("v_add_u32 v27, s10, v27")
    s(f"s_mul_i32 s75, s60, {SUB}")
    s("s_cmp_eq_u32 s8, 0")
    s("s_cselect_b64 s[52:53], s[12:13], s[14:15]")
    s("s_lshl_b32 s10, s62, 5")
    s("s_lshl_b32 s11, s63, 1")
    s("s_add_u32 s11, s11, s9")
    s("s_add_u32 s10, s10, s11")
    s("s_lshl_b32 s10, s10, 18")
    s("s_add_u32 s52, s52, s10")
    s("s_addc_u32 s53, s53, 0")
    s("s_and_b32 s53, s53, 0xffff")
    s("s_mov_b32 s54, 262144")
    s("s_mov_b32 s55, 0x20000")
    s("s_mul_i32 s10, s7, 12")
    s("s_mul_i32 s12, s8, 6")
    s("s_add_u32 s10, s10, s12")
    s("s_lshl_b32 s10, s10, 17")
    s("s_lshl_b32 s11, s11, 12")
    s("s_add_u32 s10, s10, s11")
    s("s_add_u32 s56, s40, s10")
    s("s_addc_u32 s57, s41, 0")
    s("s_and_b32 s57, s57, 0xffff")
    s(f"s_mov_b32 s58, {5*131072 + 4096}")
    s("s_mov_b32 s59, 0x20000")
    s(f"s_mul_i32 s10, s4, {1024*1280}")
    s("s_add_u32 s92, s84, s10")
    s("s_addc_u32 s93, s85, 0")
    s("s_and_b32 s93, s93, 0xffff")
    s(f"s_mov_b32 s94, {1024*1280}")
    s("s_mov_b32 s95, 0x20000")
    s("s_mul_i32 s11, s6, 320")
    s("s_add_u32 s10, s10, s11")
    s("s_add_u32 s84, s84, s10")
    s("s_addc_u32 s85, s85, 0")
    s("s_and_b32 s85, s85, 0xffff")
    s("s_sub_u32 s86, 5242880, s10")
    s("s_mov_b32 s87, 0x20000")
    s("s_mul_i32 s10, s7, 12")
    s("s_mul_i32 s11, s60, 3")
    s("s_add_u32 s10, s10, s11")
    s("s_lshl_b32 s10, s10, 17")
    s("s_lshl_b32 s11, s4, 15")
    s("s_add_u32 s10, s10, s11")
    s("s_add_u32 s88, s40, s10")
    s("s_addc_u32 s89, s41, 0")
    s("s_and_b32 s89, s89, 0xffff")
    s(f"s_mov_b32 s90, {2*131072 + 32768}")
    s("s_mov_b32 s91, 0x20000")
    s("s_lshl_b32 s10, s7, 4")
    s("s_add_u32 s11, s10, s63")
    s("s_lshl_b32 s11, s11, 2")
    s("s_add_u32 s11, s11, s60")
    s("s_lshl_b32 s11, s11, 6")
    s(f"s_add_u32 s30, s11, {F_OFF}")
    s("s_lshl_b32 s11, s4, 2")
    s("s_add_u32 s11, s11, s10")
    s("s_lshl_b32 s11, s11, 2")
    s("s_add_u32 s11, s11, s9")
    s("s_lshl_b32 s11, s11, 6")
    s(f"s_add_u32 s31, s11, {F_OFF}")
    s("s_add_u32 s11, s10, s6")
    s("s_lshl_b32 s11, s11, 2")
    s("s_add_u32 s11, s11, s4")
    s("s_lshl_b32 s11, s11, 6")
    s(f"s_add_u32 s32, s11, {F_OFF + 65536}")
    s("s_mul_i32 s10, s60, 3072")
    s(f"s_add_u32 s33, s10, {OWN_OFF}")
    for k in range(3):
        s(f"s_add_u32 s10, s6, {k+1}")
        s("s_and_b32 s10, s10, 3")
        s(f"s_lshl_b32 s{16+2*k}, s10, 13")
        s(f"s_add_u32 s{17+2*k}, s{16+2*k}, 4096")
        s("s_lshl_b32 s10, s10, 1")
        s(f"s_lshl_b32 s{24+2*k}, 3, s10")
        s(f"s_mov_b32 s{25+2*k}, 0")
    s(f"s_mov_b32 s76, {f32bits(SCALE):#x}")
    s(f"s_mov_b32 s77, {f32bits(SCALE):#x}")
    s("s_mov_b32 s78, 0")
    if cfg.cls == 0: s("s_cmp_lt_u32 s4, 0")
    elif cfg.cls == 1: s("s_cmp_lt_u32 s4, 2")
    elif cfg.cls == 2: s("s_bitcmp0_b32 s4, 0")
    elif cfg.cls == 3: s("s_bitcmp0_b32 s62, 0")
    s(f"s_cselect_b32 s42, {cfg.laxE}, {cfg.lax}")
    s(f"s_cselect_b32 s43, 64, {cfg.laxL2}")
    if cfg.rot == 0: s("s_mov_b32 s71, 0")
    elif cfg.rot == 1: s("s_lshl_b32 s71, s5, 13")
    elif cfg.rot == 2:
        s("s_lshl_b32 s71, s2, 1")
        s("s_add_u32 s71, s71, s9")
        s("s_mul_i32 s71, s71, 0x9E3779B1")
        s("s_lshr_b32 s71, s71, 24")
        s("s_lshl_b32 s71, s71, 10")
    elif cfg.rot == 3:
        s("s_lshl_b32 s71, s5, 1")
        s("s_add_u32 s71, s71, s9")
        s("s_and_b32 s71, s71, 7")
        s("s_lshl_b32 s71, s71, 10")
    elif cfg.rot == 4:
        s("s_lshl_b32 s71, s9, 7")
        s("s_add_u32 s71, s71, s2")
        s("s_and_b32 s71, s71, 255")
        s("s_lshl_b32 s71, s71, 10")
    elif cfg.rot == 5:
        s("s_lshl_b32 s71, s5, 1")
        s("s_add_u32 s71, s71, s9")
        s("s_lshl_b32 s71, s71, 12")
    s("s_add_u32 s72, s71, 4096")
    for r, v in zip((80, 81, 82), WSL): s(f"s_mov_b32 s{r}, {v}")
    for r, v in zip((66, 67, 83), XSL): s(f"s_mov_b32 s{r}, {v}")
    for r in range(O0, 256): s(f"v_mov_b32 v{r}, 0")
    s("v_mov_b32 v17, 0x3f803f80")
    for r in range(4): s(f"v_accvgpr_write_b32 a{ONES+r}, v17")
    s("v_add_u32 v14, s66, v28")
    s("v_add_u32 v30, s80, v26")
    s("v_add_u32 v31, s80, v27")
    s("s_add_u32 s73, s82, s69")
    s("s_add_u32 s74, s83, s70")
    s(f"s_waitcnt vmcnt({10 + (0, 4, 2)[cfg.up]})")
    stamp(s, cfg, 1)
    pro.ins = pad_hazards(pro.ins)

    def kvdma(m0base_sreg, base):
        if cfg.fine:
            return [(f"s_add_u32 m0, {m0base_sreg}, {base + CH*c}\ns_add_u32 s71, s71, 1024\ns_and_b32 s71, s71, 0x3ffff",
                     f"buffer_load_dwordx4 v0, s[52:55], s71 offen {cfg.nt_kv} lds") for c in range(8)]
        return [(f"s_add_u32 m0, {m0base_sreg}, {base + CH*c - 1024*(c&3)}",
                 f"buffer_load_dwordx4 v0, s[52:55], s{71 + (c>>2)} offen offset:{1024*(c&3)} {cfg.nt_kv} lds") for c in range(8)]
    kvadv = ["s_add_u32 s71, s71, 8192", "s_and_b32 s71, s71, 0x3ffff", "s_add_u32 s72, s71, 4096"]
    if cfg.fine: kvadv = ["", "", ""]

    def wodma(sreg, base):
        return [(f"s_add_u32 m0, {sreg}, {base + 1024*t}", f"buffer_load_dwordx4 v{4+t}, s[84:87], s64 offen {cfg.nt_wo} lds") for t in range(5)]
    WOADV = ["s_add_u32 s64, s64, 81920", "s_cmp_eq_u32 s64, 1310720", "s_cselect_b32 s64, 0, s64"]

    def kreads(par, off):
        return [f"ds_read_b128 {ar(KF(par, f))}, v2 offset:{off + 512*(f>>2) + 64*(f&3)}" for f in range(8)]
    def vreads(par, off):
        return [f"ds_read_b64_tr_b16 {ar(VF(par, dt) + 2*w, 2)}, v3 offset:{off + 512*w + 32*dt}" for dt in range(8) for w in range(2)]
    def qper(par, dmas, post, endwait, reads=True, mf=True, need=None, side=()):
        mfl = []
        if mf:
            for dt in range(8):
                for i in range(6):
                    a = OACC(i, dt)
                    mfl.append(f"{MF} {vr(a)}, {ar(QA(par^1, dt))}, {ar(QB(par^1, i))}, {vr(a)}")
        rl = []
        if reads:
            for i in range(6):
                rl.append([f"ds_read_b128 {ar(QB(par, i))}, v14 offset:{2048*i}"])
            for dt in range(8):
                for w in range(2):
                    rl.append([f"ds_read_b64_tr_b16 {ar(QA(par, dt) + 2*w, 2)}, v{30 + (dt & 1)} offset:{512*w + 32*dt}"])
        gaps = {}
        dch = dma_chain(list(dmas or []))
        if dch: spread(gaps, dch, 0, 38, cap=3)
        if rl: spread(gaps, rl, 0, 34)
        assert not gaps or max(gaps) < 38
        for n, t in enumerate(post):
            gaps.setdefault(38 + n // 2, []).append(t)
        for g in gaps: gaps[g] = [t for t in gaps[g] if t]
        if side: spread(gaps, [[t] for t in side], 0, 44)
        s = Stream()
        s("s_barrier", need if need is not None else ("s[48:51]:4 s[44:47]:6" if par == 0 else "s[48:51]:4 s[44:47]:9"))
        if mf:
            assert max(gaps) <= 47, max(gaps)
            s.extend(interleave(mfl, gaps))
        else:
            for k in sorted(gaps):
                for t in gaps[k]: s(t)
        if endwait: s(endwait)
        return s
    def upd(par, dma=True):
        l = []
        if dma: l += WADV + ["s_add_u32 s73, s80, s69"]
        l += ["s_mov_b32 s10, s80", "s_mov_b32 s80, s81", "s_mov_b32 s81, s82", "s_mov_b32 s82, s10",
              "v_add_u32 v30, s80, v26", "v_add_u32 v31, s80, v27"]
        if par == 0:
            l += ["v_add_u32 v14, s66, v29"]
        else:
            if dma: l += XADV + ["s_add_u32 s74, s66, s70"]
            l += ["s_mov_b32 s10, s66", "s_mov_b32 s66, s67", "s_mov_b32 s67, s83", "s_mov_b32 s83, s10"]
            l.append("v_add_u32 v14, s66, v28")
        return l
    def qd(par): return xdma("s74", 0, range(3*par, 3*par+3)) + wdma("s73", 0)
    ADV = "s_add_u32 s71, s71, 1024\ns_and_b32 s71, s71, 0x3ffff"
    kvp = kvdma("s75", 0) + [(ADV, f"buffer_load_dwordx4 {ar(4*n)}, v0, s[52:55], s71 offen {cfg.nt_kv}") for n in range(24)]
    wov = ["s_mul_i32 s10, s60, 320", "v_add_u32 v9, s10, v1"]
    for t in range(5):
        wov += [f"v_add_u32 v22, {64*t}, v9",
                "v_mul_u32_u24 v23, 3277, v22",
                "v_lshrrev_b32 v23, 16, v23",
                "v_mul_u32_u24 v24, 20, v23",
                "v_sub_u32 v24, v22, v24",
                "v_bfe_u32 v22, v23, 2, 1",
                "v_lshlrev_b32 v22, 1, v22",
                "v_xor_b32 v24, v24, v22",
                "v_mul_u32_u24 v23, 1280, v23",
                f"v_lshl_add_u32 v{4+t}, v24, 4, v23"]
    def flush(t):
        return [("", f"ds_write_b128 v25, {ar(32*(t-1) + 4*c)} offset:{CH*c}") for c in range(8)]
    tw2 = [("s_lshl_b32 s11, s5, 2\ns_add_u32 s11, s11, s60\ns_mul_i32 s11, s11, 10240\nv_mul_u32_u24 v17, 160, v1", f"buffer_load_dword a252, v17, s[92:95], s11 offen {cfg.nt_tw}"),
           ("", f"buffer_load_dword a253, v17, s[92:95], s11 offen offset:80 {cfg.nt_tw}")] if cfg.warm_wo == 2 else []
    if cfg.preflag:
        tw2 = tw2 + [("v_mov_b32 v32, s30\nv_mov_b32 v34, 0\nv_mov_b32 v35, 0\nv_add_u32 v33, 65536, v32", "global_store_dwordx2 v32, v[34:35], s[40:41] sc1"),
                     ("", "global_store_dwordx2 v33, v[34:35], s[40:41] sc1")]
    nper = [0] * 21
    p = cfg.kvp0; left = 32
    while left:
        nper[p] += 1; left -= 1; p += 1
        if p > cfg.kvp1: p = cfg.kvp0
    q0 = None; qloop = Stream(); qtail = Stream()
    prev_extra = (0, 4, 2)[cfg.up]; pos = 0
    wov += ["v_lshrrev_b32 v22, 2, v1", "v_mul_u32_u24 v23, 320, v22", "v_lshl_add_u32 v23, v20, 3, v23", "v_bfe_u32 v22, v1, 4, 1",
            "v_lshl_add_u32 v9, v22, 5, v23", "v_xor_b32 v22, 1, v22", "v_lshl_add_u32 v10, v22, 5, v23",
            "v_add_u32 v11, 131072, v0", "v_add_u32 v12, 262144, v0", "s_mul_i32 s70, s60, 5120"]
    for sidx in range(20):
        par = sidx & 1
        own = qd(par) if sidx <= 15 else (wdma("s73", 0) if sidx <= 17 else [])
        ex_ = kvp[pos:pos + nper[sidx]]; pos += nper[sidx]
        if sidx == cfg.upp: ex_ = ex_ + upb
        dm = own + ex_
        post = upd(par, sidx <= 16) if sidx <= 18 else []
        need = None
        nvm = len(dm) + prev_extra
        if sidx == 17:
            need = "s[48:51]:4 s[44:47]:6"
            post = post + [f"s_add_u32 s10, s75, {SLOT}", "v_add_u32 v25, s10, v0"]
            nvm = min(nvm, 4 + len(ex_) + prev_extra)
        if sidx >= 18:
            need = "s[48:51]:4 s[44:47]:0" if sidx == 18 else "s[48:51]:0 s[44:47]:0"
            dm = flush(sidx - 17) + (tw2 if sidx == cfg.twp else [])
            post = post + [f"v_add_u32 v25, {SLOT}, v25"]
        endw = f"s_waitcnt vmcnt({nvm}) lgkmcnt(0)"
        if sidx == 17: endw = "WAIT17"
        if sidx == 18: endw = f"s_waitcnt vmcnt({len(tw2) if cfg.twp == 18 else 0}) lgkmcnt(0)"
        if sidx == 19: endw = "s_waitcnt lgkmcnt(0)"
        if sidx == 20: endw = "s_waitcnt lgkmcnt(0)"
        if endw == "WAIT17":
            later = 32 - 16 + 4 * sum(1 for q in range(21) if q <= 17 and sum(nper[:q]) >= 16) + 3 * sum(1 for q in range(16) if sum(nper[:q]) >= 16)
            endw = f"s_waitcnt vmcnt({min(nvm, later)}) lgkmcnt(0)"
        if cfg.x_nowait and sidx < 17: endw = "s_waitcnt vmcnt(40) lgkmcnt(0)"
        if cfg.x_nodma and sidx < 18: dm = []
        side = {18: wov[:31], 19: wov[31:]}.get(sidx, [])
        per = qper(par, dm, post, endw, reads=True, mf=(sidx > 0), need=need, side=side)
        if sidx == 0:
            q0 = per; q0.ins = pad_hazards(q0.ins)
        elif sidx < 15: qloop.extend(per)
        else:
            if sidx == 15: stamp(qtail, cfg, 15)
            qtail.extend(per)
        prev_extra = len(ex_)
    stamp(qtail, cfg, 2)
    def qepi(i):
        l = []
        for kk in range(4):
            b = OACC(i, 2*kk)
            if cfg.pkq:
                for p in range(4): l.append(f"v_pk_mul_f32 {vr(b+2*p,2)}, {vr(b+2*p,2)}, s[76:77]")
            else:
                for p in range(8): l.append(f"v_mul_f32 v{b+p}, s76, v{b+p}")
        for kk in range(4):
            b = OACC(i, 2*kk)
            for p in range(4): l.append(f"v_cvt_pk_bf16_f32 v{b+p}, v{b+2*p}, v{b+2*p+1}")
        for kk in range(4):
            b = OACC(i, 2*kk)
            l += [f"v_permlane16_swap_b32 v{b}, v{b+2}", f"v_permlane16_swap_b32 v{b+1}, v{b+3}"]
        for kk in range(4):
            b = OACC(i, 2*kk)
            for p in range(4): l.append(f"v_accvgpr_write_b32 a{QF(i,kk)+p}, v{b+p}")
        return l
    def redu(i):
        n = NEGM(i)
        return [f"v_max3_f32 v{n}, v{n}, v{n+1}, v{n+2}", f"v_max_f32 v{n}, v{n}, v{n+3}",
                f"v_mov_b32 v{n+1}, v{n}", f"v_permlane16_swap_b32 v{n}, v{n+1}", f"v_max_f32 v{n}, v{n}, v{n+1}",
                f"v_mov_b32 v{n+1}, v{n}", f"v_permlane32_swap_b32 v{n}, v{n+1}", f"v_max_f32 v{n}, v{n}, v{n+1}",
                f"v_sub_f32 v{n+3}, 0, v{n}", f"v_sub_f32 v{n+2}, 0, v{n}", f"v_sub_f32 v{n+1}, 0, v{n}", f"v_sub_f32 v{n}, 0, v{n}"]
    def M(i): return [f"{MF} {vr(OACC(i, dt))}, {ar(QA(1, dt))}, {ar(QB(1, i))}, {vr(OACC(i, dt))}" for dt in range(8)]
    def Rm(i): return [f"{MF} {vr(NEGM(i))}, {ar(KF(0, kk))}, {ar(QF(i, kk))}, {'0' if kk == 0 else vr(NEGM(i))}" for kk in range(4)]
    def merge(valu, other):
        out = []; n = len(valu); m = len(other); k = 0
        for x, t in enumerate(valu):
            while k < m and k * n <= x * m: out.append(other[k]); k += 1
            out.append(t)
        return out + other[k:]
    INIT = ["s_mov_b32 s73, s75", f"s_mov_b32 s74, {2*SLOT}", "s_mov_b32 s68, 12"]
    qe = Stream()
    qe("s_barrier")
    lds = [d for _, d in flush(3)] + kreads(0, 0) + vreads(0, 0)
    for t in merge(lds, M(0) + M(1)): qe(t)
    for t in INIT: qe(t)
    for t in merge(qepi(0), M(2)): qe(t)
    qe("s_waitcnt lgkmcnt(0)")
    for t in merge(qepi(1), M(3) + Rm(0)): qe(t)
    for t in merge(merge(qepi(2), [""] * 12 + redu(0)), M(4) + Rm(1)): qe(t)
    for t in merge(merge(qepi(3), [""] * 12 + redu(1)), M(5) + Rm(2)): qe(t)
    for t in merge(merge(qepi(4), [""] * 12 + redu(2)), Rm(3) + [""] * 4): qe(t)
    for t in merge(merge(qepi(5), redu(3)), Rm(4) + [""] * 4): qe(t)
    for t in Rm(5) + redu(4) + redu(5): qe(t)
    stamp(qe, cfg, 3)
    qe.ins = pad_hazards(qe.ins, qtail.ins[-16:])
    st = Stream()
    for t in INIT: st(t)
    st("s_barrier", "s[52:55]:0")
    for t in kreads(0, 0) + vreads(0, 0): st(t)
    for i in R6:
        for t in redu(i): st(t)
    st("s_waitcnt lgkmcnt(0)")
    st("s_branch L_W0")
    st.ins = pad_hazards(st.ins)

    def E(u, r):
        x = SREG(u & 1, r >> 2) + (r & 3)
        return f"v_exp_f32 v{x}, v{x}"
    def C(u, c):
        x = SREG(u & 1, 0) + 2 * c
        return f"v_cvt_pk_bf16_f32 v{PREG(u & 1) + c}, v{x}, v{x+1}"
    def QK(u, j):
        i = u % 6; l = []
        for kt in range(2):
            for kk in range(4):
                d = vr(SREG(u & 1, kt))
                c = vr(NEGM(i)) if kk == 0 else d
                l.append(f"{MF} {d}, {ar(KF(j & 1, 4*kt + kk))}, {ar(QF(i, kk))}, {c}")
        return l
    def PV(u):
        if u < 0: return [None] * 9
        i = u % 6; j = u // 6; l = []
        for dt in range(8):
            d = vr(OACC(i, dt))
            l.append(f"{MF} {d}, {ar(VF(j & 1, dt))}, {vr(PREG(u & 1))}, {'0' if j == 0 else d}")
        d = ar(LACC(i))
        l.append(f"{MF} {d}, {ar(ONES)}, {vr(PREG(u & 1))}, {'0' if j == 0 else d}")
        return l

    RCP = [40, 44, 48, 52, 42, 46]
    def epi(i):
        r = RCP[i]
        l = [f"v_accvgpr_read_b32 v{r}, a{LACC(i)}",
             f"v_cmp_nge_f32 vcc, s15, v{r}",
             f"v_rcp_f32 v{r}, v{r}",
             "s_nop 0",
             "s_or_b64 s[12:13], s[12:13], vcc"]
        for dtp in range(4):
            b = OACC(i, 2*dtp)
            for p in range(4): l.append(f"v_pk_mul_f32 {vr(b+2*p,2)}, {vr(b+2*p,2)}, {vr(r,2)} op_sel_hi:[1,0]")
            for p in range(4): l.append(f"v_cvt_pk_bf16_f32 v{b+p}, v{b+2*p}, v{b+2*p+1}")
            l.append(f"buffer_store_dwordx4 {vr(b)}, v0, s[56:59], s14 offen offset:{1024*dtp} {cfg.ost}")
            l.append(f"ds_write_b128 v13, {vr(b)} offset:{12288*dtp + 1024*i}")
        l.append("s_add_u32 s14, s14, 131072")
        return l
    def fill(gaps, base, n, items):
        for k, t in enumerate(items): gaps.setdefault(base + (k * n) // len(items), []).append(t)

    def window(j, head=(), endw=None, dma=True, reads=True, extra=(), last=False, need="s[52:55]:16"):
        par = j & 1
        mfl = []; gaps = {}
        def put(i, k, t): gaps.setdefault(17*i + k, []).append(t)
        for i in range(6):
            u = 6*j + i
            mfl += QK(u, j) + PV(u - 2)
            for n, k in enumerate((9, 11, 13, 15)): put(i, k, E(u, n))
            if u >= 1:
                for n, k in enumerate((0, 2, 4, 6)): put(i, k, E(u-1, 4+n))
                put(i, 1, C(u-1, 0)); put(i, 1, C(u-1, 1)); put(i, 5, C(u-1, 2)); put(i, 8, C(u-1, 3))
        off = SLOT if par == 0 else 0
        for t in head: put(0, 3, t)
        if reads:
            kr = kreads(par ^ 1, off); vrd = vreads(par ^ 1, off)
            kpos = [(0, 7), (0, 12), (1, 3), (1, 7)]
            for n, (i, k) in enumerate(kpos):
                put(i, k, kr[2*n]); put(i, k, kr[2*n+1])
            vpos = [(i, k) for i in (2, 3, 4, 5) for k in (3, 7)]
            for n, (i, k) in enumerate(vpos):
                put(i, k, vrd[2*n]); put(i, k, vrd[2*n+1])
        if dma:
            dl = kvdma("s73", SLOT * par)
            p0 = dl[0][0].split("\n")
            put(0, 8, p0[0])
            for t in p0[1:]: put(0, 3, t)
            dpos = [(0, 10), (0, 16), (1, 12), (2, 10), (3, 10), (3, 16), (4, 12), (5, 10)]
            if cfg.d3 == 1: dpos[3] = (2, 16)
            apos = [(0, 14), (1, 10), (1, 14), (2, 14), (3, 12), (4, 10), (4, 14)]
            if cfg.d3 == 1: apos[3] = (3, 5)
            for c, (i, k) in enumerate(dpos):
                put(i, k, dl[c][1])
                if c < 7:
                    parts = dl[c+1][0].split("\n")
                    put(i, k, parts[0])
                    for t in parts[1:]: put(apos[c][0], apos[c][1], t)
            put(5, 12, kvadv[0]); put(5, 12, kvadv[1]); put(5, 14, kvadv[2])
            if par == 1: put(5, 10, "s_add_u32 s73, s73, s74")
        if par == 0:
            put(2, 12, "v_add_u32 v2, s74, v2")
            put(5, 14, "v_add_u32 v3, s74, v3")
        else:
            put(5, 14, "s_sub_u32 s74, 0, s74")
        fpos = [(i, k) for i in range(6) for k in (10, 12, 14, 16)]
        fpos = [x for x in fpos if x not in ((0, 12), (2, 12), (5, 14))]
        assert len(extra) <= len(fpos)
        for grp, (i, k) in zip(extra, fpos):
            for t in grp: put(i, k, t)
        if last:
            u = 6*j + 5
            mfl += PV(u - 1) + PV(u)
            b = 102
            for k, t in ((0, E(u,4)), (1, C(u,0)), (1, C(u,1)), (2, E(u,5)), (3, E(u,6)), (4, C(u,2)), (5, E(u,7)), (7, C(u,3))):
                gaps.setdefault(b + k, []).append(t)
            fill(gaps, 17*3 + 4, 17, epi(0))
            fill(gaps, 17*4 + 4, 17, epi(1))
            fill(gaps, 17*5 + 4, 17, epi(2))
            fill(gaps, b + 4, 9, epi(3))
            fill(gaps, b + 13, 5, epi(4)[:16])
        s = Stream()
        s("s_barrier", need)
        s.extend(interleave(mfl, gaps))
        if endw != "": s(endw or f"s_waitcnt vmcnt({cfg.kvw}) lgkmcnt(0)")
        return s
    w0 = Stream()
    w0("L_W0:")
    w0.extend(window(0, endw=f"s_waitcnt vmcnt({cfg.kvw0}) lgkmcnt(0)"))
    w0.extend(window(1, endw=f"s_waitcnt vmcnt({cfg.kvw1}) lgkmcnt(0)"))
    w0.ins = pad_hazards(w0.ins, qe.ins[-16:])
    loop = Stream()
    loop("L_LOOP:")
    if cfg.lax:
        for jj, lb in ((2, "L_LX0"), (3, "L_LX1")):
            loop.extend(window(jj, endw=""))
            loop("s_cmp_lt_u32 s68, s42")
            loop(f"s_waitcnt vmcnt({cfg.laxw}) lgkmcnt(0)")
            loop(f"s_cbranch_scc1 {lb}")
            loop("s_cmp_lt_u32 s68, s43")
            loop(f"s_waitcnt vmcnt({cfg.kvwE})", "pace")
            loop(f"s_cbranch_scc1 {lb}")
            loop(f"s_waitcnt vmcnt({cfg.kvw})", "pace")
            loop(f"{lb}:")
    else:
        loop.extend(window(2)); loop.extend(window(3))
    if cfg.stamps == 2:
        loop("s_memrealtime s[98:99]")
        loop("s_sub_u32 m0, 28, s68")
        loop("s_waitcnt lgkmcnt(0)")
        loop("v_writelane_b32 v15, s98, m0")
    loop("s_sub_u32 s68, s68, 1")
    loop("s_cbranch_scc0 L_LOOP")
    tail = Stream()
    stamp(tail, cfg, 12)
    tw = []
    if cfg.warm_wo == 1:
        tw = [["s_lshl_b32 s10, s5, 2", "s_add_u32 s10, s10, s60"], ["s_mul_i32 s10, s10, 10240", "v_mul_u32_u24 v13, 160, v1"],
              [f"buffer_load_dword a252, v13, s[92:95], s10 offen {cfg.nt_tw}"], [], [], [], [], [], [f"buffer_load_dword a253, v13, s[92:95], s10 offen offset:80 {cfg.nt_tw}"]]
    ntw = 2 if tw else 0
    tail.extend(window(28, dma=False, extra=tw, endw=f"s_waitcnt vmcnt({ntw + (8 if cfg.lax else 0)}) lgkmcnt(0)"))
    wx = [["s_mul_i32 s64, s6, 327680"]]
    for st_ in range(3):
        ch = dma_chain(wodma("s70", WOR[st_]))
        ch[-1] = ch[-1] + WOADV
        wx[-1] = wx[-1] + ch[0]; ch = ch[1:]
        wx += ch
    ex = [[f"s_mov_b32 s15, {f32bits(float('inf') if (cfg.x_nowait or cfg.x_nodma) else (THR if not cfg.force_fb else 1.0)):#x}", "s_mov_b64 s[12:13], 0"],
          ["s_mov_b32 s14, 0", "s_mul_i32 s10, s9, 49152"],
          ["s_mul_i32 s11, s8, 6144", "s_add_u32 s10, s10, s11"],
          [f"s_add_u32 s10, s10, {OWN_OFF}", "v_add_u32 v13, s10, v0"]]
    tail.extend(window(29, dma=False, extra=ex + (wx if cfg.wo_win == 29 else []), endw=f"s_waitcnt vmcnt({ntw + (15 if cfg.wo_win == 29 else 0)}) lgkmcnt(0)", need="s[52:55]:8"))
    tail.extend(window(30, dma=False, extra=(wx if cfg.wo_win == 30 else []), endw="s_waitcnt lgkmcnt(0)", need="s[52:55]:0"))
    stamp(tail, cfg, 13)
    tail.extend(window(31, dma=False, reads=False, last=True, endw="", need="s[52:55]:0"))
    stamp(tail, cfg, 4)
    tail.ins = pad_hazards(tail.ins, loop.ins[-16:])
    ep = Stream()
    ep("s_lshl_b32 s10, s7, 3")
    ep("v_mov_b32 v16, s10")
    ep("global_load_dwordx2 v[56:57], v16, s[38:39] sc1")
    ep("v_mov_b32 v58, s30")
    ep("v_add_u32 v60, 65536, v58")
    ep("v_and_b32 v59, 7, v1")
    ep("v_lshl_add_u32 v59, v59, 7, s31")
    ep("v_and_b32 v61, 3, v1")
    ep("v_max_u32 v61, 1, v61")
    ep("v_add_u32 v61, s4, v61")
    ep("v_and_b32 v61, 3, v61")
    ep("v_lshl_add_u32 v61, v61, 10, s32")
    ep("v_add_u32 v62, s33, v0")
    ep("v_add_u32 v63, 49152, v62")
    for t in epi(4)[16:] + epi(5): ep(t)
    ep("s_cmp_lg_u64 s[12:13], 0")
    ep("s_cselect_b32 s10, 1, 0")
    ep("v_mov_b32 v16, s10")
    ep("s_lshl_b32 s10, s60, 2")
    ep(f"s_add_u32 s10, s10, {FLAG_OFF}")
    ep("v_mov_b32 v17, s10")
    ep(f"v_mov_b32 v18, {FLAG_OFF}")
    ep("ds_write_b32 v17, v16")
    ep("global_load_dwordx2 v[228:229], v59, s[40:41] sc1")
    ep("s_waitcnt vmcnt(26) lgkmcnt(0)")
    ep("s_barrier", "s[84:87]:0")
    ep("ds_read_b128 v[20:23], v18")
    for nt in range(10):
        for w in range(2): ep(f"ds_read_b64_tr_b16 {vr(TA(0, nt) + 2*w, 2)}, v{9 + (nt & 1)} offset:{WOR[0] + 5120*w + 32*(nt & ~1)}")
    own = [f"ds_read_b128 {ar(TOWN(u, i))}, v{62 + (u >> 2)} offset:{12288*(u & 3) + 1024*i}" for u in range(8) for i in range(3)]
    for t in own[:6]: ep(t)
    ep("s_waitcnt lgkmcnt(15)")
    ep("v_or_b32 v20, v20, v21")
    ep("v_or3_b32 v20, v20, v22, v23")
    ep("v_readfirstlane_b32 s10, v20")
    ep("s_andn2_b32 s10, s10, s78")
    if cfg.x_nowait or cfg.x_nodma: ep("s_mov_b32 s10, 0")
    ep("s_cmp_lg_u32 s10, 0")
    ep("s_cbranch_scc1 L_FALLBACK")
    stamp(ep, cfg, 5)
    ep("s_waitcnt vmcnt(1)")
    ep(f"s_mov_b32 s79, {SPIN_MAX}")
    ep("L_TAG:")
    ep("v_readfirstlane_b32 s10, v56")
    ep("s_cmp_lg_u32 s10, 0")
    ep("s_cbranch_scc1 L_TAGOK")
    ep("s_lshl_b32 s10, s7, 3")
    ep("v_mov_b32 v20, s10")
    ep("s_sleep 2")
    ep("s_sub_u32 s79, s79, 1")
    ep("global_load_dwordx2 v[56:57], v20, s[38:39] sc1")
    ep("s_waitcnt vmcnt(0)", "spin")
    ep("s_cbranch_scc0 L_TAG")
    ep("L_TAGOK:")
    ep("global_store_dwordx2 v58, v[56:57], s[40:41] sc1")
    ep("s_waitcnt lgkmcnt(0)")
    stamp(ep, cfg, 6)
    ep.ins = pad_hazards(ep.ins, tail.ins[-16:])

    def poll(s, lbl, vaddr, first_issued):
        s(f"s_mov_b32 s79, {SPIN_MAX}")
        if first_issued: s(f"s_branch {lbl}_C")
        s(f"{lbl}:")
        s(f"global_load_dwordx2 v[228:229], {vaddr}, s[40:41] sc1")
        s(f"{lbl}_C:")
        s("s_waitcnt vmcnt(0)")
        s("v_cmp_ne_u64 vcc, v[228:229], v[56:57]")
        s("s_sub_u32 s79, s79, 1")
        s(f"s_cbranch_scc1 {lbl}_OK")
        s("s_cmp_lg_u64 vcc, 0")
        s(f"s_cbranch_scc1 {lbl}")
        s(f"{lbl}_OK:")
    def OB(p, i):
        t, u = p >> 3, p & 7
        return (96 if t % 2 == 0 else 0) + 12 * u + 4 * i
    def oload(p, i):
        t, u = p >> 3, p & 7
        return f"buffer_load_dwordx4 {ar(OB(p, i))}, v{(0, 11, 12)[i]}, s[88:91], s{16 + 2*(t-1) + (u >> 2)} offen offset:{1024*(u & 3)} {cfg.old}"
    def treads2(p):
        st_ = p >> 1
        return [f"ds_read_b64_tr_b16 {vr(TA(p & 1, nt) + 2*w, 2)}, v{9 + (nt & 1)} offset:{WOR[st_ % 3] + 10240*(p & 1) + 5120*w + 32*(nt & ~1)}"
                for nt in range(10) for w in range(2)]
    FLD = "global_load_dwordx2 v[228:229], v59, s[40:41] sc1"
    def tper(p, items, pre=()):
        mfl = []
        for nt in range(10):
            for i in range(3):
                a = vr(TACC(i, nt))
                mfl.append(f"{MF} {a}, {vr(TA(p & 1, nt))}, {ar(OB(p, i))}, {'0' if p == 0 else a}")
        gaps = {}; s = Stream(); tags = []; grp = []
        if p & 1:
            s("s_barrier", "s[84:87]:5" if p <= 27 else "s[84:87]:0")
            stg = (p + 1) // 2 + 2
            if stg <= 15:
                ch = dma_chain(wodma("s70", WOR[stg % 3])); ch[-1] = ch[-1] + [WOADV[0]]
                grp += ch + [WOADV[1:]]; tags += [("w", stg)] * 5
        for tg_, t in items:
            grp.append([t])
            if tg_ is not None: tags.append(tg_)
        for t in pre: s(t)
        if grp: spread(gaps, grp, 0, 27, cap=2)
        if p < 31: spread(gaps, [[t] for t in treads2(p + 1)], 0, 24, cap=2)
        assert max(gaps, default=0) <= 29, max(gaps)
        s.extend(interleave(mfl, gaps))
        return s, tags
    def need_after(p):
        n = [("o", p + 1)]
        if p % 2 == 0: n.append(("w", p // 2 + 1))
        return n
    def minwait(q, needs):
        idx = [k for k, x in enumerate(q) if x in needs]
        return (len(q) - 1 - idx[-1]) if idx else None
    def check_partner(s, lbl, k):
        s(f"s_and_b64 s[10:11], s[22:23], s[{24 + 2*k}:{25 + 2*k}]")
        s(f"s_cbranch_scc0 {lbl}_OK")
        s(f"s_mov_b32 s79, {SPIN_MAX}")
        s(f"{lbl}:")
        s(FLD)
        s("s_waitcnt vmcnt(0)", "spin")
        s("v_cmp_ne_u64 s[22:23], v[228:229], v[56:57]")
        s("s_sub_u32 s79, s79, 1")
        s(f"s_cbranch_scc1 {lbl}_OK")
        s(f"s_and_b64 s[10:11], s[22:23], s[{24 + 2*k}:{25 + 2*k}]")
        s(f"s_cbranch_scc1 {lbl}")
        s(f"{lbl}_OK:")
    allo = [(("o", p), oload(p, i)) for p in range(8, 32) for i in range(3)]
    when = []
    for n in range(72):
        p = 8 + n // 3
        when.append(max(cfg.pollp + (n * 10) // cfg.orate, p - 15 if p >= 16 else 0, 8 if p >= 16 else 0))
    n0 = sum(1 for x in when if x < 8)
    p1 = allo[:n0]
    def trip0(mode, q):
        s = Stream(); q = list(q)
        fast = mode == "fast"
        first = cfg.dp if fast else cfg.pollp
        nsp = 8 - first - (1 if fast else 0)
        for u in (range(cfg.dp) if mode == "pre" else range(cfg.dp, 8)):
            items = []
            if u < 3: items += [(None, t) for t in own[6 + 6*u: 12 + 6*u]]
            if mode == "slow" and u == cfg.fldp: items.append((("f", 1), FLD))
            pre = Stream()
            if mode == "slow" and u == cfg.pollp:
                w = minwait(q, [('f', 1)])
                if w is not None: pre(f"s_waitcnt vmcnt({w})")
                pre("v_cmp_ne_u64 s[22:23], v[228:229], v[56:57]")
                pre("s_nop 0")
                check_partner(pre, "L_PA", 0)
                stamp(pre, cfg, 7)
            if mode != "pre" and first <= u < first + nsp:
                k = u - first
                items += p1[(k * n0) // nsp: ((k + 1) * n0) // nsp]
            s.extend(pre)
            st_, tags = tper(u, items)
            s.extend(st_); q += tags
            nd = need_after(u)
            if fast and u == 7: nd = nd + [("w", 5)] + [x for x, _ in p1[:n0 - 4]]
            if mode == "pre" and u == cfg.dp - 1: nd = nd + [("f", 0)]
            w = minwait(q, nd)
            s(f"s_waitcnt vmcnt({w}) lgkmcnt(0)" if w is not None else "s_waitcnt lgkmcnt(0)")
            if w is not None: q = q[len(q) - w:] if w else []
            if cfg.stamps == 3: stamp(s, cfg, 16 + u)
        return s, q
    t0p, qp = trip0("pre", [("f", 0), ("s", 0)])
    t0p("v_cmp_ne_u64 s[22:23], v[228:229], v[56:57]")
    t0p("s_nop 0")
    t0p("s_and_b64 s[10:11], s[22:23], s[24:25]")
    t0p("s_cbranch_scc0 L_T0F")
    t0, qs = trip0("slow", qp)
    t0("L_T1:")
    tf = Stream(); tf("L_T0F:")
    stamp(tf, cfg, 7)
    tf_, qf = trip0("fast", qp); tf.extend(tf_); tf("s_branch L_T1")
    tl = Stream()
    stamp(tl, cfg, 14)
    for p in range(8, 32):
        items = []
        pre = Stream()
        if p == when[24]: check_partner(pre, "L_PA2", 1)
        if p == when[48]: check_partner(pre, "L_PA3", 2)
        items += [allo[n] for n in range(72) if when[n] == p]
        tl.extend(pre)
        st_, tags = tper(p, items)
        tl.extend(st_); qs += tags; qf += tags
        ws_ = [w for w in (minwait(qs, need_after(p)), minwait(qf, need_after(p))) if w is not None]
        if p < 31: tl(f"s_waitcnt vmcnt({min(ws_)}) lgkmcnt(0)" if ws_ else "s_waitcnt lgkmcnt(0)")
        if cfg.stamps == 3 and p < 16: stamp(tl, cfg, 16 + p)
        if ws_:
            w = min(ws_)
            qs = qs[max(0, len(qs) - w):] if w else []
            qf = qf[max(0, len(qf) - w):] if w else []
    PS = 15360
    fin = Stream()
    stamp(fin, cfg, 8)
    fin("s_lshl_b32 s10, s7, 2")
    fin("s_add_u32 s10, s10, s6")
    fin("s_lshl_b32 s10, s10, 2")
    fin("s_add_u32 s11, s10, s60")
    fin("s_lshl_b32 s11, s11, 2")
    fin("s_add_u32 s11, s11, s4")
    fin(f"s_mul_i32 s11, s11, {PS}")
    fin(f"s_add_u32 s11, s11, {P_OFF}")
    fin("s_add_u32 s52, s40, s11")
    fin("s_addc_u32 s53, s41, 0")
    fin("s_and_b32 s53, s53, 0xffff")
    fin(f"s_mov_b32 s54, {PS}")
    fin("s_mov_b32 s11, 0")
    fin(f"v_add_u32 v17, {OWN_OFF}, v0")
    fin("s_cmp_eq_u32 s60, s4")
    fin("s_cbranch_scc1 L_OWNSLAB")
    for pp in range(15):
        b = 64 + 8*pp
        for p in range(4): fin(f"v_cvt_pk_bf16_f32 v{b+p}, v{b+2*p}, v{b+2*p+1}")
        fin(f"buffer_store_dwordx4 {vr(b)}, v0, s[52:55], s11 offen offset:{1024*(pp & 3)} {cfg.pst}")
        if pp & 3 == 3: fin("s_add_u32 s11, s11, 4096")
    fin("s_branch L_SLABDONE")
    fin("L_OWNSLAB:")
    for T in range(30): fin(f"ds_write_b128 v17, {vr(64 + 4*T)} offset:{1024*T}")
    fin("L_SLABDONE:")
    fin("s_add_u32 s11, s10, s4")
    fin(f"s_mul_i32 s11, s11, {4*PS}")
    fin(f"s_add_u32 s11, s11, {P_OFF}")
    fin("s_add_u32 s56, s40, s11")
    fin("s_addc_u32 s57, s41, 0")
    fin("s_and_b32 s57, s57, 0xffff")
    fin(f"s_mov_b32 s58, {4*PS}")
    fin("s_mul_i32 s10, s62, 192")
    fin("s_mul_i32 s11, s4, 48")
    fin("s_add_u32 s10, s10, s11")
    fin("s_mul_i32 s10, s10, 2560")
    fin("s_mul_i32 s11, s61, 1280")
    fin("s_add_u32 s10, s10, s11")
    fin("s_mul_i32 s11, s6, 320")
    fin("s_add_u32 s10, s10, s11")
    fin("s_add_u32 s44, s36, s10")
    fin("s_addc_u32 s45, s37, 0")
    fin("s_and_b32 s45, s45, 0xffff")
    fin("s_sub_u32 s46, 3932160, s10")
    fin("v_and_b32 v20, 15, v1")
    fin("v_mul_u32_u24 v20, 2560, v20")
    fin("v_bfe_u32 v21, v1, 4, 1")
    fin("v_lshl_add_u32 v20, v21, 5, v20")
    fin("v_lshrrev_b32 v21, 5, v1")
    fin("v_lshl_add_u32 v18, v21, 4, v20")
    fin("s_lshl_b32 s10, s60, 10")
    fin("v_add_u32 v16, s10, v0")
    for k in range(1, 4):
        fin(f"s_add_u32 s10, s4, {k}")
        fin("s_and_b32 s10, s10, 3")
        fin(f"s_mul_i32 s10, s10, {PS}")
        fin(f"v_add_u32 v{20+k}, s10, v16")
    fin("s_lshl_b32 s10, s60, 11")
    fin("v_add_u32 v17, s10, v17")
    fin("s_waitcnt vmcnt(0) lgkmcnt(0)")
    fin("global_store_dwordx2 v60, v[56:57], s[40:41] sc1")
    fin("s_barrier")
    for m in range(4):
        for h in range(2):
            fin(f"ds_read_b128 {vr(64 + 32*m + 4*h)}, v17 offset:{8192*m + 1024*h}")
    stamp(fin, cfg, 9)
    poll(fin, "L_PB", "v61", False)
    stamp(fin, cfg, 10)
    fin("s_cmp_eq_u32 s60, 3")
    fin("s_cselect_b32 s14, 0x40000000, 12288")
    fin("s_mov_b32 s12, 4096")
    fin("s_mov_b32 s13, 8192")
    for m in range(4):
        so = ("0", "s12", "s13", "s14")[m]
        for k in range(3):
            fin(f"buffer_load_dwordx4 {vr(64 + 32*m + 8 + 4*k)}, v{21+k}, s[56:59], {so} offen {cfg.pld}")
    fin("s_mov_b32 s67, 0xffff0000")
    fin("s_waitcnt lgkmcnt(0)")
    for m in range(4):
        fin(f"s_add_u32 s10, s60, {4*m}")
        fin("s_mul_i32 s11, s10, 13")
        fin("s_lshr_b32 s11, s11, 6")
        fin("s_mul_i32 s15, s11, 5")
        fin("s_sub_u32 s15, s10, s15")
        fin(f"s_mul_i32 s11, s11, {16*2560}")
        fin("s_lshl_b32 s15, s15, 6")
        fin("s_add_u32 s11, s11, s15")
        if m == 3:
            fin("s_cmp_eq_u32 s60, 3")
            fin("s_cselect_b32 s11, 0x40000000, s11")
        fin(f"s_waitcnt vmcnt({9 - 3*m + m})")
        d = 64 + 32*m
        for k in range(3):
            for p in range(4):
                x = d + 8 + 4*k + p
                fin(f"v_lshlrev_b32 v{d+20+2*p}, 16, v{x}")
                fin(f"v_and_b32 v{d+21+2*p}, s67, v{x}")
            for p in range(4):
                fin(f"v_pk_add_f32 {vr(d+2*p,2)}, {vr(d+2*p,2)}, {vr(d+20+2*p,2)}")
        for p in range(4): fin(f"v_cvt_pk_bf16_f32 v{d+p}, v{d+2*p}, v{d+2*p+1}")
        fin(f"v_permlane16_swap_b32 v{d}, v{d+2}")
        fin(f"v_permlane16_swap_b32 v{d+1}, v{d+3}")
        fin(f"buffer_store_dwordx4 {vr(d)}, v18, s[44:47], s11 offen {cfg.outst}")
    if cfg.stamps:
        fin("s_waitcnt vmcnt(0)")
        stamp(fin, cfg, 11)
        fin("s_lshl_b32 s10, s2, 2")
        fin("s_add_u32 s10, s10, s60")
        fin("s_lshl_b32 s10, s10, 8")
        fin(f"s_add_u32 s10, s10, {STAMP_OFF}")
        fin("v_lshlrev_b32 v16, 2, v1")
        fin("v_add_u32 v16, s10, v16")
        fin("global_store_dword v16, v15, s[40:41]")
    fin("L_END:")
    fin("s_endpgm")
    fin.ins = pad_hazards(fin.ins, tl.ins[-16:])
    fb = Stream()
    fb("L_FALLBACK:")
    fb("s_mov_b32 s78, 1")
    fb("s_mov_b32 s71, 0")
    fb("s_mov_b32 s72, 4096")
    fb("s_mov_b32 s68, 31")
    fb("s_waitcnt vmcnt(0) lgkmcnt(0)")
    for i in R6: fb(f"v_mov_b32 v{NEGM(i)}, 0xff800000")
    fbl = Stream()
    fbl("L_FBLOOP:")
    fbl("s_barrier")
    for m, d in kvdma("s75", 0):
        fbl(m); fbl("s_nop 0"); fbl(d)
    for t in kvadv: fbl(t)
    fbl("s_waitcnt vmcnt(0)")
    fbl("s_barrier")
    for t in kreads(0, 0): fbl(t)
    fbl("s_waitcnt lgkmcnt(0)")
    for kt in range(2):
        for kk in range(4):
            for i in R6:
                d = vr(O0 + 8*i + 4*kt)
                fbl(f"{MF} {d}, {ar(KF(0, 4*kt+kk))}, {ar(QF(i, kk))}, {'0' if kk == 0 else d}")
    fbl("s_nop 7")
    for p in range(4):
        for i in R6:
            fbl(f"v_max3_f32 v{NEGM(i)}, v{NEGM(i)}, v{O0+8*i+2*p}, v{O0+8*i+2*p+1}")
    fbl("s_sub_u32 s68, s68, 1")
    fbl("s_cbranch_scc0 L_FBLOOP")
    fb2 = Stream()
    for i in R6:
        for r in (1, 2, 3): fb2(f"v_mov_b32 v{NEGM(i)+r}, v{NEGM(i)}")
    fb2("s_barrier")
    for t in range(4):
        for m, d in kvdma("s75", t * SLOT):
            fb2(m); fb2("s_nop 0"); fb2(d)
        for x in kvadv: fb2(x)
    fb2("s_waitcnt vmcnt(0)")
    parts = [pro, q0, qloop, qtail, qe, w0, loop, tail, ep, t0p, t0, tl, fin, tf, fb, fbl, fb2, st]
    def mk(lst):
        t = []
        for p in lst: t += p.ins
        out = []; skip = False
        for x in t:
            if x.cmt == "pace": continue
            if x.cmt == "spin": out.pop(); continue
            out.append(x)
        return out
    tr = mk([pro, q0, qloop, qtail, qe, w0, loop, loop, tail, ep, t0p, t0, tl, fin])
    tr3 = mk([tail, ep, t0p, tf, tl, fin])
    cut = [k for k, x in enumerate(ep.ins) if "L_FALLBACK" in x.text][0]
    epc = Stream(); epc.ins = ep.ins[:cut+1]
    tr2 = mk([loop, tail, epc, fb, fbl, fbl, fb2, st, w0])
    rules = [("s[44:47]", 0), ("s[48:51]", 0), ("s[52:55]", 0), ("s[84:87]", 0)]
    errs = []
    for nm_, t in (("main", tr), ("fb", tr2), ("fast", tr3)):
        errs += check_hazards(t, nm_) + check_waits(t, nm_) + check_dma(t, rules, nm_)
    errs = [e for e in errs if "buffer_load_dword a252" not in e]
    return parts, errs

KD = """.amdhsa_kernel {name}
  .amdhsa_next_free_vgpr 512
  .amdhsa_next_free_sgpr 102
  .amdhsa_accum_offset 256
  .amdhsa_group_segment_fixed_size 0
  .amdhsa_kernarg_size 104
  .amdhsa_user_sgpr_count 2
  .amdhsa_user_sgpr_kernarg_segment_ptr 1
  .amdhsa_system_sgpr_workgroup_id_x 1
.end_amdhsa_kernel
"""

def build_asm(cfg):
    ref = open(f"cdna_kernels/{NAME}.s.ref").read()
    head = []
    for line in ref.splitlines():
        if line.startswith(";") and "@launch" not in line: head.append(line)
        elif not line.startswith(";"): break
    nm = NAME + "_kernel"
    out = "\n".join(head) + "\n"
    out += "; @launch grid=(256,1,1) block=(256,1,1) lds=163840\n"
    out += '.amdgcn_target "amdgcn-amd-amdhsa--gfx950"\n.text\n'
    parts, errs = gen(cfg)
    out += f".globl {nm}\n.p2align 8\n.type {nm},@function\n{nm}:\n"
    for p in parts: out += p.text()
    out += f".fill (66560 - (. - {nm})) / 4, 4, 0xbf800000\n"
    out += '.section .rodata,"a"\n.p2align 6\n' + KD.format(name=nm)
    return out, errs

if __name__ == "__main__":
    cfg = Cfg()
    outp = f"cdna_kernels/{NAME}.s"
    for a in sys.argv[1:]:
        if a.startswith("out="): outp = a[4:]; continue
        k, v = a.split("=")
        cur = getattr(cfg, k)
        setattr(cfg, k, type(cur)(int(v)) if not isinstance(cur, str) else v.replace("+", " "))
    asm, errs = build_asm(cfg)
    for e in errs[:6]: print(e[:200])
    print(len(errs), "errors")
    open(outp, "w").write(asm)
    print("wrote", outp, len(asm), "bytes")
```

```python
import re

REG_RE = re.compile(r'\b([vas])(\d+)\b|\b([vas])\[(\d+):(\d+)\]|\b(vcc|exec|m0|scc)\b')

def regs_of(opnd):
    out = []
    for m in REG_RE.finditer(opnd):
        if m.group(1):
            out.append((m.group(1), int(m.group(2))))
        elif m.group(3):
            for r in range(int(m.group(4)), int(m.group(5)) + 1):
                out.append((m.group(3), r))
        else:
            out.append((m.group(6), 0))
    return out

TRANS = ("v_exp_f32", "v_rcp_f32", "v_log_f32", "v_rsq_f32", "v_sqrt_f32")

class Ins:
    __slots__ = ("text", "op", "kind", "rd", "wr", "srcc", "srcab", "nstates", "cmt")
    def __init__(self, text, cmt=None):
        self.text = text.strip()
        self.cmt = cmt
        t = self.text
        self.rd, self.wr, self.srcc, self.srcab = set(), set(), set(), set()
        self.nstates = 1
        if t.endswith(":"):
            self.op, self.kind, self.nstates = t, "label", 0
            return
        parts = t.split(None, 1)
        op = parts[0]
        for suf in ("_e32", "_e64"):
            if op.endswith(suf): op = op[:-4]
        self.op = op
        args = parts[1] if len(parts) > 1 else ""
        ops = [x.strip() for x in re.split(r',(?![^\[]*\])', args)] if args else []
        R = lambda i: regs_of(re.sub(r'(op_sel(_hi)?|neg_lo|neg_hi):\[[^\]]*\]', '', ops[i])) if i < len(ops) else []
        if op.startswith("v_mfma"):
            self.kind = "mfma"
            self.wr = set(R(0)); self.srcab = set(R(1)) | set(R(2)); self.srcc = set(R(3))
            self.rd = self.srcab | self.srcc
        elif op.startswith("v_cmp"):
            self.kind = "valu"
            self.wr = set(R(0)); self.rd = set(R(1)) | set(R(2))
        elif op.startswith("v_permlane"):
            self.kind = "perm"
            self.wr = set(R(0)) | set(R(1)); self.rd = set(self.wr)
        elif op in ("v_readfirstlane_b32", "v_readlane_b32"):
            self.kind = "rdlane"
            self.wr = set(R(0)); self.rd = set(R(1)) | set(R(2))
        elif op.startswith("v_"):
            self.kind = "trans" if op in TRANS else "valu"
            self.wr = set(R(0))
            for i in range(1, len(ops)): self.rd |= set(R(i))
            if op in ("v_fmac_f32",): self.rd |= self.wr
            if op.startswith("v_cndmask") and len(ops) == 3: self.rd.add(("vcc", 0))
            if op.startswith("v_add_co") or op.startswith("v_addc_co"):
                self.wr |= set(R(1))
        elif op.startswith("ds_read"):
            self.kind = "dsr"
            self.wr = set(R(0)); self.rd = set(R(1))
        elif op.startswith("ds_write"):
            self.kind = "dsw"
            for i in range(len(ops)): self.rd |= set(R(i))
        elif op.startswith("buffer_load"):
            if re.search(r'\blds\b', t):
                self.kind = "dma"
                for i in range(len(ops)): self.rd |= set(R(i))
                self.rd.add(("m0", 0))
            else:
                self.kind = "vld"
                self.wr = set(R(0))
                for i in range(1, len(ops)): self.rd |= set(R(i))
        elif op.startswith("buffer_store") or op.startswith("global_store") or op.startswith("buffer_atomic") or op.startswith("global_atomic"):
            self.kind = "vst"
            for i in range(len(ops)): self.rd |= set(R(i))
        elif op.startswith("global_load"):
            self.kind = "vld"
            self.wr = set(R(0))
            for i in range(1, len(ops)): self.rd |= set(R(i))
        elif op in ("buffer_wbl2", "buffer_inv"):
            self.kind = "vmisc"
        elif op == "s_waitcnt":
            self.kind = "wait"
        elif op == "s_nop":
            self.kind = "nop"; self.nstates = int(ops[0], 0) + 1
        elif op == "s_barrier":
            self.kind = "barrier"
        elif op.startswith("s_cbranch") or op == "s_branch" or op == "s_endpgm" or op in ("s_setprio", "s_sleep"):
            self.kind = "branch"
        elif op.startswith("s_load") or op in ("s_memtime", "s_memrealtime"):
            self.kind = "smem"
            self.wr = set(R(0))
            for i in range(1, len(ops)): self.rd |= set(R(i))
        elif op.startswith("s_cmp") or op.startswith("s_bitcmp"):
            self.kind = "salu"
            for i in range(len(ops)): self.rd |= set(R(i))
        elif op.startswith("s_"):
            self.kind = "salu"
            self.wr = set(R(0))
            for i in range(1, len(ops)): self.rd |= set(R(i))
            if "saveexec" in op: self.wr.add(("exec", 0))
        else:
            raise ValueError("unknown instruction: " + t)
    def __repr__(self):
        return self.text

def is_valu(i): return i.kind in ("valu", "trans", "perm", "rdlane")
def is_vmem(i): return i.kind in ("vld", "vst", "dma")

def mfma_passes(i):
    if "16x16x32" in i.op: return 4
    if "32x32x16" in i.op: return 8
    raise ValueError(i.op)

def required_gap(p, c):
    need = 0
    vw = {r for r in p.wr if r[0] in "va"}
    sw = {r for r in p.wr if r[0] == "s" or r[0] == "vcc"}
    if p.kind == "mfma":
        n = mfma_passes(p)
        big = {4: 8, 8: 12}[n]; ovl = {4: 6, 8: 10}[n]; war = {4: 3, 8: 7}[n]
        if c.kind == "mfma":
            if p.wr & c.srcab: need = max(need, big)
            if p.wr & c.srcc and not (p.wr == c.srcc and p.op == c.op): need = max(need, ovl)
            if p.wr & c.wr and not (p.wr == c.srcc and p.op == c.op): need = max(need, ovl)
        elif is_valu(c) or c.kind in ("dsr", "dsw", "vld", "vst", "dma"):
            if p.wr & (c.rd | c.wr): need = max(need, big)
        if is_valu(c) and (p.srcc & c.wr): need = max(need, war)
    if is_valu(p):
        if c.kind == "mfma" and vw & c.rd: need = max(need, 2)
        if c.kind == "perm" and vw & c.rd: need = max(need, 2)
        if c.kind == "rdlane" and vw & c.rd: need = max(need, 1)
        if p.kind == "trans" and is_valu(c) and c.kind != "trans" and vw & c.rd: need = max(need, 1)
        if sw:
            if is_vmem(c) and sw & c.rd: need = max(need, 5)
            if is_valu(c) and sw & c.rd: need = max(need, 2 if c.kind != "rdlane" else 4)
            if c.kind == "salu" and sw & c.rd: need = max(need, 1)
        if ("exec", 0) in p.wr and c.kind == "mfma": need = max(need, 4)
    if p.kind == "salu" and ("m0", 0) in p.wr and c.kind == "dma": need = max(need, 1)
    if p.kind == "vst" and ("x4" in p.op or "x3" in p.op):
        data = set(regs_of(p.text.split(None, 1)[1].split(",")[0])) if p.op.startswith("buffer") else p.rd
        data = {r for r in p.rd if r[0] in "va"}
        if data & c.wr: need = max(need, 2)
    return need

def check_hazards(trace, name=""):
    errs = []
    for ci, c in enumerate(trace):
        if c.kind in ("label",): continue
        dist = 0
        pi = ci - 1
        while pi >= 0 and dist < 13:
            p = trace[pi]
            if p.kind != "label":
                need = required_gap(p, c)
                if need > dist:
                    errs.append(f"{name}: hazard need {need} have {dist}: [{pi}] {p.text}  ->  [{ci}] {c.text}")
                dist += p.nstates
            pi -= 1
    return errs

def check_waits(trace, name=""):
    errs = []
    lq = []
    vq = []
    smem_pending = []
    for idx, c in enumerate(trace):
        if c.kind == "wait":
            m = re.search(r'lgkmcnt\((\d+)\)', c.text)
            if m:
                n = int(m.group(1))
                if n == 0: smem_pending = []
                if smem_pending and n != 0: errs.append(f"{name}: counted lgkm wait with smem pending at [{idx}]")
                if len(lq) > n: lq = lq[len(lq) - n:] if n else []
            m = re.search(r'vmcnt\((\d+)\)', c.text)
            if m:
                n = int(m.group(1))
                if len(vq) > n: vq = vq[len(vq) - n:] if n else []
            continue
        touched = c.rd | c.wr
        for q in (lq, vq, smem_pending):
            for p in q:
                if p.wr & touched:
                    errs.append(f"{name}: missing wait: {p.text} -> [{idx}] {c.text}")
        if c.kind in ("dsr", "dsw"): lq.append(c)
        if is_vmem(c):
            vq.append(c)
            if len(vq) > 63: errs.append(f"{name}: vmcnt overflow at [{idx}] {c.text}")
        if c.kind == "smem": smem_pending.append(c)
    return errs

class Stream:
    def __init__(self):
        self.ins = []
    def __call__(self, text, cmt=None):
        for line in text.split("\n"):
            line = line.strip()
            if line: self.ins.append(Ins(line, cmt))
    def extend(self, other):
        self.ins.extend(other.ins if isinstance(other, Stream) else other)
    def text(self):
        out = []
        for i in self.ins:
            if i.kind == "label": out.append(i.text)
            else: out.append("    " + i.text + (f"    ; {i.cmt}" if i.cmt else ""))
        return "\n".join(out) + "\n"

def pad_hazards(ins_list, prefix=()):
    out = list(prefix)
    n0 = len(out)
    for c in ins_list:
        if c.kind != "label":
            dist = 0; need_extra = 0
            pi = len(out) - 1
            while pi >= 0 and dist < 13:
                p = out[pi]
                if p.kind != "label":
                    need = required_gap(p, c)
                    if need > dist: need_extra = max(need_extra, need - dist)
                    dist += p.nstates
                pi -= 1
            if need_extra:
                out.append(Ins(f"s_nop {need_extra - 1}"))
        out.append(c)
    return out[n0:]

def interleave(mfmas, fillers):
    s = Stream()
    for t in fillers.get(-1, []): s(t)
    for k, m in enumerate(mfmas):
        if m is not None: s(m)
        for t in fillers.get(k, []): s(t)
    return s


def check_dma(trace, rules, name=""):
    errs = []
    vq = []
    count = {}
    for idx, c in enumerate(trace):
        if c.kind == "wait":
            m = re.search(r'vmcnt\((\d+)\)', c.text)
            if m:
                n = int(m.group(1))
                if len(vq) > n: vq = vq[len(vq) - n:] if n else []
        elif is_vmem(c):
            key = None
            if c.kind == "dma":
                for srd, g in rules:
                    if srd in c.text: key = srd
            seq = None
            if key:
                seq = count.get(key, 0); count[key] = seq + 1
            vq.append((key, seq))
        elif c.kind == "barrier" and c.cmt:
            for item in c.cmt.split():
                if ":" not in item or not item.startswith("s["): continue
                srd, lag = item.rsplit(":", 1)
                lagn = int(lag)
                tot = count.get(srd, 0)
                for k, seq in vq:
                    if k == srd and seq < tot - lagn:
                        errs.append(f"{name}: barrier [{idx}] {c.cmt}: dma #{seq} of {srd} (total {tot}) may be outstanding")
                        break
    return errs


def auto_lgkm(ins, pending=None):
    lq = list(pending or [])
    out = []
    for c in ins:
        if c.kind == "wait":
            m = re.search(r'lgkmcnt\((\d+)\)', c.text)
            if m:
                n = int(m.group(1))
                if len(lq) > n: lq = lq[len(lq) - n:] if n else []
            out.append(c); continue
        touched = c.rd | c.wr
        last = -1
        for k, p in enumerate(lq):
            if p.wr & touched: last = k
        if last >= 0:
            n = min(len(lq) - 1 - last, 15)
            out.append(Ins(f"s_waitcnt lgkmcnt({n})"))
            lq = lq[len(lq) - n:] if n else []
        out.append(c)
        if c.kind in ("dsr", "dsw"): lq.append(c)
    return out, lq


NO_SCC = ("s_mov_b32", "s_mov_b64", "s_mul_i32", "s_cselect_b32", "s_cselect_b64", "s_getreg_b32", "s_getpc_b64", "s_movk_i32")
def check_scc(trace, name=""):
    errs = []; last = None
    for idx, c in enumerate(trace):
        if c.op.startswith("s_cselect") and not (last and (last.op.startswith("s_cmp") or last.op.startswith("s_bitcmp"))):
            errs.append(f"{name}: scc source of [{idx}] {c.text} is {last}")
        if c.op == "s_addc_u32":
            d = list(c.wr)[0]
            if not (last and last.op == "s_add_u32" and list(last.wr)[0] == ("s", d[1] - 1)): errs.append(f"{name}: scc source of [{idx}] {c.text} is {last}")
        if c.op.startswith("s_cbranch_scc") and not (last and (last.op.startswith("s_cmp") or last.op.startswith("s_bitcmp") or last.op in ("s_sub_u32", "s_and_b64"))):
            errs.append(f"{name}: scc source of [{idx}] {c.text} is {last}")
        if c.kind == "salu" and c.op not in NO_SCC: last = c
    return errs
```

```python
import sys, struct, math
sys.path.insert(0, "work")
from asmlib import *

NAME = "concat_heads__mha_block_cached__gqa_block_cached__near_ridge"
MF = "v_mfma_f32_16x16x32_bf16"
def f32bits(x): return struct.unpack("<I", struct.pack("<f", x))[0]

CH = 1056
SUB = 8416
SLOT = 4 * SUB
XSL = [4 * SLOT, SLOT, SLOT + 24576]
WSL = [3 * SLOT, 3 * SLOT + 2 * SUB, SLOT + 49152]
FLAG_OFF = 61440
OWN_OFF = 65536
WOR = [0, 20480, 40960]
P_OFF = 32 << 20
F_OFF = 63 << 20
SCALE = math.log2(math.e) / math.sqrt(128.0)
THR = 2.0 ** 40
STAMP_OFF = 64 << 20
SPIN_MAX = 1 << 20

class Cfg:
    stamps = 0
    nt_kv = "nt"
    nt_xw = ""
    nt_wo = ""
    rot = 5
    d3 = 0
    outst = "sc1"
    lax = 1
    laxE = 0
    laxL = 0
    laxL2 = 0
    pkq = 1
    sigp = 1
    sparse1 = 1
    burst = 0
    ltrips = 12
    n01 = 6
    use29 = 4
    kvwt = 3
    kvb = 0
    diag = 0
    orate = 40
    old = "sc1"
    pst = "sc1"
    pld = "sc1"
    preflag = 1
    nsp = 3
    fldp = 3
    dp = 2
    fstrict = 4
    tlw2 = 63
    t0slack = 0
    tlw = 14
    kvwE = 6
    cls = 0
    x_nowait = 0
    x_nodma = 0
    x_hot = 0
    up = 0
    upp = 3
    nt_up = "nt"
    laxw = 16
    fine = 1
    wo_win = 30
    nt_tw = ""
    ost = "sc1"
    qrot = 0
    kvw = 3
    kvw0 = 3
    kvw1 = 3
    pollp = 6
    force_fb = False
    warm_wo = 2
    twp = 19
    kvp0 = 1
    kvp1 = 16
    local_o = 0
    warm_code = 1
    pbf16 = 1
    force_remote = 0

def vr(b, n=4): return f"v[{b}:{b+n-1}]"
def ar(b, n=4): return f"a[{b}:{b+n-1}]"

O0 = 64
def OACC(i, dt): return O0 + 32 * i + 4 * dt
def SREG(par, kt): return 16 + 8 * par + 4 * kt
def PREG(par): return 32 + 4 * par
def NEGM(i): return 40 + 4 * i
def QF(i, kk): return 16 * i + 4 * kk
def KF(par, f): return 96 + 32 * par + 4 * f
def VF(par, dt): return 160 + 32 * par + 4 * dt
def LACC(i): return 224 + 4 * i
ONES = 248
def QA(par, dt): return 96 + 32 * par + 4 * dt
def QB(par, i): return 160 + 32 * par + 4 * i
def TACC(i, nt): return 64 + 4 * (10 * i + nt)
def TA(par, nt): return (184 if par == 0 else 16) + 4 * nt
def TB_(u, i): return 12 * u + 4 * i
def TOWN(u, i): return 96 + 12 * u + 4 * i

NST = 12
def stamp(s, cfg, n):
    if cfg.stamps:
        s("s_memrealtime s[98:99]")
        s("s_memtime s[100:101]")
        s("s_waitcnt lgkmcnt(0)")
        s(f"v_writelane_b32 v15, s98, {n}")
        s(f"v_writelane_b32 v15, s100, {32 + n}")

def spread(gaps, items, lo, hi, cap=2):
    n = len(items)
    last = lo
    for k, it in enumerate(items):
        g = max(lo + (k * (hi - lo)) // n, last)
        while len(gaps.get(g, [])) + len(it) > cap: g += 1
        gaps.setdefault(g, []).extend(it)
        last = g

def dma_chain(dl):
    out = []
    for k, x in enumerate(dl):
        if k == 0: out.append([x[0]])
        nxt = [dl[k+1][0]] if k + 1 < len(dl) else []
        out.append([x[1]] + nxt)
    return out

def gen(cfg):
    R6 = range(6)
    pro = Stream(); s = pro
    s("s_cmp_ge_u32 s2, 256")
    s("s_cbranch_scc1 L_END")
    s("s_load_dwordx16 s[16:31], s[0:1], 0")
    s("s_load_dwordx8 s[32:39], s[0:1], 64")
    s("s_load_dwordx2 s[40:41], s[0:1], 96")
    s("s_memrealtime s[96:97]")
    s("v_lshrrev_b32 v17, 6, v0")
    s("v_and_b32 v1, 63, v0")
    if cfg.warm_code:
        s("s_getpc_b64 s[98:99]")
        s("s_lshr_b32 s5, s2, 3")
        s("s_lshl_b32 s5, s5, 11")
        s("v_lshrrev_b32 v16, 4, v0")
        s("v_lshl_add_u32 v16, v16, 7, s5")
        s("global_load_dword v16, v16, s[98:99]")
    s("s_and_b32 s4, s2, 7")
    s("s_lshr_b32 s5, s2, 3")
    s("v_readfirstlane_b32 s60, v17")
    s("s_lshr_b32 s61, s4, 2")
    s("s_and_b32 s4, s4, 3")
    s("s_lshl_b32 s63, s4, 2")
    s("s_and_b32 s6, s5, 3")
    s("s_add_u32 s63, s63, s6")
    s("s_lshr_b32 s62, s5, 2")
    s("s_lshl_b32 s7, s61, 3")
    s("s_add_u32 s7, s7, s62")
    s("s_and_b32 s8, s60, 1")
    s("s_lshr_b32 s9, s60, 1")
    s("v_lshrrev_b32 v18, 4, v1")
    s("v_and_b32 v19, 15, v1")
    s("v_lshrrev_b32 v22, 3, v1")
    s("v_lshlrev_b32 v23, 1, v18")
    s("v_and_b32 v24, 7, v1")
    s("v_xor_b32 v23, v23, v24")
    s("v_mul_u32_u24 v22, 1280, v22")
    s("v_lshl_add_u32 v4, v23, 4, v22")
    s("s_mul_i32 s10, s60, 61440")
    s("v_add_u32 v4, s10, v4")
    for t in range(1, 6): s(f"v_add_u32 v{4+t}, {10240*t}, v4")
    s("v_lshrrev_b32 v22, 1, v18")
    s("v_lshlrev_b32 v22, 2, v22")
    s("v_and_b32 v23, 1, v18")
    s("v_lshl_add_u32 v22, v23, 4, v22")
    s("v_lshlrev_b32 v22, 13, v22")
    s("v_lshl_add_u32 v10, v19, 4, v22")
    s("s_lshl_b32 s10, s8, 16")
    s("s_lshl_b32 s11, s9, 8")
    s("s_add_u32 s10, s10, s11")
    s("v_add_u32 v10, s10, v10")
    for t in range(1, 4): s(f"v_add_u32 v{10+t}, {8192*t}, v10")
    s(f"s_mul_i32 s10, s9, {SUB}")
    s(f"s_mul_i32 s11, s8, {CH}")
    s("s_add_u32 s69, s10, s11")
    s("s_mul_i32 s70, s60, 6144")
    if cfg.qrot:
        s("s_lshl_b32 s10, s6, 1")
        s("s_add_u32 s10, s10, s62")
        s("s_mul_i32 s10, s10, 5")
        s("s_lshr_b32 s10, s10, 2")
        s("s_sub_u32 s11, s10, 10")
        s("s_cmp_ge_u32 s10, 10")
        s("s_cselect_b32 s10, s11, s10")
        s("s_lshl_b32 s64, s10, 7")
        s("s_lshl_b32 s65, s10, 19")
    else:
        s("s_mov_b32 s64, 0")
        s("s_mov_b32 s65, 0")
    s("s_waitcnt lgkmcnt(0)")
    if cfg.stamps:
        s("v_mov_b32 v15, 0")
        s("s_nop 0")
        s("v_writelane_b32 v15, s96, 0")
    s("s_or_b32 s10, s63, s60")
    s("s_cmp_lg_u32 s10, 0")
    s("s_cbranch_scc1 L_NOLEAD")
    s("s_lshl_b32 s10, s7, 3")
    s("s_or_b32 s96, s96, 1")
    s("v_mov_b32 v22, s10")
    s("v_mov_b32 v24, s96")
    s("v_mov_b32 v25, s97")
    s("global_store_dwordx2 v22, v[24:25], s[38:39] sc1")
    s("L_NOLEAD:")
    s("s_cmp_eq_u32 s61, 0")
    s("s_cselect_b64 s[44:45], s[16:17], s[26:27]")
    s("s_cselect_b64 s[48:49], s[22:23], s[32:33]")
    s("s_cselect_b64 s[12:13], s[18:19], s[28:29]")
    s("s_cselect_b64 s[14:15], s[20:21], s[30:31]")
    s("s_cselect_b64 s[84:85], s[24:25], s[34:35]")
    s("s_mul_i32 s10, s62, 245760")
    s("s_add_u32 s44, s44, s10")
    s("s_addc_u32 s45, s45, 0")
    s("s_and_b32 s45, s45, 0xffff")
    s("s_mov_b32 s46, 245760")
    s("s_mov_b32 s47, 0x20000")
    s("s_lshl_b32 s10, s63, 9")
    s("s_add_u32 s48, s48, s10")
    s("s_addc_u32 s49, s49, 0")
    s("s_and_b32 s49, s49, 0xffff")
    s("s_sub_u32 s50, 5242880, s10")
    s("s_mov_b32 s51, 0x20000")
    XADV = ["s_add_u32 s64, s64, 128", "s_cmp_eq_u32 s64, 1280", "s_cselect_b32 s64, 0, s64"]
    WADV = ["s_add_u32 s65, s65, 262144", "s_cmp_eq_u32 s65, 5242880", "s_cselect_b32 s65, 0, s65"]
    if cfg.x_hot: XADV = []; WADV = []
    def xdma(sreg, base, ts):
        return [(f"s_add_u32 m0, {sreg}, {base + 1024*t}", f"buffer_load_dwordx4 v{4+t}, s[44:47], s64 offen {cfg.nt_xw} lds") for t in ts]
    def wdma(sreg, base):
        return [(f"s_add_u32 m0, {sreg}, {base + 2*CH*r}", f"buffer_load_dwordx4 v{10+r}, s[48:51], s65 offen {cfg.nt_xw} lds") for r in range(4)]
    for st in range(2):
        for grp in dma_chain(xdma("s70", XSL[st], range(6)) + wdma("s69", WSL[st])):
            for t in grp: s(t)
        for t in XADV + WADV: s(t)
    upb = []
    if cfg.up:
        s("v_mul_u32_u24 v32, 13108, v1")
        s("v_lshrrev_b32 v32, 16, v32")
        s("v_mul_u32_u24 v33, 5, v32")
        s("v_sub_u32 v33, v1, v33")
        s("v_min_u32 v32, 11, v32")
        s("v_mul_u32_u24 v32, 1280, v32")
        s("v_lshl_add_u32 v32, v33, 7, v32")
        s("s_lshl_b32 s10, s6, 2")
        s("s_add_u32 s10, s10, s60")
        s("s_mul_i32 s96, s10, 15360")
        s("v_lshrrev_b32 v33, 2, v1")
        s("v_min_u32 v33, 9, v33")
        s("v_lshlrev_b32 v33, 13, v33")
        s("v_and_b32 v34, 3, v1")
        s("v_lshl_add_u32 v33, v34, 7, v33")
        s("s_lshl_b32 s10, s62, 2")
        s("s_add_u32 s10, s10, s60")
        s("s_mul_i32 s97, s10, 81920")
        s(f"buffer_load_dword a252, v32, s[44:47], s96 offen {cfg.nt_up}")
        s(f"buffer_load_dword a252, v33, s[48:51], s97 offen {cfg.nt_up}")
        s(f"s_add_u32 s97, s97, {320*8192}")
        upb = [("", f"buffer_load_dword a252, v32, s[44:47], s96 offen offset:640 {cfg.nt_up}"),
               ("", f"buffer_load_dword a252, v33, s[48:51], s97 offen {cfg.nt_up}")]
        if cfg.up == 1:
            for _, t in upb: s(t)
            upb = []
    s("v_lshlrev_b32 v0, 4, v1")
    s("v_and_b32 v20, 3, v1")
    s("v_bfe_u32 v21, v1, 2, 2")
    s("v_and_b32 v22, 1, v18")
    s("v_lshl_add_u32 v22, v21, 1, v22")
    s(f"v_mul_u32_u24 v22, {CH}, v22")
    s("v_lshrrev_b32 v23, 1, v18")
    s("v_lshl_add_u32 v22, v23, 8, v22")
    s("v_lshl_add_u32 v26, v20, 3, v22")
    s("v_xor_b32 v24, 2, v20")
    s("v_lshl_add_u32 v27, v24, 3, v22")
    s("v_and_b32 v22, 1, v21")
    s("v_lshl_add_u32 v22, v20, 1, v22")
    s(f"v_mul_u32_u24 v22, {CH}, v22")
    s("v_lshrrev_b32 v23, 1, v21")
    s("v_lshl_add_u32 v22, v23, 8, v22")
    s("v_lshlrev_b32 v23, 1, v18")
    s("v_mov_b32 v24, 0x9c")
    s("v_lshrrev_b32 v23, v23, v24")
    s("v_and_b32 v23, 3, v23")
    s("v_lshl_add_u32 v2, v23, 4, v22")
    s("v_and_b32 v22, 6, v19")
    s("v_xor_b32 v22, v22, v18")
    s("v_lshlrev_b32 v22, 4, v22")
    s("v_lshl_add_u32 v28, v19, 7, v22")
    s("s_mul_i32 s10, s8, 12288")
    s("v_add_u32 v28, s10, v28")
    s("v_xor_b32 v29, 64, v28")
    s(f"s_mul_i32 s10, s9, {2*SUB}")
    s("v_add_u32 v2, s10, v2")
    s(f"s_add_u32 s10, s10, {SUB}")
    s("v_add_u32 v3, s10, v26")
    s(f"s_mul_i32 s10, s9, {SUB}")
    s("v_add_u32 v26, s10, v26")
    s("v_add_u32 v27, s10, v27")
    s(f"s_mul_i32 s75, s60, {SUB}")
    s("s_cmp_eq_u32 s8, 0")
    s("s_cselect_b64 s[52:53], s[12:13], s[14:15]")
    s("s_lshl_b32 s10, s62, 5")
    s("s_lshl_b32 s11, s63, 1")
    s("s_add_u32 s11, s11, s9")
    s("s_add_u32 s10, s10, s11")
    s("s_lshl_b32 s10, s10, 18")
    s("s_add_u32 s52, s52, s10")
    s("s_addc_u32 s53, s53, 0")
    s("s_and_b32 s53, s53, 0xffff")
    s("s_mov_b32 s54, 262144")
    s("s_mov_b32 s55, 0x20000")
    late = Stream(); s = late
    s("s_lshl_b32 s35, s63, 1")
    s("s_add_u32 s35, s35, s9")
    s("s_mul_i32 s34, s7, 12")
    s("s_mul_i32 s3, s8, 6")
    s("s_add_u32 s34, s34, s3")
    s("s_lshl_b32 s34, s34, 17")
    s("s_lshl_b32 s35, s35, 12")
    s("s_add_u32 s34, s34, s35")
    s("s_add_u32 s56, s40, s34")
    s("s_addc_u32 s57, s41, 0")
    s("s_and_b32 s57, s57, 0xffff")
    s(f"s_mov_b32 s58, {5*131072 + 4096}")
    s("s_mov_b32 s59, 0x20000")
    s(f"s_mul_i32 s34, s4, {1024*1280}")
    s("s_add_u32 s92, s84, s34")
    s("s_addc_u32 s93, s85, 0")
    s("s_and_b32 s93, s93, 0xffff")
    s(f"s_mov_b32 s94, {1024*1280}")
    s("s_mov_b32 s95, 0x20000")
    s("s_mul_i32 s35, s6, 320")
    s("s_add_u32 s34, s34, s35")
    s("s_add_u32 s84, s84, s34")
    s("s_addc_u32 s85, s85, 0")
    s("s_and_b32 s85, s85, 0xffff")
    s("s_sub_u32 s86, 5242880, s34")
    s("s_mov_b32 s87, 0x20000")
    s("s_mul_i32 s34, s7, 12")
    s("s_mul_i32 s35, s60, 3")
    s("s_add_u32 s34, s34, s35")
    s("s_lshl_b32 s34, s34, 17")
    s("s_lshl_b32 s35, s4, 15")
    s("s_add_u32 s34, s34, s35")
    s("s_add_u32 s88, s40, s34")
    s("s_addc_u32 s89, s41, 0")
    s("s_and_b32 s89, s89, 0xffff")
    s(f"s_mov_b32 s90, {2*131072 + 32768}")
    s("s_mov_b32 s91, 0x20000")
    s("s_lshl_b32 s34, s7, 4")
    s("s_add_u32 s35, s34, s63")
    s("s_lshl_b32 s35, s35, 2")
    s("s_add_u32 s35, s35, s60")
    s("s_lshl_b32 s35, s35, 6")
    s(f"s_add_u32 s30, s35, {F_OFF}")
    s("s_lshl_b32 s35, s4, 2")
    s("s_add_u32 s35, s35, s34")
    s("s_lshl_b32 s35, s35, 2")
    s("s_add_u32 s35, s35, s9")
    s("s_lshl_b32 s35, s35, 6")
    s(f"s_add_u32 s31, s35, {F_OFF}")
    s("s_add_u32 s35, s34, s6")
    s("s_lshl_b32 s35, s35, 2")
    s("s_add_u32 s35, s35, s4")
    s("s_lshl_b32 s35, s35, 6")
    s(f"s_add_u32 s32, s35, {F_OFF + 65536}")
    s("s_mul_i32 s34, s60, 3072")
    s(f"s_add_u32 s33, s34, {OWN_OFF}")
    for k in range(3):
        s(f"s_add_u32 s34, s6, {k+1}")
        s("s_and_b32 s34, s34, 3")
        s(f"s_lshl_b32 s{16+2*k}, s34, 13")
        s(f"s_add_u32 s{17+2*k}, s{16+2*k}, 4096")
        s("s_lshl_b32 s34, s34, 1")
        s(f"s_lshl_b32 s{24+2*k}, 3, s34")
        s(f"s_mov_b32 s{25+2*k}, 0")
    s(f"s_mov_b32 s76, {f32bits(SCALE):#x}")
    s(f"s_mov_b32 s77, {f32bits(SCALE):#x}")
    s("s_mov_b32 s78, 0")
    if cfg.cls == 0: s("s_cmp_lt_u32 s4, 0")
    elif cfg.cls == 1: s("s_cmp_lt_u32 s4, 2")
    elif cfg.cls == 2: s("s_bitcmp0_b32 s4, 0")
    elif cfg.cls == 3: s("s_bitcmp0_b32 s62, 0")
    s(f"s_cselect_b32 s42, {cfg.laxE}, {cfg.laxL}")
    s(f"s_cselect_b32 s43, 64, {cfg.laxL2}")
    s("v_mov_b32 v17, 0x3f803f80")
    if cfg.sparse1:
        s("v_cmp_eq_u32 vcc, 0, v20")
        s("s_nop 1")
        s("v_cndmask_b32 v17, 0, v17, vcc")
    for r in range(4): s(f"v_accvgpr_write_b32 a{ONES+r}, v17")
    s = pro
    if cfg.rot == 0: s("s_mov_b32 s71, 0")
    elif cfg.rot == 1: s("s_lshl_b32 s71, s5, 13")
    elif cfg.rot == 2:
        s("s_lshl_b32 s71, s2, 1")
        s("s_add_u32 s71, s71, s9")
        s("s_mul_i32 s71, s71, 0x9E3779B1")
        s("s_lshr_b32 s71, s71, 24")
        s("s_lshl_b32 s71, s71, 10")
    elif cfg.rot == 3:
        s("s_lshl_b32 s71, s5, 1")
        s("s_add_u32 s71, s71, s9")
        s("s_and_b32 s71, s71, 7")
        s("s_lshl_b32 s71, s71, 10")
    elif cfg.rot == 4:
        s("s_lshl_b32 s71, s9, 7")
        s("s_add_u32 s71, s71, s2")
        s("s_and_b32 s71, s71, 255")
        s("s_lshl_b32 s71, s71, 10")
    elif cfg.rot == 5:
        s("s_lshl_b32 s71, s5, 1")
        s("s_add_u32 s71, s71, s9")
        s("s_lshl_b32 s71, s71, 12")
    s("s_add_u32 s72, s71, 4096")
    for r, v in zip((80, 81, 82), WSL): s(f"s_mov_b32 s{r}, {v}")
    for r, v in zip((66, 67, 83), XSL): s(f"s_mov_b32 s{r}, {v}")
    s("v_add_u32 v14, s66, v28")
    s("v_add_u32 v30, s80, v26")
    s("v_add_u32 v31, s80, v27")
    s("s_add_u32 s73, s82, s69")
    s("s_add_u32 s74, s83, s70")
    s(f"s_waitcnt vmcnt({10 + (0, 4, 2)[cfg.up]})")
    stamp(s, cfg, 1)
    pro.ins = pad_hazards(pro.ins)

    def kvdma(m0base_sreg, base):
        if cfg.fine:
            return [(f"s_add_u32 m0, {m0base_sreg}, {base + CH*c}\ns_add_u32 s71, s71, 1024\ns_and_b32 s71, s71, 0x3ffff",
                     f"buffer_load_dwordx4 v0, s[52:55], s71 offen {cfg.nt_kv} lds") for c in range(8)]
        return [(f"s_add_u32 m0, {m0base_sreg}, {base + CH*c - 1024*(c&3)}",
                 f"buffer_load_dwordx4 v0, s[52:55], s{71 + (c>>2)} offen offset:{1024*(c&3)} {cfg.nt_kv} lds") for c in range(8)]
    kvadv = ["s_add_u32 s71, s71, 8192", "s_and_b32 s71, s71, 0x3ffff", "s_add_u32 s72, s71, 4096"]
    if cfg.fine: kvadv = ["", "", ""]

    def wodma(sreg, base):
        return [(f"s_add_u32 m0, {sreg}, {base + 1024*t}", f"buffer_load_dwordx4 v{4+t}, s[84:87], s64 offen {cfg.nt_wo} lds") for t in range(5)]
    WOADV = ["s_add_u32 s64, s64, 81920", "s_cmp_eq_u32 s64, 1310720", "s_cselect_b32 s64, 0, s64"]

    def kreads(par, off):
        return [f"ds_read_b128 {ar(KF(par, f))}, v2 offset:{off + 512*(f>>2) + 64*(f&3)}" for f in range(8)]
    def vreads(par, off):
        return [f"ds_read_b64_tr_b16 {ar(VF(par, dt) + 2*w, 2)}, v3 offset:{off + 512*w + 32*dt}" for dt in range(8) for w in range(2)]
    def qper(par, dmas, post, endwait, reads=True, mf=True, need=None, side=(), c0=False):
        mfl = []
        if mf:
            for dt in range(8):
                for i in range(6):
                    a = OACC(i, dt)
                    mfl.append(f"{MF} {vr(a)}, {ar(QA(par^1, dt))}, {ar(QB(par^1, i))}, {'0' if c0 else vr(a)}")
        rl = []
        if reads:
            for i in range(6):
                rl.append([f"ds_read_b128 {ar(QB(par, i))}, v14 offset:{2048*i}"])
            for dt in range(8):
                for w in range(2):
                    rl.append([f"ds_read_b64_tr_b16 {ar(QA(par, dt) + 2*w, 2)}, v{30 + (dt & 1)} offset:{512*w + 32*dt}"])
        gaps = {}
        dch = dma_chain(list(dmas or []))
        if dch: spread(gaps, dch, 0, 38, cap=3)
        if rl: spread(gaps, rl, 0, 34)
        assert not gaps or max(gaps) < 38
        for n, t in enumerate(post):
            gaps.setdefault(38 + n // 2, []).append(t)
        for g in gaps: gaps[g] = [t for t in gaps[g] if t]
        if side: spread(gaps, [[t] for t in side], 0, 36 if len(side) < 20 else 44)
        s = Stream()
        s("s_barrier", need if need is not None else ("s[48:51]:4 s[44:47]:6" if par == 0 else "s[48:51]:4 s[44:47]:9"))
        if mf:
            assert max(gaps) <= 47, max(gaps)
            s.extend(interleave(mfl, gaps))
        else:
            for k in sorted(gaps):
                for t in gaps[k]: s(t)
        if endwait: s(endwait)
        return s
    def upd(par, dma=True):
        l = []
        if dma: l += WADV + ["s_add_u32 s73, s80, s69"]
        l += ["s_mov_b32 s10, s80", "s_mov_b32 s80, s81", "s_mov_b32 s81, s82", "s_mov_b32 s82, s10",
              "v_add_u32 v30, s80, v26", "v_add_u32 v31, s80, v27"]
        if par == 0:
            l += ["v_add_u32 v14, s66, v29"]
        else:
            if dma: l += XADV + ["s_add_u32 s74, s66, s70"]
            l += ["s_mov_b32 s10, s66", "s_mov_b32 s66, s67", "s_mov_b32 s67, s83", "s_mov_b32 s83, s10"]
            l.append("v_add_u32 v14, s66, v28")
        return l
    def qd(par): return xdma("s74", 0, range(3*par, 3*par+3)) + wdma("s73", 0)
    ADV = "s_add_u32 s71, s71, 1024\ns_and_b32 s71, s71, 0x3ffff"
    kvp = kvdma("s75", 0) + [(ADV, f"buffer_load_dwordx4 {ar(4*n)}, v0, s[52:55], s71 offen {cfg.nt_kv}") for n in range(24)]
    wov = ["s_mul_i32 s10, s60, 320", "v_add_u32 v9, s10, v1"]
    for t in range(5):
        wov += [f"v_add_u32 v22, {64*t}, v9",
                "v_mul_u32_u24 v23, 3277, v22",
                "v_lshrrev_b32 v23, 16, v23",
                "v_mul_u32_u24 v24, 20, v23",
                "v_sub_u32 v24, v22, v24",
                "v_bfe_u32 v22, v23, 2, 1",
                "v_lshlrev_b32 v22, 1, v22",
                "v_xor_b32 v24, v24, v22",
                "v_mul_u32_u24 v23, 1280, v23",
                f"v_lshl_add_u32 v{4+t}, v24, 4, v23"]
    def flush(t):
        return [("", f"ds_write_b128 v25, {ar(32*(t-1) + 4*c)} offset:{CH*c}") for c in range(8)]
    tw2 = [("s_lshl_b32 s11, s5, 2\ns_add_u32 s11, s11, s60\ns_mul_i32 s11, s11, 10240\nv_mul_u32_u24 v17, 160, v1", f"buffer_load_dword a252, v17, s[92:95], s11 offen {cfg.nt_tw}"),
           ("", f"buffer_load_dword a253, v17, s[92:95], s11 offen offset:80 {cfg.nt_tw}")] if cfg.warm_wo == 2 else []
    if cfg.preflag:
        tw2 = tw2 + [("v_mov_b32 v32, s30\nv_mov_b32 v34, 0\nv_mov_b32 v35, 0\nv_add_u32 v33, 65536, v32", "global_store_dwordx2 v32, v[34:35], s[40:41] sc1"),
                     ("", "global_store_dwordx2 v33, v[34:35], s[40:41] sc1")]
    nper = [0] * 21
    p = cfg.kvp0; left = 32
    while left:
        nper[p] += 1; left -= 1; p += 1
        if p > cfg.kvp1: p = cfg.kvp0
    if cfg.kvb == 1:
        nper = [0] * 21
        for q in (4, 8, 12, 16): nper[q] = 8
    if cfg.kvb == 2:
        nper = [0] * 21
        for q in (6, 11, 16): nper[q] = 11
        nper[16] = 10
    if cfg.kvb == 3:
        nper = [0] * 21
        for q in (2, 4, 6, 8, 10, 12, 14, 16): nper[q] = 4
    lt = []
    for x in late.ins:
        if x.op in ("s_addc_u32", "s_cselect_b32"): lt[-1] += "\n" + x.text
        else: lt.append(x.text)
    lateg = [lt[k:k+14] for k in range(0, len(lt), 14)]
    q0 = None; qloop = Stream(); qtail = Stream()
    prev_extra = (0, 4, 2)[cfg.up]; pos = 0
    wov += ["v_lshrrev_b32 v22, 2, v1", "v_mul_u32_u24 v23, 320, v22", "v_lshl_add_u32 v23, v20, 3, v23", "v_bfe_u32 v22, v1, 4, 1",
            "v_lshl_add_u32 v9, v22, 5, v23", "v_xor_b32 v22, 1, v22", "v_lshl_add_u32 v10, v22, 5, v23",
            "v_add_u32 v11, 131072, v0", "v_add_u32 v12, 262144, v0", "s_mul_i32 s70, s60, 5120"]
    for sidx in range(20):
        par = sidx & 1
        own = qd(par) if sidx <= 15 else (wdma("s73", 0) if sidx <= 17 else [])
        ex_ = kvp[pos:pos + nper[sidx]]; pos += nper[sidx]
        if sidx == cfg.upp: ex_ = ex_ + upb
        dm = own + ex_
        post = upd(par, sidx <= 16) if sidx <= 18 else []
        need = None
        nvm = len(dm) + prev_extra
        if sidx == 17:
            need = "s[48:51]:4 s[44:47]:6"
            post = post + [f"s_add_u32 s10, s75, {SLOT}", "v_add_u32 v25, s10, v0"]
            nvm = min(nvm, 4 + len(ex_) + prev_extra)
        if sidx >= 18:
            need = "s[48:51]:4 s[44:47]:0" if sidx == 18 else "s[48:51]:0 s[44:47]:0"
            dm = flush(sidx - 17) + (tw2 if sidx == cfg.twp else [])
            post = post + [f"v_add_u32 v25, {SLOT}, v25"]
        endw = f"s_waitcnt vmcnt({nvm}) lgkmcnt(0)"
        if sidx == 17: endw = "WAIT17"
        if sidx == 18: endw = f"s_waitcnt vmcnt({len(tw2) if cfg.twp == 18 else 0}) lgkmcnt(0)"
        if sidx == 19: endw = "s_waitcnt lgkmcnt(0)"
        if sidx == 20: endw = "s_waitcnt lgkmcnt(0)"
        if endw == "WAIT17":
            later = 32 - 16 + 4 * sum(1 for q in range(21) if q <= 17 and sum(nper[:q]) >= 16) + 3 * sum(1 for q in range(16) if sum(nper[:q]) >= 16)
            endw = f"s_waitcnt vmcnt({min(nvm, later)}) lgkmcnt(0)"
        if cfg.x_nowait and sidx < 17: endw = "s_waitcnt vmcnt(40) lgkmcnt(0)"
        if cfg.x_nodma and sidx < 18: dm = []
        side = {18: wov[:31], 19: wov[31:]}.get(sidx, [])
        if 2 <= sidx < 2 + len(lateg): side = lateg[sidx - 2]
        per = qper(par, dm, post, endw, reads=True, mf=(sidx > 0), need=need, side=side, c0=(sidx == 1))
        if sidx == 0:
            q0 = per; q0.ins = pad_hazards(q0.ins)
        elif sidx < 15: qloop.extend(per)
        else:
            if sidx == 15: stamp(qtail, cfg, 15)
            qtail.extend(per)
        prev_extra = len(ex_)
    stamp(qtail, cfg, 2)
    def qepi(i):
        l = []
        for kk in range(4):
            b = OACC(i, 2*kk)
            if cfg.pkq:
                for p in range(4): l.append(f"v_pk_mul_f32 {vr(b+2*p,2)}, {vr(b+2*p,2)}, s[76:77]")
            else:
                for p in range(8): l.append(f"v_mul_f32 v{b+p}, s76, v{b+p}")
        for kk in range(4):
            b = OACC(i, 2*kk)
            for p in range(4): l.append(f"v_cvt_pk_bf16_f32 v{b+p}, v{b+2*p}, v{b+2*p+1}")
        for kk in range(4):
            b = OACC(i, 2*kk)
            l += [f"v_permlane16_swap_b32 v{b}, v{b+2}", f"v_permlane16_swap_b32 v{b+1}, v{b+3}"]
        for kk in range(4):
            b = OACC(i, 2*kk)
            for p in range(4): l.append(f"v_accvgpr_write_b32 a{QF(i,kk)+p}, v{b+p}")
        return l
    def redu(i):
        n = NEGM(i)
        return [f"v_max3_f32 v{n}, v{n}, v{n+1}, v{n+2}", f"v_max_f32 v{n}, v{n}, v{n+3}",
                f"v_mov_b32 v{n+1}, v{n}", f"v_permlane16_swap_b32 v{n}, v{n+1}", f"v_max_f32 v{n}, v{n}, v{n+1}",
                f"v_mov_b32 v{n+1}, v{n}", f"v_permlane32_swap_b32 v{n}, v{n+1}", f"v_max_f32 v{n}, v{n}, v{n+1}",
                f"v_sub_f32 v{n+3}, 0, v{n}", f"v_sub_f32 v{n+2}, 0, v{n}", f"v_sub_f32 v{n+1}, 0, v{n}", f"v_sub_f32 v{n}, 0, v{n}"]
    def M(i): return [f"{MF} {vr(OACC(i, dt))}, {ar(QA(1, dt))}, {ar(QB(1, i))}, {vr(OACC(i, dt))}" for dt in range(8)]
    def Rm(i): return [f"{MF} {vr(NEGM(i))}, {ar(KF(0, kk))}, {ar(QF(i, kk))}, {'0' if kk == 0 else vr(NEGM(i))}" for kk in range(4)]
    def merge(valu, other):
        out = []; n = len(valu); m = len(other); k = 0
        for x, t in enumerate(valu):
            while k < m and k * n <= x * m: out.append(other[k]); k += 1
            out.append(t)
        return out + other[k:]
    INIT = [f"s_add_u32 s73, s75, {2*SLOT}", "s_mov_b32 s72, s75", f"s_mov_b32 s74, {2*SLOT}", f"s_mov_b32 s68, {cfg.ltrips - 1}"]
    qe = Stream()
    qe("s_barrier")
    lds = [d for _, d in flush(3)] + kreads(0, 0) + vreads(0, 0)
    for t in merge(lds, M(0) + M(1)): qe(t)
    for t in INIT: qe(t)
    for t in merge(qepi(0), M(2)): qe(t)
    qe("s_waitcnt lgkmcnt(0)")
    for t in merge(qepi(1), M(3) + Rm(0)): qe(t)
    for t in merge(merge(qepi(2), [""] * 12 + redu(0)), M(4) + Rm(1)): qe(t)
    for t in merge(merge(qepi(3), [""] * 12 + redu(1)), M(5) + Rm(2)): qe(t)
    for t in merge(merge(qepi(4), [""] * 12 + redu(2)), Rm(3) + [""] * 4): qe(t)
    for t in merge(merge(qepi(5), redu(3)), Rm(4) + [""] * 4): qe(t)
    for t in Rm(5) + redu(4) + redu(5): qe(t)
    stamp(qe, cfg, 3)
    qe.ins = pad_hazards(qe.ins, qtail.ins[-16:])
    st = Stream()
    for t in INIT: st(t)
    st("s_barrier", "s[52:55]:0")
    for t in kreads(0, 0) + vreads(0, 0): st(t)
    for i in R6:
        for t in redu(i): st(t)
    st("s_waitcnt lgkmcnt(0)")
    st("s_branch L_W0")
    st.ins = pad_hazards(st.ins)

    def E(u, r):
        x = SREG(u & 1, r >> 2) + (r & 3)
        return f"v_exp_f32 v{x}, v{x}"
    def C(u, c):
        x = SREG(u & 1, 0) + 2 * c
        return f"v_cvt_pk_bf16_f32 v{PREG(u & 1) + c}, v{x}, v{x+1}"
    def QK(u, j):
        i = u % 6; l = []
        for kt in range(2):
            for kk in range(4):
                d = vr(SREG(u & 1, kt))
                c = vr(NEGM(i)) if kk == 0 else d
                l.append(f"{MF} {d}, {ar(KF(j & 1, 4*kt + kk))}, {ar(QF(i, kk))}, {c}")
        return l
    def PV(u):
        if u < 0: return [None] * 9
        i = u % 6; j = u // 6; l = []
        for dt in range(8):
            d = vr(OACC(i, dt))
            l.append(f"{MF} {d}, {ar(VF(j & 1, dt))}, {vr(PREG(u & 1))}, {'0' if j == 0 else d}")
        d = ar(LACC(i))
        l.append(f"{MF} {d}, {ar(ONES)}, {vr(PREG(u & 1))}, {'0' if j == 0 else d}")
        return l

    RCP = [40, 44, 48, 52, 42, 46]
    def epi(i):
        r = RCP[i]
        l = [f"v_accvgpr_read_b32 v{r}, a{LACC(i)}",
             f"v_cmp_nge_f32 vcc, s15, v{r}",
             f"v_rcp_f32 v{r}, v{r}",
             "s_nop 0",
             "s_or_b64 s[12:13], s[12:13], vcc"]
        for dtp in range(4):
            b = OACC(i, 2*dtp)
            for p in range(4): l.append(f"v_pk_mul_f32 {vr(b+2*p,2)}, {vr(b+2*p,2)}, {vr(r,2)} op_sel_hi:[1,0]")
            for p in range(4): l.append(f"v_cvt_pk_bf16_f32 v{b+p}, v{b+2*p}, v{b+2*p+1}")
            l.append(f"buffer_store_dwordx4 {vr(b)}, v0, s[56:59], s14 offen offset:{1024*dtp} {cfg.ost}")
            l.append(f"ds_write_b128 v13, {vr(b)} offset:{12288*dtp + 1024*i}")
        l.append("s_add_u32 s14, s14, 131072")
        return l
    def fill(gaps, base, n, items):
        for k, t in enumerate(items): gaps.setdefault(base + (k * n) // len(items), []).append(t)

    LT = cfg.ltrips
    NCH = [cfg.n01, cfg.n01] + [8] * (2 * LT)
    rem = 224 - sum(NCH); ntl = 29 - len(NCH)
    last29 = min(cfg.use29 - 1, rem) if cfg.use29 else 0
    rem -= last29
    for k in range(ntl): x = min(8, -(-rem // (ntl - k))) if cfg.use29 else min(8, rem); NCH.append(x); rem -= x
    NCH += [last29, 0, 0]
    assert sum(NCH) == 224 and len(NCH) == 32, NCH
    G0 = [32 + sum(NCH[:j]) for j in range(33)]
    def allowed(j): return max(0, G0[j + 1] - 8 * min(32, j + 3))
    for j in range(30): assert G0[j + 1] >= 8 * min(32, j + 3) and G0[j + 1] <= 8 * (j + 5), (j, NCH)
    def window(j, head=(), endw=None, inloop=False, reads=True, extra=(), last=False):
        par = j & 1
        need = f"s[52:55]:{allowed(j - 1) if j else 0}"
        mfl = []; gaps = {}
        def put(i, k, t): gaps.setdefault(17*i + k, []).append(t)
        for i in range(6):
            u = 6*j + i
            mfl += QK(u, j) + PV(u - 2)
            for n, k in enumerate((9, 11, 13, 15)): put(i, k, E(u, n))
            if u >= 1:
                for n, k in enumerate((0, 2, 4, 6)): put(i, k, E(u-1, 4+n))
                put(i, 1, C(u-1, 0)); put(i, 1, C(u-1, 1)); put(i, 5, C(u-1, 2)); put(i, 8, C(u-1, 3))
        off = SLOT if par == 0 else 0
        for t in head: put(0, 3, t)
        if reads:
            kr = kreads(par ^ 1, off); vrd = vreads(par ^ 1, off)
            kpos = [(0, 7), (0, 12), (1, 3), (1, 7)]
            for n, (i, k) in enumerate(kpos):
                put(i, k, kr[2*n]); put(i, k, kr[2*n+1])
            vpos = [(i, k) for i in (2, 3, 4, 5) for k in (3, 7)]
            for n, (i, k) in enumerate(vpos):
                put(i, k, vrd[2*n]); put(i, k, vrd[2*n+1])
        n = NCH[j]; g0 = G0[j]
        if n:
            dall = [(0, 10), (0, 16), (1, 12), (2, 10), (3, 10), (3, 16), (4, 12), (5, 10)]
            mall = [(0, 8), (0, 10), (0, 16), (1, 12), (2, 10), (3, 10), (3, 16), (4, 12)]
            aall = [(0, 3), (0, 14), (1, 10), (1, 14), (2, 14), (3, 12), (4, 10), (4, 14)]
            if cfg.burst:
                a_, b_ = cfg.burst - 1, cfg.burst + 2
                dall = [(a_, 10), (a_, 12), (a_, 14), (a_, 16), (b_, 10), (b_, 12), (b_, 14), (b_, 16)]
                mall = [(a_, 8), (a_, 10), (a_, 12), (a_, 14), (b_, 8), (b_, 10), (b_, 12), (b_, 14)]
                aall = [(a_, 5), (a_, 11), (a_, 13), (a_, 15), (b_, 5), (b_, 11), (b_, 13), (b_, 15)]
            sel = list(range(n)) if j == 29 else [(k * 8) // n for k in range(n)]
            items = []
            for c, k in enumerate(sel):
                g = g0 + c; tile = g >> 3
                if not inloop: m = f"s_add_u32 m0, s75, {SLOT * (tile & 3) + CH * (g & 7)}"
                elif (tile >> 1) % 2 == (j >> 1) % 2: m = f"s_add_u32 m0, s73, {SLOT * (tile & 1) + CH * (g & 7)}"
                else: m = f"s_add_u32 m0, s72, {SLOT * (tile & 1) + CH * (g & 7)}"
                items.append((k, m))
            for k, m in items: put(*dall[k], f"buffer_load_dwordx4 v0, s[52:55], s71 offen {cfg.nt_kv} lds")
            for k, m in items:
                put(*mall[k], m)
                put(*aall[k], "s_add_u32 s71, s71, 1024"); put(*aall[k], "s_and_b32 s71, s71, 0x3ffff")
        if inloop and par == 1:
            put(5, 16, "s_mov_b32 s72, s73"); put(5, 16, "s_sub_u32 s73, s73, s74")
        if par == 0:
            put(2, 12, "v_add_u32 v2, s74, v2")
            put(5, 14, "v_add_u32 v3, s74, v3")
        else:
            put(5, 14, "s_sub_u32 s74, 0, s74")
        fpos = [(i, k) for i in range(6) for k in (10, 12, 14, 16)]
        fpos = [x for x in fpos if x not in ((0, 12), (2, 12), (5, 14)) and not gaps.get(17*x[0] + x[1])]
        assert len(extra) <= len(fpos)
        for grp, (i, k) in zip(extra, fpos):
            for t in grp: put(i, k, t)
        if last:
            u = 6*j + 5
            mfl += PV(u - 1) + PV(u)
            b = 102
            for k, t in ((0, E(u,4)), (1, C(u,0)), (1, C(u,1)), (2, E(u,5)), (3, E(u,6)), (4, C(u,2)), (5, E(u,7)), (7, C(u,3))):
                gaps.setdefault(b + k, []).append(t)
            fill(gaps, 17*3 + 4, 17, epi(0))
            fill(gaps, 17*4 + 4, 17, epi(1))
            fill(gaps, 17*5 + 4, 17, epi(2))
            fill(gaps, b + 4, 9, epi(3))
            fill(gaps, b + 13, 5, epi(4)[:16])
        s = Stream()
        s("s_barrier", need)
        s.extend(interleave(mfl, gaps))
        if endw != "": s(endw or f"s_waitcnt vmcnt({min(cfg.kvwt, allowed(j))}) lgkmcnt(0)")
        return s
    w0 = Stream()
    w0("L_W0:")
    w0.extend(window(0, endw=f"s_waitcnt vmcnt({cfg.kvw0}) lgkmcnt(0)"))
    w0.extend(window(1, endw=f"s_waitcnt vmcnt({cfg.kvw1}) lgkmcnt(0)"))
    w0.ins = pad_hazards(w0.ins, qe.ins[-16:])
    loop = Stream()
    loop("L_LOOP:")
    if cfg.lax:
        for jj, lb in ((2, "L_LX0"), (3, "L_LX1")):
            loop.extend(window(jj, endw="", inloop=True))
            loop("s_cmp_lt_u32 s68, s42")
            loop(f"s_waitcnt vmcnt({allowed(2)}) lgkmcnt(0)")
            loop(f"s_cbranch_scc1 {lb}")
            loop("s_cmp_lt_u32 s68, s43")
            loop(f"s_waitcnt vmcnt({cfg.kvwE})", "pace")
            loop(f"s_cbranch_scc1 {lb}")
            loop(f"s_waitcnt vmcnt({cfg.kvw})", "pace")
            loop(f"{lb}:")
    else:
        loop.extend(window(2)); loop.extend(window(3))
    if cfg.stamps == 2:
        loop("s_memrealtime s[98:99]")
        loop("s_sub_u32 m0, 28, s68")
        loop("s_waitcnt lgkmcnt(0)")
        loop("v_writelane_b32 v15, s98, m0")
    loop("s_sub_u32 s68, s68, 1")
    loop("s_cbranch_scc0 L_LOOP")
    tail = Stream()
    stamp(tail, cfg, 12)
    for jj in range(2 * LT + 2, 29): tail.extend(window(jj))
    wx = [["s_mul_i32 s64, s6, 327680"]]
    for st_ in range(3):
        ch = dma_chain(wodma("s70", WOR[st_]))
        ch[-1] = ch[-1] + WOADV
        wx[-1] = wx[-1] + ch[0]; ch = ch[1:]
        wx += ch
    ex = [[f"s_mov_b32 s15, {f32bits(float('inf') if (cfg.x_nowait or cfg.x_nodma) else (THR if not cfg.force_fb else 1.0)):#x}", "s_mov_b64 s[12:13], 0"],
          ["s_mov_b32 s14, 0", "s_mul_i32 s10, s9, 49152"],
          ["s_mul_i32 s11, s8, 6144", "s_add_u32 s10, s10, s11"],
          [f"s_add_u32 s10, s10, {OWN_OFF}", "v_add_u32 v13, s10, v0"]]
    tail.extend(window(29, extra=ex))
    tail.extend(window(30, extra=wx, endw="s_waitcnt lgkmcnt(0)"))
    stamp(tail, cfg, 13)
    tail.extend(window(31, reads=False, last=True, endw=""))
    stamp(tail, cfg, 4)
    tail.ins = pad_hazards(tail.ins, loop.ins[-16:])
    ep = Stream()
    ep("s_lshl_b32 s10, s7, 3")
    ep("v_mov_b32 v16, s10")
    ep("global_load_dwordx2 v[56:57], v16, s[38:39] sc1")
    ep("v_mov_b32 v58, s30")
    ep("v_add_u32 v60, 65536, v58")
    ep("v_and_b32 v59, 7, v1")
    ep("v_lshl_add_u32 v59, v59, 7, s31")
    ep("v_and_b32 v61, 3, v1")
    ep("v_max_u32 v61, 1, v61")
    ep("v_add_u32 v61, s4, v61")
    ep("v_and_b32 v61, 3, v61")
    ep("v_lshl_add_u32 v61, v61, 10, s32")
    ep("v_add_u32 v62, s33, v0")
    ep("v_add_u32 v63, 49152, v62")
    for t in epi(4)[16:] + epi(5): ep(t)
    ep("s_cmp_lg_u64 s[12:13], 0")
    ep("s_cselect_b32 s10, 1, 0")
    ep("v_mov_b32 v16, s10")
    ep("s_lshl_b32 s10, s60, 2")
    ep(f"s_add_u32 s10, s10, {FLAG_OFF}")
    ep("v_mov_b32 v17, s10")
    ep(f"v_mov_b32 v18, {FLAG_OFF}")
    ep("ds_write_b32 v17, v16")
    ep("global_load_dwordx2 v[228:229], v59, s[40:41] sc1")
    ep("s_waitcnt vmcnt(26) lgkmcnt(0)")
    ep("s_barrier", "s[84:87]:0")
    ep("ds_read_b128 v[20:23], v18")
    for nt in range(10):
        for w in range(2): ep(f"ds_read_b64_tr_b16 {vr(TA(0, nt) + 2*w, 2)}, v{9 + (nt & 1)} offset:{WOR[0] + 5120*w + 32*(nt & ~1)}")
    own = [f"ds_read_b128 {ar(TOWN(u, i))}, v{62 + (u >> 2)} offset:{12288*(u & 3) + 1024*i}" for u in range(8) for i in range(3)]
    for t in own[:6]: ep(t)
    ep("s_waitcnt lgkmcnt(15)")
    ep("v_or_b32 v20, v20, v21")
    ep("v_or3_b32 v20, v20, v22, v23")
    ep("v_readfirstlane_b32 s10, v20")
    ep("s_andn2_b32 s10, s10, s78")
    if cfg.x_nowait or cfg.x_nodma: ep("s_mov_b32 s10, 0")
    ep("s_cmp_lg_u32 s10, 0")
    ep("s_cbranch_scc1 L_FALLBACK")
    stamp(ep, cfg, 5)
    def signal(s, w):
        s(f"s_waitcnt vmcnt({w})")
        s(f"s_mov_b32 s79, {SPIN_MAX}")
        s("L_TAG:")
        s("v_readfirstlane_b32 s10, v56")
        s("s_nop 0")
        s("s_cmp_lg_u32 s10, 0")
        s("s_cbranch_scc1 L_TAGOK")
        s("s_lshl_b32 s10, s7, 3")
        s("v_mov_b32 v230, s10")
        s("s_sleep 2")
        s("s_sub_u32 s79, s79, 1")
        s("global_load_dwordx2 v[56:57], v230, s[38:39] sc1")
        s("s_waitcnt vmcnt(0)", "spin")
        s("s_cbranch_scc0 L_TAG")
        s("L_TAGOK:")
        s("global_store_dwordx2 v58, v[56:57], s[40:41] sc1")
    if cfg.sigp < 0: signal(ep, 1)
    ep("s_waitcnt lgkmcnt(0)")
    stamp(ep, cfg, 6)
    ep.ins = pad_hazards(ep.ins, tail.ins[-16:])

    def poll(s, lbl, vaddr, first_issued):
        s(f"s_mov_b32 s79, {SPIN_MAX}")
        if first_issued: s(f"s_branch {lbl}_C")
        s(f"{lbl}:")
        s(f"global_load_dwordx2 v[228:229], {vaddr}, s[40:41] sc1")
        s(f"{lbl}_C:")
        s("s_waitcnt vmcnt(0)")
        s("v_cmp_ne_u64 vcc, v[228:229], v[56:57]")
        s("s_sub_u32 s79, s79, 1")
        s(f"s_cbranch_scc1 {lbl}_OK")
        s("s_cmp_lg_u64 vcc, 0")
        s(f"s_cbranch_scc1 {lbl}")
        s(f"{lbl}_OK:")
    def OB(p, i):
        t, u = p >> 3, p & 7
        return (96 if t % 2 == 0 else 0) + 12 * u + 4 * i
    def oload(p, i):
        t, u = p >> 3, p & 7
        return f"buffer_load_dwordx4 {ar(OB(p, i))}, v{(0, 11, 12)[i]}, s[88:91], s{16 + 2*(t-1) + (u >> 2)} offen offset:{1024*(u & 3)} {cfg.old}"
    def treads2(p):
        st_ = p >> 1
        return [f"ds_read_b64_tr_b16 {vr(TA(p & 1, nt) + 2*w, 2)}, v{9 + (nt & 1)} offset:{WOR[st_ % 3] + 10240*(p & 1) + 5120*w + 32*(nt & ~1)}"
                for nt in range(10) for w in range(2)]
    FLD = "global_load_dwordx2 v[228:229], v59, s[40:41] sc1"
    def tper(p, items, pre=()):
        mfl = []
        for nt in range(10):
            for i in range(3):
                a = vr(TACC(i, nt))
                mfl.append(f"{MF} {a}, {vr(TA(p & 1, nt))}, {ar(OB(p, i))}, {'0' if p == 0 else a}")
        gaps = {}; s = Stream(); tags = []; grp = []
        if p & 1:
            s("s_barrier", "s[84:87]:5" if p <= 27 else "s[84:87]:0")
            stg = (p + 1) // 2 + 2
            if stg <= 15:
                ch = dma_chain(wodma("s70", WOR[stg % 3])); ch[-1] = ch[-1] + [WOADV[0]]
                grp += ch + [WOADV[1:]]; tags += [("w", stg)] * 5
        for tg_, t in items:
            grp.append([t])
            if tg_ is not None: tags.append(tg_)
        for t in pre: s(t)
        if grp: spread(gaps, grp, 0, 27, cap=2)
        if p < 31: spread(gaps, [[t] for t in treads2(p + 1)], 0, 24, cap=2)
        assert max(gaps, default=0) <= 29, max(gaps)
        s.extend(interleave(mfl, gaps))
        return s, tags
    def need_after(p):
        n = [("o", p + 1)]
        if p % 2 == 0: n.append(("w", p // 2 + 1))
        return n
    def minwait(q, needs):
        idx = [k for k, x in enumerate(q) if x in needs]
        return (len(q) - 1 - idx[-1]) if idx else None
    def check_partner(s, lbl, k):
        s(f"s_and_b64 s[10:11], s[22:23], s[{24 + 2*k}:{25 + 2*k}]")
        s(f"s_cbranch_scc0 {lbl}_OK")
        s(f"s_mov_b32 s79, {SPIN_MAX}")
        s(f"{lbl}:")
        s(FLD)
        s("s_waitcnt vmcnt(0)", "spin")
        s("v_cmp_ne_u64 s[22:23], v[228:229], v[56:57]")
        s("s_sub_u32 s79, s79, 1")
        s(f"s_cbranch_scc1 {lbl}_OK")
        s(f"s_and_b64 s[10:11], s[22:23], s[{24 + 2*k}:{25 + 2*k}]")
        s(f"s_cbranch_scc1 {lbl}")
        s(f"{lbl}_OK:")
    allo = [(("o", p), oload(p, i)) for p in range(8, 32) for i in range(3)]
    when = []
    for n in range(72):
        p = 8 + n // 3
        when.append(max(cfg.pollp + (n * 10) // cfg.orate, p - 15 if p >= 16 else 0, 8 if p >= 16 else 0))
    n0 = sum(1 for x in when if x < 8)
    p1 = allo[:n0]
    def trip0(mode, q):
        s = Stream(); q = list(q)
        fast = mode == "fast"
        first = cfg.dp if fast else cfg.pollp
        nsp = 8 - first - (1 if fast else 0)
        for u in (range(cfg.dp) if mode == "pre" else range(cfg.dp, 8)):
            items = []
            if u < 3: items += [(None, t) for t in own[6 + 6*u: 12 + 6*u]]
            if mode == "slow" and u == cfg.fldp: items.append((("f", 1), FLD))
            pre = Stream()
            if mode == "slow" and u == cfg.pollp:
                w = minwait(q, [('f', 1)])
                if w is not None: pre(f"s_waitcnt vmcnt({w})")
                pre("v_cmp_ne_u64 s[22:23], v[228:229], v[56:57]")
                pre("s_nop 0")
                check_partner(pre, "L_PA", 0)
                stamp(pre, cfg, 7)
            if mode != "pre" and first <= u < first + nsp:
                k = u - first
                items += p1[(k * n0) // nsp: ((k + 1) * n0) // nsp]
            s.extend(pre)
            st_, tags = tper(u, items)
            s.extend(st_); q += tags
            if mode == "pre" and u == cfg.sigp:
                w = minwait(q, [("ost", 0)]); signal(s, w); q = q[len(q) - w:] + [("s", 0)]
            nd = need_after(u)
            if fast and u == 7: nd = nd + [("w", 5)] + [x for x, _ in p1[:n0 - 4]]
            if mode == "pre" and u == cfg.dp - 1: nd = nd + [("f", 0)]
            w = minwait(q, nd)
            s(f"s_waitcnt vmcnt({w}) lgkmcnt(0)" if w is not None else "s_waitcnt lgkmcnt(0)")
            if w is not None: q = q[len(q) - w:] if w else []
            if cfg.stamps == 3: stamp(s, cfg, 16 + u)
        return s, q
    t0p, qp = trip0("pre", [("f", 0), ("s", 0)] if cfg.sigp < 0 else [("ost", 0), ("f", 0)])
    t0p("v_cmp_ne_u64 s[22:23], v[228:229], v[56:57]")
    t0p("s_nop 0")
    t0p("s_and_b64 s[10:11], s[22:23], s[24:25]")
    t0p("s_cbranch_scc0 L_T0F")
    t0, qs = trip0("slow", qp)
    t0("L_T1:")
    tf = Stream(); tf("L_T0F:")
    stamp(tf, cfg, 7)
    tf_, qf = trip0("fast", qp); tf.extend(tf_); tf("s_branch L_T1")
    tl = Stream()
    stamp(tl, cfg, 14)
    for p in range(8, 32):
        items = []
        pre = Stream()
        if p == when[24]: check_partner(pre, "L_PA2", 1)
        if p == when[48]: check_partner(pre, "L_PA3", 2)
        items += [allo[n] for n in range(72) if when[n] == p]
        tl.extend(pre)
        st_, tags = tper(p, items)
        tl.extend(st_); qs += tags; qf += tags
        ws_ = [w for w in (minwait(qs, need_after(p)), minwait(qf, need_after(p))) if w is not None]
        if p < 31: tl(f"s_waitcnt vmcnt({min(ws_)}) lgkmcnt(0)" if ws_ else "s_waitcnt lgkmcnt(0)")
        if cfg.stamps == 3 and p < 16: stamp(tl, cfg, 16 + p)
        if ws_:
            w = min(ws_)
            qs = qs[max(0, len(qs) - w):] if w else []
            qf = qf[max(0, len(qf) - w):] if w else []
    PS = 15360
    fin = Stream()
    stamp(fin, cfg, 8)
    fin("s_lshl_b32 s10, s7, 2")
    fin("s_add_u32 s10, s10, s6")
    fin("s_lshl_b32 s10, s10, 2")
    fin("s_add_u32 s11, s10, s60")
    fin("s_lshl_b32 s11, s11, 2")
    fin("s_add_u32 s11, s11, s4")
    fin(f"s_mul_i32 s11, s11, {PS}")
    fin(f"s_add_u32 s11, s11, {P_OFF}")
    fin("s_add_u32 s52, s40, s11")
    fin("s_addc_u32 s53, s41, 0")
    fin("s_and_b32 s53, s53, 0xffff")
    fin(f"s_mov_b32 s54, {PS}")
    fin("s_mov_b32 s11, 0")
    fin(f"v_add_u32 v17, {OWN_OFF}, v0")
    fin("s_cmp_eq_u32 s60, s4")
    fin("s_cbranch_scc1 L_OWNSLAB")
    for pp in range(15):
        b = 64 + 8*pp
        for p in range(4): fin(f"v_cvt_pk_bf16_f32 v{b+p}, v{b+2*p}, v{b+2*p+1}")
        fin(f"buffer_store_dwordx4 {vr(b)}, v0, s[52:55], s11 offen offset:{1024*(pp & 3)} {cfg.pst}")
        if pp & 3 == 3: fin("s_add_u32 s11, s11, 4096")
    fin("s_branch L_SLABDONE")
    fin("L_OWNSLAB:")
    for T in range(30): fin(f"ds_write_b128 v17, {vr(64 + 4*T)} offset:{1024*T}")
    fin("L_SLABDONE:")
    fin("s_add_u32 s11, s10, s4")
    fin(f"s_mul_i32 s11, s11, {4*PS}")
    fin(f"s_add_u32 s11, s11, {P_OFF}")
    fin("s_add_u32 s56, s40, s11")
    fin("s_addc_u32 s57, s41, 0")
    fin("s_and_b32 s57, s57, 0xffff")
    fin(f"s_mov_b32 s58, {4*PS}")
    fin("s_mul_i32 s10, s62, 192")
    fin("s_mul_i32 s11, s4, 48")
    fin("s_add_u32 s10, s10, s11")
    fin("s_mul_i32 s10, s10, 2560")
    fin("s_mul_i32 s11, s61, 1280")
    fin("s_add_u32 s10, s10, s11")
    fin("s_mul_i32 s11, s6, 320")
    fin("s_add_u32 s10, s10, s11")
    fin("s_add_u32 s44, s36, s10")
    fin("s_addc_u32 s45, s37, 0")
    fin("s_and_b32 s45, s45, 0xffff")
    fin("s_sub_u32 s46, 3932160, s10")
    fin("v_and_b32 v20, 15, v1")
    fin("v_mul_u32_u24 v20, 2560, v20")
    fin("v_bfe_u32 v21, v1, 4, 1")
    fin("v_lshl_add_u32 v20, v21, 5, v20")
    fin("v_lshrrev_b32 v21, 5, v1")
    fin("v_lshl_add_u32 v18, v21, 4, v20")
    fin("s_lshl_b32 s10, s60, 10")
    fin("v_add_u32 v16, s10, v0")
    for k in range(1, 4):
        fin(f"s_add_u32 s10, s4, {k}")
        fin("s_and_b32 s10, s10, 3")
        fin(f"s_mul_i32 s10, s10, {PS}")
        fin(f"v_add_u32 v{20+k}, s10, v16")
    fin("s_lshl_b32 s10, s60, 11")
    fin("v_add_u32 v17, s10, v17")
    fin("s_waitcnt vmcnt(0) lgkmcnt(0)")
    fin("global_store_dwordx2 v60, v[56:57], s[40:41] sc1")
    fin("s_barrier")
    for m in range(4):
        for h in range(2):
            fin(f"ds_read_b128 {vr(64 + 32*m + 4*h)}, v17 offset:{8192*m + 1024*h}")
    stamp(fin, cfg, 9)
    poll(fin, "L_PB", "v61", False)
    stamp(fin, cfg, 10)
    fin("s_cmp_eq_u32 s60, 3")
    fin("s_cselect_b32 s14, 0x40000000, 12288")
    fin("s_mov_b32 s12, 4096")
    fin("s_mov_b32 s13, 8192")
    for m in range(4):
        so = ("0", "s12", "s13", "s14")[m]
        for k in range(3):
            fin(f"buffer_load_dwordx4 {vr(64 + 32*m + 8 + 4*k)}, v{21+k}, s[56:59], {so} offen {cfg.pld}")
    fin("s_mov_b32 s67, 0xffff0000")
    fin("s_waitcnt lgkmcnt(0)")
    for m in range(4):
        fin(f"s_add_u32 s10, s60, {4*m}")
        fin("s_mul_i32 s11, s10, 13")
        fin("s_lshr_b32 s11, s11, 6")
        fin("s_mul_i32 s15, s11, 5")
        fin("s_sub_u32 s15, s10, s15")
        fin(f"s_mul_i32 s11, s11, {16*2560}")
        fin("s_lshl_b32 s15, s15, 6")
        fin("s_add_u32 s11, s11, s15")
        if m == 3:
            fin("s_cmp_eq_u32 s60, 3")
            fin("s_cselect_b32 s11, 0x40000000, s11")
        fin(f"s_waitcnt vmcnt({9 - 3*m + m})")
        d = 64 + 32*m
        for k in range(3):
            for p in range(4):
                x = d + 8 + 4*k + p
                fin(f"v_lshlrev_b32 v{d+20+2*p}, 16, v{x}")
                fin(f"v_and_b32 v{d+21+2*p}, s67, v{x}")
            for p in range(4):
                fin(f"v_pk_add_f32 {vr(d+2*p,2)}, {vr(d+2*p,2)}, {vr(d+20+2*p,2)}")
        for p in range(4): fin(f"v_cvt_pk_bf16_f32 v{d+p}, v{d+2*p}, v{d+2*p+1}")
        fin(f"v_permlane16_swap_b32 v{d}, v{d+2}")
        fin(f"v_permlane16_swap_b32 v{d+1}, v{d+3}")
        fin(f"buffer_store_dwordx4 {vr(d)}, v18, s[44:47], s11 offen {cfg.outst}")
    if cfg.stamps:
        fin("s_waitcnt vmcnt(0)")
        stamp(fin, cfg, 11)
        fin("s_lshl_b32 s10, s2, 2")
        fin("s_add_u32 s10, s10, s60")
        fin("s_lshl_b32 s10, s10, 8")
        fin(f"s_add_u32 s10, s10, {STAMP_OFF}")
        fin("v_lshlrev_b32 v16, 2, v1")
        fin("v_add_u32 v16, s10, v16")
        fin("global_store_dword v16, v15, s[40:41]")
    if cfg.diag:
        a_, b_ = cfg.diag // 100, cfg.diag % 100
        fin(f"v_readlane_b32 s10, v15, {a_ % 32}")
        fin(f"v_readlane_b32 s11, v15, {b_}")
        fin(f"v_readlane_b32 s12, v15, 11")
        fin("s_nop 4")
        fin("s_sub_u32 s10, s11, s10")
        fin("s_lshl_b32 s10, s10, 2")
        fin("L_DIAG:")
        fin("s_memrealtime s[98:99]")
        fin("s_waitcnt lgkmcnt(0)")
        fin("s_sub_u32 s11, s98, s12")
        fin("s_cmp_lt_u32 s11, s10")
        fin("s_cbranch_scc1 L_DIAG")
    fin("L_END:")
    fin("s_endpgm")
    fin.ins = pad_hazards(fin.ins, tl.ins[-16:])
    fb = Stream()
    fb("L_FALLBACK:")
    fb("s_mov_b32 s78, 1")
    fb("s_mov_b32 s71, 0")
    fb("s_mov_b32 s72, 4096")
    fb("s_mov_b32 s68, 31")
    fb("s_waitcnt vmcnt(0) lgkmcnt(0)")
    for i in R6: fb(f"v_mov_b32 v{NEGM(i)}, 0xff800000")
    fbl = Stream()
    fbl("L_FBLOOP:")
    fbl("s_barrier")
    for m, d in kvdma("s75", 0):
        fbl(m); fbl("s_nop 0"); fbl(d)
    for t in kvadv: fbl(t)
    fbl("s_waitcnt vmcnt(0)")
    fbl("s_barrier")
    for t in kreads(0, 0): fbl(t)
    fbl("s_waitcnt lgkmcnt(0)")
    for kt in range(2):
        for kk in range(4):
            for i in R6:
                d = vr(O0 + 8*i + 4*kt)
                fbl(f"{MF} {d}, {ar(KF(0, 4*kt+kk))}, {ar(QF(i, kk))}, {'0' if kk == 0 else d}")
    fbl("s_nop 7")
    for p in range(4):
        for i in R6:
            fbl(f"v_max3_f32 v{NEGM(i)}, v{NEGM(i)}, v{O0+8*i+2*p}, v{O0+8*i+2*p+1}")
    fbl("s_sub_u32 s68, s68, 1")
    fbl("s_cbranch_scc0 L_FBLOOP")
    fb2 = Stream()
    for i in R6:
        for r in (1, 2, 3): fb2(f"v_mov_b32 v{NEGM(i)+r}, v{NEGM(i)}")
    fb2("s_barrier")
    for t in range(4):
        for m, d in kvdma("s75", t * SLOT):
            fb2(m); fb2("s_nop 0"); fb2(d)
        for x in kvadv: fb2(x)
    fb2("s_waitcnt vmcnt(0)")
    parts = [pro, q0, qloop, qtail, qe, w0, loop, tail, ep, t0p, t0, tl, fin, tf, fb, fbl, fb2, st]
    def mk(lst):
        t = []
        for p in lst: t += p.ins
        out = []; skip = False
        for x in t:
            if x.cmt == "pace": continue
            if x.cmt == "spin": out.pop(); continue
            out.append(x)
        return out
    tr = mk([pro, q0, qloop, qtail, qe, w0, loop, loop, tail, ep, t0p, t0, tl, fin])
    tr3 = mk([tail, ep, t0p, tf, tl, fin])
    cut = [k for k, x in enumerate(ep.ins) if "L_FALLBACK" in x.text][0]
    epc = Stream(); epc.ins = ep.ins[:cut+1]
    tr2 = mk([loop, tail, epc, fb, fbl, fbl, fb2, st, w0])
    rules = [("s[44:47]", 0), ("s[48:51]", 0), ("s[52:55]", 0), ("s[84:87]", 0)]
    errs = []
    for nm_, t in (("main", tr), ("fb", tr2), ("fast", tr3)):
        errs += check_hazards(t, nm_) + check_waits(t, nm_) + check_dma(t, rules, nm_) + check_scc(t, nm_)
    errs = [e for e in errs if "buffer_load_dword a252" not in e]
    return parts, errs

KD = """.amdhsa_kernel {name}
  .amdhsa_next_free_vgpr 512
  .amdhsa_next_free_sgpr 102
  .amdhsa_accum_offset 256
  .amdhsa_group_segment_fixed_size 0
  .amdhsa_kernarg_size 104
  .amdhsa_user_sgpr_count 2
  .amdhsa_user_sgpr_kernarg_segment_ptr 1
  .amdhsa_system_sgpr_workgroup_id_x 1
.end_amdhsa_kernel
"""

def build_asm(cfg):
    ref = open(f"cdna_kernels/{NAME}.s.ref").read()
    head = []
    for line in ref.splitlines():
        if line.startswith(";") and "@launch" not in line: head.append(line)
        elif not line.startswith(";"): break
    nm = NAME + "_kernel"
    out = "\n".join(head) + "\n"
    out += "; @launch grid=(256,1,1) block=(256,1,1) lds=163840\n"
    out += '.amdgcn_target "amdgcn-amd-amdhsa--gfx950"\n.text\n'
    parts, errs = gen(cfg)
    out += f".globl {nm}\n.p2align 8\n.type {nm},@function\n{nm}:\n"
    for p in parts: out += p.text()
    out += f".fill (66560 - (. - {nm})) / 4, 4, 0xbf800000\n"
    out += '.section .rodata,"a"\n.p2align 6\n' + KD.format(name=nm)
    return out, errs

if __name__ == "__main__":
    cfg = Cfg()
    outp = f"cdna_kernels/{NAME}.s"
    for a in sys.argv[1:]:
        if a.startswith("out="): outp = a[4:]; continue
        k, v = a.split("=")
        cur = getattr(cfg, k)
        setattr(cfg, k, type(cur)(int(v)) if not isinstance(cur, str) else v.replace("+", " "))
    asm, errs = build_asm(cfg)
    for e in errs[:6]: print(e[:200])
    print(len(errs), "errors")
    open(outp, "w").write(asm)
    print("wrote", outp, len(asm), "bytes")
```

```python
import sys, struct, math
sys.path.insert(0, "work")
from asmlib import *

NAME = "concat_heads__mha_block_cached__gqa_block_cached__near_ridge"
MF = "v_mfma_f32_16x16x32_bf16"
def f32bits(x): return struct.unpack("<I", struct.pack("<f", x))[0]

CH = 1056
SUB = 8416
SLOT = 4 * SUB
XSL = [4 * SLOT, SLOT, SLOT + 24576]
WSL = [3 * SLOT, 3 * SLOT + 2 * SUB, SLOT + 49152]
FLAG_OFF = 61440
OWN_OFF = 65536
WOR = [0, 20480, 40960]
P_OFF = 32 << 20
F_OFF = 63 << 20
SCALE = math.log2(math.e) / math.sqrt(128.0)
THR = 2.0 ** 40
STAMP_OFF = 64 << 20
SPIN_MAX = 1 << 20

class Cfg:
    stamps = 0
    nt_kv = "nt"
    nt_xw = ""
    nt_wo = ""
    rot = 5
    d3 = 0
    outst = ""
    lax = 1
    laxE = 1
    laxL2 = 1
    pkq = 1
    kvb = 0
    diag = 0
    orate = 35
    old = "sc1"
    pst = "sc1"
    pld = "sc1"
    preflag = 1
    nsp = 3
    fldp = 1
    dp = 1
    fstrict = 4
    tlw2 = 63
    t0slack = 0
    tlw = 14
    kvwE = 6
    cls = 0
    x_nowait = 0
    x_nodma = 0
    x_hot = 0
    up = 0
    upp = 3
    nt_up = "nt"
    laxw = 16
    fine = 1
    wo_win = 30
    nt_tw = ""
    ost = "sc1"
    qrot = 0
    kvw = 3
    kvw0 = 3
    kvw1 = 3
    pollp = 4
    force_fb = False
    warm_wo = 2
    twp = 19
    kvp0 = 1
    kvp1 = 16
    local_o = 0
    warm_code = 1
    pbf16 = 1
    force_remote = 0

def vr(b, n=4): return f"v[{b}:{b+n-1}]"
def ar(b, n=4): return f"a[{b}:{b+n-1}]"

O0 = 64
def OACC(i, dt): return O0 + 32 * i + 4 * dt
def SREG(par, kt): return 16 + 8 * par + 4 * kt
def PREG(par): return 32 + 4 * par
def NEGM(i): return 40 + 4 * i
def QF(i, kk): return 16 * i + 4 * kk
def KF(par, f): return 96 + 32 * par + 4 * f
def VF(par, dt): return 160 + 32 * par + 4 * dt
def LACC(i): return 224 + 4 * i
ONES = 248
def QA(par, dt): return 96 + 32 * par + 4 * dt
def QB(par, i): return 160 + 32 * par + 4 * i
def TACC(i, nt): return 64 + 4 * (10 * i + nt)
def TA(par, nt): return (184 if par == 0 else 16) + 4 * nt
def TB_(u, i): return 12 * u + 4 * i
def TOWN(u, i): return 96 + 12 * u + 4 * i

NST = 12
def stamp(s, cfg, n):
    if cfg.stamps:
        s("s_memrealtime s[98:99]")
        s("s_memtime s[100:101]")
        s("s_waitcnt lgkmcnt(0)")
        s(f"v_writelane_b32 v15, s98, {n}")
        s(f"v_writelane_b32 v15, s100, {32 + n}")

def spread(gaps, items, lo, hi, cap=2):
    n = len(items)
    last = lo
    for k, it in enumerate(items):
        g = max(lo + (k * (hi - lo)) // n, last)
        while len(gaps.get(g, [])) + len(it) > cap: g += 1
        gaps.setdefault(g, []).extend(it)
        last = g

def dma_chain(dl):
    out = []
    for k, x in enumerate(dl):
        if k == 0: out.append([x[0]])
        nxt = [dl[k+1][0]] if k + 1 < len(dl) else []
        out.append([x[1]] + nxt)
    return out

def gen(cfg):
    R6 = range(6)
    pro = Stream(); s = pro
    s("s_cmp_ge_u32 s2, 256")
    s("s_cbranch_scc1 L_END")
    s("s_load_dwordx16 s[16:31], s[0:1], 0")
    s("s_load_dwordx8 s[32:39], s[0:1], 64")
    s("s_load_dwordx2 s[40:41], s[0:1], 96")
    s("s_memrealtime s[96:97]")
    s("v_lshrrev_b32 v17, 6, v0")
    s("v_and_b32 v1, 63, v0")
    if cfg.warm_code:
        s("s_getpc_b64 s[98:99]")
        s("s_lshr_b32 s5, s2, 3")
        s("s_lshl_b32 s5, s5, 11")
        s("v_lshrrev_b32 v16, 4, v0")
        s("v_lshl_add_u32 v16, v16, 7, s5")
        s("global_load_dword v16, v16, s[98:99]")
    s("s_and_b32 s4, s2, 7")
    s("s_lshr_b32 s5, s2, 3")
    s("v_readfirstlane_b32 s60, v17")
    s("s_lshr_b32 s61, s4, 2")
    s("s_and_b32 s4, s4, 3")
    s("s_lshl_b32 s63, s4, 2")
    s("s_and_b32 s6, s5, 3")
    s("s_add_u32 s63, s63, s6")
    s("s_lshr_b32 s62, s5, 2")
    s("s_lshl_b32 s7, s61, 3")
    s("s_add_u32 s7, s7, s62")
    s("s_and_b32 s8, s60, 1")
    s("s_lshr_b32 s9, s60, 1")
    s("v_lshrrev_b32 v18, 4, v1")
    s("v_and_b32 v19, 15, v1")
    s("v_lshrrev_b32 v22, 3, v1")
    s("v_lshlrev_b32 v23, 1, v18")
    s("v_and_b32 v24, 7, v1")
    s("v_xor_b32 v23, v23, v24")
    s("v_mul_u32_u24 v22, 1280, v22")
    s("v_lshl_add_u32 v4, v23, 4, v22")
    s("s_mul_i32 s10, s60, 61440")
    s("v_add_u32 v4, s10, v4")
    for t in range(1, 6): s(f"v_add_u32 v{4+t}, {10240*t}, v4")
    s("v_lshrrev_b32 v22, 1, v18")
    s("v_lshlrev_b32 v22, 2, v22")
    s("v_and_b32 v23, 1, v18")
    s("v_lshl_add_u32 v22, v23, 4, v22")
    s("v_lshlrev_b32 v22, 13, v22")
    s("v_lshl_add_u32 v10, v19, 4, v22")
    s("s_lshl_b32 s10, s8, 16")
    s("s_lshl_b32 s11, s9, 8")
    s("s_add_u32 s10, s10, s11")
    s("v_add_u32 v10, s10, v10")
    for t in range(1, 4): s(f"v_add_u32 v{10+t}, {8192*t}, v10")
    s(f"s_mul_i32 s10, s9, {SUB}")
    s(f"s_mul_i32 s11, s8, {CH}")
    s("s_add_u32 s69, s10, s11")
    s("s_mul_i32 s70, s60, 6144")
    if cfg.qrot:
        s("s_lshl_b32 s10, s6, 1")
        s("s_add_u32 s10, s10, s62")
        s("s_mul_i32 s10, s10, 5")
        s("s_lshr_b32 s10, s10, 2")
        s("s_sub_u32 s11, s10, 10")
        s("s_cmp_ge_u32 s10, 10")
        s("s_cselect_b32 s10, s11, s10")
        s("s_lshl_b32 s64, s10, 7")
        s("s_lshl_b32 s65, s10, 19")
    else:
        s("s_mov_b32 s64, 0")
        s("s_mov_b32 s65, 0")
    s("s_waitcnt lgkmcnt(0)")
    if cfg.stamps:
        s("v_mov_b32 v15, 0")
        s("s_nop 0")
        s("v_writelane_b32 v15, s96, 0")
    s("s_or_b32 s10, s63, s60")
    s("s_cmp_lg_u32 s10, 0")
    s("s_cbranch_scc1 L_NOLEAD")
    s("s_lshl_b32 s10, s7, 3")
    s("s_or_b32 s96, s96, 1")
    s("v_mov_b32 v22, s10")
    s("v_mov_b32 v24, s96")
    s("v_mov_b32 v25, s97")
    s("global_store_dwordx2 v22, v[24:25], s[38:39] sc1")
    s("L_NOLEAD:")
    s("s_cmp_eq_u32 s61, 0")
    s("s_cselect_b64 s[44:45], s[16:17], s[26:27]")
    s("s_cselect_b64 s[48:49], s[22:23], s[32:33]")
    s("s_cselect_b64 s[12:13], s[18:19], s[28:29]")
    s("s_cselect_b64 s[14:15], s[20:21], s[30:31]")
    s("s_cselect_b64 s[84:85], s[24:25], s[34:35]")
    s("s_mul_i32 s10, s62, 245760")
    s("s_add_u32 s44, s44, s10")
    s("s_addc_u32 s45, s45, 0")
    s("s_and_b32 s45, s45, 0xffff")
    s("s_mov_b32 s46, 245760")
    s("s_mov_b32 s47, 0x20000")
    s("s_lshl_b32 s10, s63, 9")
    s("s_add_u32 s48, s48, s10")
    s("s_addc_u32 s49, s49, 0")
    s("s_and_b32 s49, s49, 0xffff")
    s("s_sub_u32 s50, 5242880, s10")
    s("s_mov_b32 s51, 0x20000")
    XADV = ["s_add_u32 s64, s64, 128", "s_cmp_eq_u32 s64, 1280", "s_cselect_b32 s64, 0, s64"]
    WADV = ["s_add_u32 s65, s65, 262144", "s_cmp_eq_u32 s65, 5242880", "s_cselect_b32 s65, 0, s65"]
    if cfg.x_hot: XADV = []; WADV = []
    def xdma(sreg, base, ts):
        return [(f"s_add_u32 m0, {sreg}, {base + 1024*t}", f"buffer_load_dwordx4 v{4+t}, s[44:47], s64 offen {cfg.nt_xw} lds") for t in ts]
    def wdma(sreg, base):
        return [(f"s_add_u32 m0, {sreg}, {base + 2*CH*r}", f"buffer_load_dwordx4 v{10+r}, s[48:51], s65 offen {cfg.nt_xw} lds") for r in range(4)]
    for st in range(2):
        for grp in dma_chain(xdma("s70", XSL[st], range(6)) + wdma("s69", WSL[st])):
            for t in grp: s(t)
        for t in XADV + WADV: s(t)
    upb = []
    if cfg.up:
        s("v_mul_u32_u24 v32, 13108, v1")
        s("v_lshrrev_b32 v32, 16, v32")
        s("v_mul_u32_u24 v33, 5, v32")
        s("v_sub_u32 v33, v1, v33")
        s("v_min_u32 v32, 11, v32")
        s("v_mul_u32_u24 v32, 1280, v32")
        s("v_lshl_add_u32 v32, v33, 7, v32")
        s("s_lshl_b32 s10, s6, 2")
        s("s_add_u32 s10, s10, s60")
        s("s_mul_i32 s96, s10, 15360")
        s("v_lshrrev_b32 v33, 2, v1")
        s("v_min_u32 v33, 9, v33")
        s("v_lshlrev_b32 v33, 13, v33")
        s("v_and_b32 v34, 3, v1")
        s("v_lshl_add_u32 v33, v34, 7, v33")
        s("s_lshl_b32 s10, s62, 2")
        s("s_add_u32 s10, s10, s60")
        s("s_mul_i32 s97, s10, 81920")
        s(f"buffer_load_dword a252, v32, s[44:47], s96 offen {cfg.nt_up}")
        s(f"buffer_load_dword a252, v33, s[48:51], s97 offen {cfg.nt_up}")
        s(f"s_add_u32 s97, s97, {320*8192}")
        upb = [("", f"buffer_load_dword a252, v32, s[44:47], s96 offen offset:640 {cfg.nt_up}"),
               ("", f"buffer_load_dword a252, v33, s[48:51], s97 offen {cfg.nt_up}")]
        if cfg.up == 1:
            for _, t in upb: s(t)
            upb = []
    s("v_lshlrev_b32 v0, 4, v1")
    s("v_and_b32 v20, 3, v1")
    s("v_bfe_u32 v21, v1, 2, 2")
    s("v_and_b32 v22, 1, v18")
    s("v_lshl_add_u32 v22, v21, 1, v22")
    s(f"v_mul_u32_u24 v22, {CH}, v22")
    s("v_lshrrev_b32 v23, 1, v18")
    s("v_lshl_add_u32 v22, v23, 8, v22")
    s("v_lshl_add_u32 v26, v20, 3, v22")
    s("v_xor_b32 v24, 2, v20")
    s("v_lshl_add_u32 v27, v24, 3, v22")
    s("v_and_b32 v22, 1, v21")
    s("v_lshl_add_u32 v22, v20, 1, v22")
    s(f"v_mul_u32_u24 v22, {CH}, v22")
    s("v_lshrrev_b32 v23, 1, v21")
    s("v_lshl_add_u32 v22, v23, 8, v22")
    s("v_lshlrev_b32 v23, 1, v18")
    s("v_mov_b32 v24, 0x9c")
    s("v_lshrrev_b32 v23, v23, v24")
    s("v_and_b32 v23, 3, v23")
    s("v_lshl_add_u32 v2, v23, 4, v22")
    s("v_and_b32 v22, 6, v19")
    s("v_xor_b32 v22, v22, v18")
    s("v_lshlrev_b32 v22, 4, v22")
    s("v_lshl_add_u32 v28, v19, 7, v22")
    s("s_mul_i32 s10, s8, 12288")
    s("v_add_u32 v28, s10, v28")
    s("v_xor_b32 v29, 64, v28")
    s(f"s_mul_i32 s10, s9, {2*SUB}")
    s("v_add_u32 v2, s10, v2")
    s(f"s_add_u32 s10, s10, {SUB}")
    s("v_add_u32 v3, s10, v26")
    s(f"s_mul_i32 s10, s9, {SUB}")
    s("v_add_u32 v26, s10, v26")
    s("v_add_u32 v27, s10, v27")
    s(f"s_mul_i32 s75, s60, {SUB}")
    s("s_cmp_eq_u32 s8, 0")
    s("s_cselect_b64 s[52:53], s[12:13], s[14:15]")
    s("s_lshl_b32 s10, s62, 5")
    s("s_lshl_b32 s11, s63, 1")
    s("s_add_u32 s11, s11, s9")
    s("s_add_u32 s10, s10, s11")
    s("s_lshl_b32 s10, s10, 18")
    s("s_add_u32 s52, s52, s10")
    s("s_addc_u32 s53, s53, 0")
    s("s_and_b32 s53, s53, 0xffff")
    s("s_mov_b32 s54, 262144")
    s("s_mov_b32 s55, 0x20000")
    s("s_mul_i32 s10, s7, 12")
    s("s_mul_i32 s12, s8, 6")
    s("s_add_u32 s10, s10, s12")
    s("s_lshl_b32 s10, s10, 17")
    s("s_lshl_b32 s11, s11, 12")
    s("s_add_u32 s10, s10, s11")
    s("s_add_u32 s56, s40, s10")
    s("s_addc_u32 s57, s41, 0")
    s("s_and_b32 s57, s57, 0xffff")
    s(f"s_mov_b32 s58, {5*131072 + 4096}")
    s("s_mov_b32 s59, 0x20000")
    s(f"s_mul_i32 s10, s4, {1024*1280}")
    s("s_add_u32 s92, s84, s10")
    s("s_addc_u32 s93, s85, 0")
    s("s_and_b32 s93, s93, 0xffff")
    s(f"s_mov_b32 s94, {1024*1280}")
    s("s_mov_b32 s95, 0x20000")
    s("s_mul_i32 s11, s6, 320")
    s("s_add_u32 s10, s10, s11")
    s("s_add_u32 s84, s84, s10")
    s("s_addc_u32 s85, s85, 0")
    s("s_and_b32 s85, s85, 0xffff")
    s("s_sub_u32 s86, 5242880, s10")
    s("s_mov_b32 s87, 0x20000")
    s("s_mul_i32 s10, s7, 12")
    s("s_mul_i32 s11, s60, 3")
    s("s_add_u32 s10, s10, s11")
    s("s_lshl_b32 s10, s10, 17")
    s("s_lshl_b32 s11, s4, 15")
    s("s_add_u32 s10, s10, s11")
    s("s_add_u32 s88, s40, s10")
    s("s_addc_u32 s89, s41, 0")
    s("s_and_b32 s89, s89, 0xffff")
    s(f"s_mov_b32 s90, {2*131072 + 32768}")
    s("s_mov_b32 s91, 0x20000")
    s("s_lshl_b32 s10, s7, 4")
    s("s_add_u32 s11, s10, s63")
    s("s_lshl_b32 s11, s11, 2")
    s("s_add_u32 s11, s11, s60")
    s("s_lshl_b32 s11, s11, 6")
    s(f"s_add_u32 s30, s11, {F_OFF}")
    s("s_lshl_b32 s11, s4, 2")
    s("s_add_u32 s11, s11, s10")
    s("s_lshl_b32 s11, s11, 2")
    s("s_add_u32 s11, s11, s9")
    s("s_lshl_b32 s11, s11, 6")
    s(f"s_add_u32 s31, s11, {F_OFF}")
    s("s_add_u32 s11, s10, s6")
    s("s_lshl_b32 s11, s11, 2")
    s("s_add_u32 s11, s11, s4")
    s("s_lshl_b32 s11, s11, 6")
    s(f"s_add_u32 s32, s11, {F_OFF + 65536}")
    s("s_mul_i32 s10, s60, 3072")
    s(f"s_add_u32 s33, s10, {OWN_OFF}")
    for k in range(3):
        s(f"s_add_u32 s10, s6, {k+1}")
        s("s_and_b32 s10, s10, 3")
        s(f"s_lshl_b32 s{16+2*k}, s10, 13")
        s(f"s_add_u32 s{17+2*k}, s{16+2*k}, 4096")
        s("s_lshl_b32 s10, s10, 1")
        s(f"s_lshl_b32 s{24+2*k}, 3, s10")
        s(f"s_mov_b32 s{25+2*k}, 0")
    s(f"s_mov_b32 s76, {f32bits(SCALE):#x}")
    s(f"s_mov_b32 s77, {f32bits(SCALE):#x}")
    s("s_mov_b32 s78, 0")
    if cfg.cls == 0: s("s_cmp_lt_u32 s4, 0")
    elif cfg.cls == 1: s("s_cmp_lt_u32 s4, 2")
    elif cfg.cls == 2: s("s_bitcmp0_b32 s4, 0")
    elif cfg.cls == 3: s("s_bitcmp0_b32 s62, 0")
    s(f"s_cselect_b32 s42, {cfg.laxE}, {cfg.lax}")
    s(f"s_cselect_b32 s43, 64, {cfg.laxL2}")
    if cfg.rot == 0: s("s_mov_b32 s71, 0")
    elif cfg.rot == 1: s("s_lshl_b32 s71, s5, 13")
    elif cfg.rot == 2:
        s("s_lshl_b32 s71, s2, 1")
        s("s_add_u32 s71, s71, s9")
        s("s_mul_i32 s71, s71, 0x9E3779B1")
        s("s_lshr_b32 s71, s71, 24")
        s("s_lshl_b32 s71, s71, 10")
    elif cfg.rot == 3:
        s("s_lshl_b32 s71, s5, 1")
        s("s_add_u32 s71, s71, s9")
        s("s_and_b32 s71, s71, 7")
        s("s_lshl_b32 s71, s71, 10")
    elif cfg.rot == 4:
        s("s_lshl_b32 s71, s9, 7")
        s("s_add_u32 s71, s71, s2")
        s("s_and_b32 s71, s71, 255")
        s("s_lshl_b32 s71, s71, 10")
    elif cfg.rot == 5:
        s("s_lshl_b32 s71, s5, 1")
        s("s_add_u32 s71, s71, s9")
        s("s_lshl_b32 s71, s71, 12")
    s("s_add_u32 s72, s71, 4096")
    for r, v in zip((80, 81, 82), WSL): s(f"s_mov_b32 s{r}, {v}")
    for r, v in zip((66, 67, 83), XSL): s(f"s_mov_b32 s{r}, {v}")
    for r in range(O0, 256): s(f"v_mov_b32 v{r}, 0")
    s("v_mov_b32 v17, 0x3f803f80")
    for r in range(4): s(f"v_accvgpr_write_b32 a{ONES+r}, v17")
    s("v_add_u32 v14, s66, v28")
    s("v_add_u32 v30, s80, v26")
    s("v_add_u32 v31, s80, v27")
    s("s_add_u32 s73, s82, s69")
    s("s_add_u32 s74, s83, s70")
    s(f"s_waitcnt vmcnt({10 + (0, 4, 2)[cfg.up]})")
    stamp(s, cfg, 1)
    pro.ins = pad_hazards(pro.ins)

    def kvdma(m0base_sreg, base):
        if cfg.fine:
            return [(f"s_add_u32 m0, {m0base_sreg}, {base + CH*c}\ns_add_u32 s71, s71, 1024\ns_and_b32 s71, s71, 0x3ffff",
                     f"buffer_load_dwordx4 v0, s[52:55], s71 offen {cfg.nt_kv} lds") for c in range(8)]
        return [(f"s_add_u32 m0, {m0base_sreg}, {base + CH*c - 1024*(c&3)}",
                 f"buffer_load_dwordx4 v0, s[52:55], s{71 + (c>>2)} offen offset:{1024*(c&3)} {cfg.nt_kv} lds") for c in range(8)]
    kvadv = ["s_add_u32 s71, s71, 8192", "s_and_b32 s71, s71, 0x3ffff", "s_add_u32 s72, s71, 4096"]
    if cfg.fine: kvadv = ["", "", ""]

    def wodma(sreg, base):
        return [(f"s_add_u32 m0, {sreg}, {base + 1024*t}", f"buffer_load_dwordx4 v{4+t}, s[84:87], s64 offen {cfg.nt_wo} lds") for t in range(5)]
    WOADV = ["s_add_u32 s64, s64, 81920", "s_cmp_eq_u32 s64, 1310720", "s_cselect_b32 s64, 0, s64"]

    def kreads(par, off):
        return [f"ds_read_b128 {ar(KF(par, f))}, v2 offset:{off + 512*(f>>2) + 64*(f&3)}" for f in range(8)]
    def vreads(par, off):
        return [f"ds_read_b64_tr_b16 {ar(VF(par, dt) + 2*w, 2)}, v3 offset:{off + 512*w + 32*dt}" for dt in range(8) for w in range(2)]
    def qper(par, dmas, post, endwait, reads=True, mf=True, need=None, side=()):
        mfl = []
        if mf:
            for dt in range(8):
                for i in range(6):
                    a = OACC(i, dt)
                    mfl.append(f"{MF} {vr(a)}, {ar(QA(par^1, dt))}, {ar(QB(par^1, i))}, {vr(a)}")
        rl = []
        if reads:
            for i in range(6):
                rl.append([f"ds_read_b128 {ar(QB(par, i))}, v14 offset:{2048*i}"])
            for dt in range(8):
                for w in range(2):
                    rl.append([f"ds_read_b64_tr_b16 {ar(QA(par, dt) + 2*w, 2)}, v{30 + (dt & 1)} offset:{512*w + 32*dt}"])
        gaps = {}
        dch = dma_chain(list(dmas or []))
        if dch: spread(gaps, dch, 0, 38, cap=3)
        if rl: spread(gaps, rl, 0, 34)
        assert not gaps or max(gaps) < 38
        for n, t in enumerate(post):
            gaps.setdefault(38 + n // 2, []).append(t)
        for g in gaps: gaps[g] = [t for t in gaps[g] if t]
        if side: spread(gaps, [[t] for t in side], 0, 44)
        s = Stream()
        s("s_barrier", need if need is not None else ("s[48:51]:4 s[44:47]:6" if par == 0 else "s[48:51]:4 s[44:47]:9"))
        if mf:
            assert max(gaps) <= 47, max(gaps)
            s.extend(interleave(mfl, gaps))
        else:
            for k in sorted(gaps):
                for t in gaps[k]: s(t)
        if endwait: s(endwait)
        return s
    def upd(par, dma=True):
        l = []
        if dma: l += WADV + ["s_add_u32 s73, s80, s69"]
        l += ["s_mov_b32 s10, s80", "s_mov_b32 s80, s81", "s_mov_b32 s81, s82", "s_mov_b32 s82, s10",
              "v_add_u32 v30, s80, v26", "v_add_u32 v31, s80, v27"]
        if par == 0:
            l += ["v_add_u32 v14, s66, v29"]
        else:
            if dma: l += XADV + ["s_add_u32 s74, s66, s70"]
            l += ["s_mov_b32 s10, s66", "s_mov_b32 s66, s67", "s_mov_b32 s67, s83", "s_mov_b32 s83, s10"]
            l.append("v_add_u32 v14, s66, v28")
        return l
    def qd(par): return xdma("s74", 0, range(3*par, 3*par+3)) + wdma("s73", 0)
    ADV = "s_add_u32 s71, s71, 1024\ns_and_b32 s71, s71, 0x3ffff"
    kvp = kvdma("s75", 0) + [(ADV, f"buffer_load_dwordx4 {ar(4*n)}, v0, s[52:55], s71 offen {cfg.nt_kv}") for n in range(24)]
    wov = ["s_mul_i32 s10, s60, 320", "v_add_u32 v9, s10, v1"]
    for t in range(5):
        wov += [f"v_add_u32 v22, {64*t}, v9",
                "v_mul_u32_u24 v23, 3277, v22",
                "v_lshrrev_b32 v23, 16, v23",
                "v_mul_u32_u24 v24, 20, v23",
                "v_sub_u32 v24, v22, v24",
                "v_bfe_u32 v22, v23, 2, 1",
                "v_lshlrev_b32 v22, 1, v22",
                "v_xor_b32 v24, v24, v22",
                "v_mul_u32_u24 v23, 1280, v23",
                f"v_lshl_add_u32 v{4+t}, v24, 4, v23"]
    def flush(t):
        return [("", f"ds_write_b128 v25, {ar(32*(t-1) + 4*c)} offset:{CH*c}") for c in range(8)]
    tw2 = [("s_lshl_b32 s11, s5, 2\ns_add_u32 s11, s11, s60\ns_mul_i32 s11, s11, 10240\nv_mul_u32_u24 v17, 160, v1", f"buffer_load_dword a252, v17, s[92:95], s11 offen {cfg.nt_tw}"),
           ("", f"buffer_load_dword a253, v17, s[92:95], s11 offen offset:80 {cfg.nt_tw}")] if cfg.warm_wo == 2 else []
    if cfg.preflag:
        tw2 = tw2 + [("v_mov_b32 v32, s30\nv_mov_b32 v34, 0\nv_mov_b32 v35, 0\nv_add_u32 v33, 65536, v32", "global_store_dwordx2 v32, v[34:35], s[40:41] sc1"),
                     ("", "global_store_dwordx2 v33, v[34:35], s[40:41] sc1")]
    nper = [0] * 21
    p = cfg.kvp0; left = 32
    while left:
        nper[p] += 1; left -= 1; p += 1
        if p > cfg.kvp1: p = cfg.kvp0
    if cfg.kvb == 1:
        nper = [0] * 21
        for q in (4, 8, 12, 16): nper[q] = 8
    if cfg.kvb == 2:
        nper = [0] * 21
        for q in (6, 11, 16): nper[q] = 11
        nper[16] = 10
    if cfg.kvb == 3:
        nper = [0] * 21
        for q in (2, 4, 6, 8, 10, 12, 14, 16): nper[q] = 4
    q0 = None; qloop = Stream(); qtail = Stream()
    prev_extra = (0, 4, 2)[cfg.up]; pos = 0
    wov += ["v_lshrrev_b32 v22, 2, v1", "v_mul_u32_u24 v23, 320, v22", "v_lshl_add_u32 v23, v20, 3, v23", "v_bfe_u32 v22, v1, 4, 1",
            "v_lshl_add_u32 v9, v22, 5, v23", "v_xor_b32 v22, 1, v22", "v_lshl_add_u32 v10, v22, 5, v23",
            "v_add_u32 v11, 131072, v0", "v_add_u32 v12, 262144, v0", "s_mul_i32 s70, s60, 5120"]
    for sidx in range(20):
        par = sidx & 1
        own = qd(par) if sidx <= 15 else (wdma("s73", 0) if sidx <= 17 else [])
        ex_ = kvp[pos:pos + nper[sidx]]; pos += nper[sidx]
        if sidx == cfg.upp: ex_ = ex_ + upb
        dm = own + ex_
        post = upd(par, sidx <= 16) if sidx <= 18 else []
        need = None
        nvm = len(dm) + prev_extra
        if sidx == 17:
            need = "s[48:51]:4 s[44:47]:6"
            post = post + [f"s_add_u32 s10, s75, {SLOT}", "v_add_u32 v25, s10, v0"]
            nvm = min(nvm, 4 + len(ex_) + prev_extra)
        if sidx >= 18:
            need = "s[48:51]:4 s[44:47]:0" if sidx == 18 else "s[48:51]:0 s[44:47]:0"
            dm = flush(sidx - 17) + (tw2 if sidx == cfg.twp else [])
            post = post + [f"v_add_u32 v25, {SLOT}, v25"]
        endw = f"s_waitcnt vmcnt({nvm}) lgkmcnt(0)"
        if sidx == 17: endw = "WAIT17"
        if sidx == 18: endw = f"s_waitcnt vmcnt({len(tw2) if cfg.twp == 18 else 0}) lgkmcnt(0)"
        if sidx == 19: endw = "s_waitcnt lgkmcnt(0)"
        if sidx == 20: endw = "s_waitcnt lgkmcnt(0)"
        if endw == "WAIT17":
            later = 32 - 16 + 4 * sum(1 for q in range(21) if q <= 17 and sum(nper[:q]) >= 16) + 3 * sum(1 for q in range(16) if sum(nper[:q]) >= 16)
            endw = f"s_waitcnt vmcnt({min(nvm, later)}) lgkmcnt(0)"
        if cfg.x_nowait and sidx < 17: endw = "s_waitcnt vmcnt(40) lgkmcnt(0)"
        if cfg.x_nodma and sidx < 18: dm = []
        side = {18: wov[:31], 19: wov[31:]}.get(sidx, [])
        per = qper(par, dm, post, endw, reads=True, mf=(sidx > 0), need=need, side=side)
        if sidx == 0:
            q0 = per; q0.ins = pad_hazards(q0.ins)
        elif sidx < 15: qloop.extend(per)
        else:
            if sidx == 15: stamp(qtail, cfg, 15)
            qtail.extend(per)
        prev_extra = len(ex_)
    stamp(qtail, cfg, 2)
    def qepi(i):
        l = []
        for kk in range(4):
            b = OACC(i, 2*kk)
            if cfg.pkq:
                for p in range(4): l.append(f"v_pk_mul_f32 {vr(b+2*p,2)}, {vr(b+2*p,2)}, s[76:77]")
            else:
                for p in range(8): l.append(f"v_mul_f32 v{b+p}, s76, v{b+p}")
        for kk in range(4):
            b = OACC(i, 2*kk)
            for p in range(4): l.append(f"v_cvt_pk_bf16_f32 v{b+p}, v{b+2*p}, v{b+2*p+1}")
        for kk in range(4):
            b = OACC(i, 2*kk)
            l += [f"v_permlane16_swap_b32 v{b}, v{b+2}", f"v_permlane16_swap_b32 v{b+1}, v{b+3}"]
        for kk in range(4):
            b = OACC(i, 2*kk)
            for p in range(4): l.append(f"v_accvgpr_write_b32 a{QF(i,kk)+p}, v{b+p}")
        return l
    def redu(i):
        n = NEGM(i)
        return [f"v_max3_f32 v{n}, v{n}, v{n+1}, v{n+2}", f"v_max_f32 v{n}, v{n}, v{n+3}",
                f"v_mov_b32 v{n+1}, v{n}", f"v_permlane16_swap_b32 v{n}, v{n+1}", f"v_max_f32 v{n}, v{n}, v{n+1}",
                f"v_mov_b32 v{n+1}, v{n}", f"v_permlane32_swap_b32 v{n}, v{n+1}", f"v_max_f32 v{n}, v{n}, v{n+1}",
                f"v_sub_f32 v{n+3}, 0, v{n}", f"v_sub_f32 v{n+2}, 0, v{n}", f"v_sub_f32 v{n+1}, 0, v{n}", f"v_sub_f32 v{n}, 0, v{n}"]
    def M(i): return [f"{MF} {vr(OACC(i, dt))}, {ar(QA(1, dt))}, {ar(QB(1, i))}, {vr(OACC(i, dt))}" for dt in range(8)]
    def Rm(i): return [f"{MF} {vr(NEGM(i))}, {ar(KF(0, kk))}, {ar(QF(i, kk))}, {'0' if kk == 0 else vr(NEGM(i))}" for kk in range(4)]
    def merge(valu, other):
        out = []; n = len(valu); m = len(other); k = 0
        for x, t in enumerate(valu):
            while k < m and k * n <= x * m: out.append(other[k]); k += 1
            out.append(t)
        return out + other[k:]
    INIT = ["s_mov_b32 s73, s75", f"s_mov_b32 s74, {2*SLOT}", "s_mov_b32 s68, 12"]
    qe = Stream()
    qe("s_barrier")
    lds = [d for _, d in flush(3)] + kreads(0, 0) + vreads(0, 0)
    for t in merge(lds, M(0) + M(1)): qe(t)
    for t in INIT: qe(t)
    for t in merge(qepi(0), M(2)): qe(t)
    qe("s_waitcnt lgkmcnt(0)")
    for t in merge(qepi(1), M(3) + Rm(0)): qe(t)
    for t in merge(merge(qepi(2), [""] * 12 + redu(0)), M(4) + Rm(1)): qe(t)
    for t in merge(merge(qepi(3), [""] * 12 + redu(1)), M(5) + Rm(2)): qe(t)
    for t in merge(merge(qepi(4), [""] * 12 + redu(2)), Rm(3) + [""] * 4): qe(t)
    for t in merge(merge(qepi(5), redu(3)), Rm(4) + [""] * 4): qe(t)
    for t in Rm(5) + redu(4) + redu(5): qe(t)
    stamp(qe, cfg, 3)
    qe.ins = pad_hazards(qe.ins, qtail.ins[-16:])
    st = Stream()
    for t in INIT: st(t)
    st("s_barrier", "s[52:55]:0")
    for t in kreads(0, 0) + vreads(0, 0): st(t)
    for i in R6:
        for t in redu(i): st(t)
    st("s_waitcnt lgkmcnt(0)")
    st("s_branch L_W0")
    st.ins = pad_hazards(st.ins)

    def E(u, r):
        x = SREG(u & 1, r >> 2) + (r & 3)
        return f"v_exp_f32 v{x}, v{x}"
    def C(u, c):
        x = SREG(u & 1, 0) + 2 * c
        return f"v_cvt_pk_bf16_f32 v{PREG(u & 1) + c}, v{x}, v{x+1}"
    def QK(u, j):
        i = u % 6; l = []
        for kt in range(2):
            for kk in range(4):
                d = vr(SREG(u & 1, kt))
                c = vr(NEGM(i)) if kk == 0 else d
                l.append(f"{MF} {d}, {ar(KF(j & 1, 4*kt + kk))}, {ar(QF(i, kk))}, {c}")
        return l
    def PV(u):
        if u < 0: return [None] * 9
        i = u % 6; j = u // 6; l = []
        for dt in range(8):
            d = vr(OACC(i, dt))
            l.append(f"{MF} {d}, {ar(VF(j & 1, dt))}, {vr(PREG(u & 1))}, {'0' if j == 0 else d}")
        d = ar(LACC(i))
        l.append(f"{MF} {d}, {ar(ONES)}, {vr(PREG(u & 1))}, {'0' if j == 0 else d}")
        return l

    RCP = [40, 44, 48, 52, 42, 46]
    def epi(i):
        r = RCP[i]
        l = [f"v_accvgpr_read_b32 v{r}, a{LACC(i)}",
             f"v_cmp_nge_f32 vcc, s15, v{r}",
             f"v_rcp_f32 v{r}, v{r}",
             "s_nop 0",
             "s_or_b64 s[12:13], s[12:13], vcc"]
        for dtp in range(4):
            b = OACC(i, 2*dtp)
            for p in range(4): l.append(f"v_pk_mul_f32 {vr(b+2*p,2)}, {vr(b+2*p,2)}, {vr(r,2)} op_sel_hi:[1,0]")
            for p in range(4): l.append(f"v_cvt_pk_bf16_f32 v{b+p}, v{b+2*p}, v{b+2*p+1}")
            l.append(f"buffer_store_dwordx4 {vr(b)}, v0, s[56:59], s14 offen offset:{1024*dtp} {cfg.ost}")
            l.append(f"ds_write_b128 v13, {vr(b)} offset:{12288*dtp + 1024*i}")
        l.append("s_add_u32 s14, s14, 131072")
        return l
    def fill(gaps, base, n, items):
        for k, t in enumerate(items): gaps.setdefault(base + (k * n) // len(items), []).append(t)

    def window(j, head=(), endw=None, dma=True, reads=True, extra=(), last=False, need="s[52:55]:16"):
        par = j & 1
        mfl = []; gaps = {}
        def put(i, k, t): gaps.setdefault(17*i + k, []).append(t)
        for i in range(6):
            u = 6*j + i
            mfl += QK(u, j) + PV(u - 2)
            for n, k in enumerate((9, 11, 13, 15)): put(i, k, E(u, n))
            if u >= 1:
                for n, k in enumerate((0, 2, 4, 6)): put(i, k, E(u-1, 4+n))
                put(i, 1, C(u-1, 0)); put(i, 1, C(u-1, 1)); put(i, 5, C(u-1, 2)); put(i, 8, C(u-1, 3))
        off = SLOT if par == 0 else 0
        for t in head: put(0, 3, t)
        if reads:
            kr = kreads(par ^ 1, off); vrd = vreads(par ^ 1, off)
            kpos = [(0, 7), (0, 12), (1, 3), (1, 7)]
            for n, (i, k) in enumerate(kpos):
                put(i, k, kr[2*n]); put(i, k, kr[2*n+1])
            vpos = [(i, k) for i in (2, 3, 4, 5) for k in (3, 7)]
            for n, (i, k) in enumerate(vpos):
                put(i, k, vrd[2*n]); put(i, k, vrd[2*n+1])
        if dma:
            dl = kvdma("s73", SLOT * par)
            p0 = dl[0][0].split("\n")
            put(0, 8, p0[0])
            for t in p0[1:]: put(0, 3, t)
            dpos = [(0, 10), (0, 16), (1, 12), (2, 10), (3, 10), (3, 16), (4, 12), (5, 10)]
            if cfg.d3 == 1: dpos[3] = (2, 16)
            apos = [(0, 14), (1, 10), (1, 14), (2, 14), (3, 12), (4, 10), (4, 14)]
            if cfg.d3 == 1: apos[3] = (3, 5)
            for c, (i, k) in enumerate(dpos):
                put(i, k, dl[c][1])
                if c < 7:
                    parts = dl[c+1][0].split("\n")
                    put(i, k, parts[0])
                    for t in parts[1:]: put(apos[c][0], apos[c][1], t)
            put(5, 12, kvadv[0]); put(5, 12, kvadv[1]); put(5, 14, kvadv[2])
            if par == 1: put(5, 10, "s_add_u32 s73, s73, s74")
        if par == 0:
            put(2, 12, "v_add_u32 v2, s74, v2")
            put(5, 14, "v_add_u32 v3, s74, v3")
        else:
            put(5, 14, "s_sub_u32 s74, 0, s74")
        fpos = [(i, k) for i in range(6) for k in (10, 12, 14, 16)]
        fpos = [x for x in fpos if x not in ((0, 12), (2, 12), (5, 14))]
        assert len(extra) <= len(fpos)
        for grp, (i, k) in zip(extra, fpos):
            for t in grp: put(i, k, t)
        if last:
            u = 6*j + 5
            mfl += PV(u - 1) + PV(u)
            b = 102
            for k, t in ((0, E(u,4)), (1, C(u,0)), (1, C(u,1)), (2, E(u,5)), (3, E(u,6)), (4, C(u,2)), (5, E(u,7)), (7, C(u,3))):
                gaps.setdefault(b + k, []).append(t)
            fill(gaps, 17*3 + 4, 17, epi(0))
            fill(gaps, 17*4 + 4, 17, epi(1))
            fill(gaps, 17*5 + 4, 17, epi(2))
            fill(gaps, b + 4, 9, epi(3))
            fill(gaps, b + 13, 5, epi(4)[:16])
        s = Stream()
        s("s_barrier", need)
        s.extend(interleave(mfl, gaps))
        if endw != "": s(endw or f"s_waitcnt vmcnt({cfg.kvw}) lgkmcnt(0)")
        return s
    w0 = Stream()
    w0("L_W0:")
    w0.extend(window(0, endw=f"s_waitcnt vmcnt({cfg.kvw0}) lgkmcnt(0)"))
    w0.extend(window(1, endw=f"s_waitcnt vmcnt({cfg.kvw1}) lgkmcnt(0)"))
    w0.ins = pad_hazards(w0.ins, qe.ins[-16:])
    loop = Stream()
    loop("L_LOOP:")
    if cfg.lax:
        for jj, lb in ((2, "L_LX0"), (3, "L_LX1")):
            loop.extend(window(jj, endw=""))
            loop("s_cmp_lt_u32 s68, s42")
            loop(f"s_waitcnt vmcnt({cfg.laxw}) lgkmcnt(0)")
            loop(f"s_cbranch_scc1 {lb}")
            loop("s_cmp_lt_u32 s68, s43")
            loop(f"s_waitcnt vmcnt({cfg.kvwE})", "pace")
            loop(f"s_cbranch_scc1 {lb}")
            loop(f"s_waitcnt vmcnt({cfg.kvw})", "pace")
            loop(f"{lb}:")
    else:
        loop.extend(window(2)); loop.extend(window(3))
    if cfg.stamps == 2:
        loop("s_memrealtime s[98:99]")
        loop("s_sub_u32 m0, 28, s68")
        loop("s_waitcnt lgkmcnt(0)")
        loop("v_writelane_b32 v15, s98, m0")
    loop("s_sub_u32 s68, s68, 1")
    loop("s_cbranch_scc0 L_LOOP")
    tail = Stream()
    stamp(tail, cfg, 12)
    tw = []
    if cfg.warm_wo == 1:
        tw = [["s_lshl_b32 s10, s5, 2", "s_add_u32 s10, s10, s60"], ["s_mul_i32 s10, s10, 10240", "v_mul_u32_u24 v13, 160, v1"],
              [f"buffer_load_dword a252, v13, s[92:95], s10 offen {cfg.nt_tw}"], [], [], [], [], [], [f"buffer_load_dword a253, v13, s[92:95], s10 offen offset:80 {cfg.nt_tw}"]]
    ntw = 2 if tw else 0
    tail.extend(window(28, dma=False, extra=tw, endw=f"s_waitcnt vmcnt({ntw + (8 if cfg.lax else 0)}) lgkmcnt(0)"))
    wx = [["s_mul_i32 s64, s6, 327680"]]
    for st_ in range(3):
        ch = dma_chain(wodma("s70", WOR[st_]))
        ch[-1] = ch[-1] + WOADV
        wx[-1] = wx[-1] + ch[0]; ch = ch[1:]
        wx += ch
    ex = [[f"s_mov_b32 s15, {f32bits(float('inf') if (cfg.x_nowait or cfg.x_nodma) else (THR if not cfg.force_fb else 1.0)):#x}", "s_mov_b64 s[12:13], 0"],
          ["s_mov_b32 s14, 0", "s_mul_i32 s10, s9, 49152"],
          ["s_mul_i32 s11, s8, 6144", "s_add_u32 s10, s10, s11"],
          [f"s_add_u32 s10, s10, {OWN_OFF}", "v_add_u32 v13, s10, v0"]]
    tail.extend(window(29, dma=False, extra=ex + (wx if cfg.wo_win == 29 else []), endw=f"s_waitcnt vmcnt({ntw + (15 if cfg.wo_win == 29 else 0)}) lgkmcnt(0)", need="s[52:55]:8"))
    tail.extend(window(30, dma=False, extra=(wx if cfg.wo_win == 30 else []), endw="s_waitcnt lgkmcnt(0)", need="s[52:55]:0"))
    stamp(tail, cfg, 13)
    tail.extend(window(31, dma=False, reads=False, last=True, endw="", need="s[52:55]:0"))
    stamp(tail, cfg, 4)
    tail.ins = pad_hazards(tail.ins, loop.ins[-16:])
    ep = Stream()
    ep("s_lshl_b32 s10, s7, 3")
    ep("v_mov_b32 v16, s10")
    ep("global_load_dwordx2 v[56:57], v16, s[38:39] sc1")
    ep("v_mov_b32 v58, s30")
    ep("v_add_u32 v60, 65536, v58")
    ep("v_and_b32 v59, 7, v1")
    ep("v_lshl_add_u32 v59, v59, 7, s31")
    ep("v_and_b32 v61, 3, v1")
    ep("v_max_u32 v61, 1, v61")
    ep("v_add_u32 v61, s4, v61")
    ep("v_and_b32 v61, 3, v61")
    ep("v_lshl_add_u32 v61, v61, 10, s32")
    ep("v_add_u32 v62, s33, v0")
    ep("v_add_u32 v63, 49152, v62")
    for t in epi(4)[16:] + epi(5): ep(t)
    ep("s_cmp_lg_u64 s[12:13], 0")
    ep("s_cselect_b32 s10, 1, 0")
    ep("v_mov_b32 v16, s10")
    ep("s_lshl_b32 s10, s60, 2")
    ep(f"s_add_u32 s10, s10, {FLAG_OFF}")
    ep("v_mov_b32 v17, s10")
    ep(f"v_mov_b32 v18, {FLAG_OFF}")
    ep("ds_write_b32 v17, v16")
    ep("global_load_dwordx2 v[228:229], v59, s[40:41] sc1")
    ep("s_waitcnt vmcnt(26) lgkmcnt(0)")
    ep("s_barrier", "s[84:87]:0")
    ep("ds_read_b128 v[20:23], v18")
    for nt in range(10):
        for w in range(2): ep(f"ds_read_b64_tr_b16 {vr(TA(0, nt) + 2*w, 2)}, v{9 + (nt & 1)} offset:{WOR[0] + 5120*w + 32*(nt & ~1)}")
    own = [f"ds_read_b128 {ar(TOWN(u, i))}, v{62 + (u >> 2)} offset:{12288*(u & 3) + 1024*i}" for u in range(8) for i in range(3)]
    for t in own[:6]: ep(t)
    ep("s_waitcnt lgkmcnt(15)")
    ep("v_or_b32 v20, v20, v21")
    ep("v_or3_b32 v20, v20, v22, v23")
    ep("v_readfirstlane_b32 s10, v20")
    ep("s_andn2_b32 s10, s10, s78")
    if cfg.x_nowait or cfg.x_nodma: ep("s_mov_b32 s10, 0")
    ep("s_cmp_lg_u32 s10, 0")
    ep("s_cbranch_scc1 L_FALLBACK")
    stamp(ep, cfg, 5)
    ep("s_waitcnt vmcnt(1)")
    ep(f"s_mov_b32 s79, {SPIN_MAX}")
    ep("L_TAG:")
    ep("v_readfirstlane_b32 s10, v56")
    ep("s_cmp_lg_u32 s10, 0")
    ep("s_cbranch_scc1 L_TAGOK")
    ep("s_lshl_b32 s10, s7, 3")
    ep("v_mov_b32 v20, s10")
    ep("s_sleep 2")
    ep("s_sub_u32 s79, s79, 1")
    ep("global_load_dwordx2 v[56:57], v20, s[38:39] sc1")
    ep("s_waitcnt vmcnt(0)", "spin")
    ep("s_cbranch_scc0 L_TAG")
    ep("L_TAGOK:")
    ep("global_store_dwordx2 v58, v[56:57], s[40:41] sc1")
    ep("s_waitcnt lgkmcnt(0)")
    stamp(ep, cfg, 6)
    ep.ins = pad_hazards(ep.ins, tail.ins[-16:])

    def poll(s, lbl, vaddr, first_issued):
        s(f"s_mov_b32 s79, {SPIN_MAX}")
        if first_issued: s(f"s_branch {lbl}_C")
        s(f"{lbl}:")
        s(f"global_load_dwordx2 v[228:229], {vaddr}, s[40:41] sc1")
        s(f"{lbl}_C:")
        s("s_waitcnt vmcnt(0)")
        s("v_cmp_ne_u64 vcc, v[228:229], v[56:57]")
        s("s_sub_u32 s79, s79, 1")
        s(f"s_cbranch_scc1 {lbl}_OK")
        s("s_cmp_lg_u64 vcc, 0")
        s(f"s_cbranch_scc1 {lbl}")
        s(f"{lbl}_OK:")
    def OB(p, i):
        t, u = p >> 3, p & 7
        return (96 if t % 2 == 0 else 0) + 12 * u + 4 * i
    def oload(p, i):
        t, u = p >> 3, p & 7
        return f"buffer_load_dwordx4 {ar(OB(p, i))}, v{(0, 11, 12)[i]}, s[88:91], s{16 + 2*(t-1) + (u >> 2)} offen offset:{1024*(u & 3)} {cfg.old}"
    def treads2(p):
        st_ = p >> 1
        return [f"ds_read_b64_tr_b16 {vr(TA(p & 1, nt) + 2*w, 2)}, v{9 + (nt & 1)} offset:{WOR[st_ % 3] + 10240*(p & 1) + 5120*w + 32*(nt & ~1)}"
                for nt in range(10) for w in range(2)]
    FLD = "global_load_dwordx2 v[228:229], v59, s[40:41] sc1"
    def tper(p, items, pre=()):
        mfl = []
        for nt in range(10):
            for i in range(3):
                a = vr(TACC(i, nt))
                mfl.append(f"{MF} {a}, {vr(TA(p & 1, nt))}, {ar(OB(p, i))}, {'0' if p == 0 else a}")
        gaps = {}; s = Stream(); tags = []; grp = []
        if p & 1:
            s("s_barrier", "s[84:87]:5" if p <= 27 else "s[84:87]:0")
            stg = (p + 1) // 2 + 2
            if stg <= 15:
                ch = dma_chain(wodma("s70", WOR[stg % 3])); ch[-1] = ch[-1] + [WOADV[0]]
                grp += ch + [WOADV[1:]]; tags += [("w", stg)] * 5
        for tg_, t in items:
            grp.append([t])
            if tg_ is not None: tags.append(tg_)
        for t in pre: s(t)
        if grp: spread(gaps, grp, 0, 27, cap=2)
        if p < 31: spread(gaps, [[t] for t in treads2(p + 1)], 0, 24, cap=2)
        assert max(gaps, default=0) <= 29, max(gaps)
        s.extend(interleave(mfl, gaps))
        return s, tags
    def need_after(p):
        n = [("o", p + 1)]
        if p % 2 == 0: n.append(("w", p // 2 + 1))
        return n
    def minwait(q, needs):
        idx = [k for k, x in enumerate(q) if x in needs]
        return (len(q) - 1 - idx[-1]) if idx else None
    def check_partner(s, lbl, k):
        s(f"s_and_b64 s[10:11], s[22:23], s[{24 + 2*k}:{25 + 2*k}]")
        s(f"s_cbranch_scc0 {lbl}_OK")
        s(f"s_mov_b32 s79, {SPIN_MAX}")
        s(f"{lbl}:")
        s(FLD)
        s("s_waitcnt vmcnt(0)", "spin")
        s("v_cmp_ne_u64 s[22:23], v[228:229], v[56:57]")
        s("s_sub_u32 s79, s79, 1")
        s(f"s_cbranch_scc1 {lbl}_OK")
        s(f"s_and_b64 s[10:11], s[22:23], s[{24 + 2*k}:{25 + 2*k}]")
        s(f"s_cbranch_scc1 {lbl}")
        s(f"{lbl}_OK:")
    allo = [(("o", p), oload(p, i)) for p in range(8, 32) for i in range(3)]
    when = []
    for n in range(72):
        p = 8 + n // 3
        when.append(max(cfg.pollp + (n * 10) // cfg.orate, p - 15 if p >= 16 else 0, 8 if p >= 16 else 0))
    n0 = sum(1 for x in when if x < 8)
    p1 = allo[:n0]
    def trip0(mode, q):
        s = Stream(); q = list(q)
        fast = mode == "fast"
        first = cfg.dp if fast else cfg.pollp
        nsp = 8 - first - (1 if fast else 0)
        for u in (range(cfg.dp) if mode == "pre" else range(cfg.dp, 8)):
            items = []
            if u < 3: items += [(None, t) for t in own[6 + 6*u: 12 + 6*u]]
            if mode == "slow" and u == cfg.fldp: items.append((("f", 1), FLD))
            pre = Stream()
            if mode == "slow" and u == cfg.pollp:
                w = minwait(q, [('f', 1)])
                if w is not None: pre(f"s_waitcnt vmcnt({w})")
                pre("v_cmp_ne_u64 s[22:23], v[228:229], v[56:57]")
                pre("s_nop 0")
                check_partner(pre, "L_PA", 0)
                stamp(pre, cfg, 7)
            if mode != "pre" and first <= u < first + nsp:
                k = u - first
                items += p1[(k * n0) // nsp: ((k + 1) * n0) // nsp]
            s.extend(pre)
            st_, tags = tper(u, items)
            s.extend(st_); q += tags
            nd = need_after(u)
            if fast and u == 7: nd = nd + [("w", 5)] + [x for x, _ in p1[:n0 - 4]]
            if mode == "pre" and u == cfg.dp - 1: nd = nd + [("f", 0)]
            w = minwait(q, nd)
            s(f"s_waitcnt vmcnt({w}) lgkmcnt(0)" if w is not None else "s_waitcnt lgkmcnt(0)")
            if w is not None: q = q[len(q) - w:] if w else []
            if cfg.stamps == 3: stamp(s, cfg, 16 + u)
        return s, q
    t0p, qp = trip0("pre", [("f", 0), ("s", 0)])
    t0p("v_cmp_ne_u64 s[22:23], v[228:229], v[56:57]")
    t0p("s_nop 0")
    t0p("s_and_b64 s[10:11], s[22:23], s[24:25]")
    t0p("s_cbranch_scc0 L_T0F")
    t0, qs = trip0("slow", qp)
    t0("L_T1:")
    tf = Stream(); tf("L_T0F:")
    stamp(tf, cfg, 7)
    tf_, qf = trip0("fast", qp); tf.extend(tf_); tf("s_branch L_T1")
    tl = Stream()
    stamp(tl, cfg, 14)
    for p in range(8, 32):
        items = []
        pre = Stream()
        if p == when[24]: check_partner(pre, "L_PA2", 1)
        if p == when[48]: check_partner(pre, "L_PA3", 2)
        items += [allo[n] for n in range(72) if when[n] == p]
        tl.extend(pre)
        st_, tags = tper(p, items)
        tl.extend(st_); qs += tags; qf += tags
        ws_ = [w for w in (minwait(qs, need_after(p)), minwait(qf, need_after(p))) if w is not None]
        if p < 31: tl(f"s_waitcnt vmcnt({min(ws_)}) lgkmcnt(0)" if ws_ else "s_waitcnt lgkmcnt(0)")
        if cfg.stamps == 3 and p < 16: stamp(tl, cfg, 16 + p)
        if ws_:
            w = min(ws_)
            qs = qs[max(0, len(qs) - w):] if w else []
            qf = qf[max(0, len(qf) - w):] if w else []
    PS = 15360
    fin = Stream()
    stamp(fin, cfg, 8)
    fin("s_lshl_b32 s10, s7, 2")
    fin("s_add_u32 s10, s10, s6")
    fin("s_lshl_b32 s10, s10, 2")
    fin("s_add_u32 s11, s10, s60")
    fin("s_lshl_b32 s11, s11, 2")
    fin("s_add_u32 s11, s11, s4")
    fin(f"s_mul_i32 s11, s11, {PS}")
    fin(f"s_add_u32 s11, s11, {P_OFF}")
    fin("s_add_u32 s52, s40, s11")
    fin("s_addc_u32 s53, s41, 0")
    fin("s_and_b32 s53, s53, 0xffff")
    fin(f"s_mov_b32 s54, {PS}")
    fin("s_mov_b32 s11, 0")
    fin(f"v_add_u32 v17, {OWN_OFF}, v0")
    fin("s_cmp_eq_u32 s60, s4")
    fin("s_cbranch_scc1 L_OWNSLAB")
    for pp in range(15):
        b = 64 + 8*pp
        for p in range(4): fin(f"v_cvt_pk_bf16_f32 v{b+p}, v{b+2*p}, v{b+2*p+1}")
        fin(f"buffer_store_dwordx4 {vr(b)}, v0, s[52:55], s11 offen offset:{1024*(pp & 3)} {cfg.pst}")
        if pp & 3 == 3: fin("s_add_u32 s11, s11, 4096")
    fin("s_branch L_SLABDONE")
    fin("L_OWNSLAB:")
    for T in range(30): fin(f"ds_write_b128 v17, {vr(64 + 4*T)} offset:{1024*T}")
    fin("L_SLABDONE:")
    fin("s_add_u32 s11, s10, s4")
    fin(f"s_mul_i32 s11, s11, {4*PS}")
    fin(f"s_add_u32 s11, s11, {P_OFF}")
    fin("s_add_u32 s56, s40, s11")
    fin("s_addc_u32 s57, s41, 0")
    fin("s_and_b32 s57, s57, 0xffff")
    fin(f"s_mov_b32 s58, {4*PS}")
    fin("s_mul_i32 s10, s62, 192")
    fin("s_mul_i32 s11, s4, 48")
    fin("s_add_u32 s10, s10, s11")
    fin("s_mul_i32 s10, s10, 2560")
    fin("s_mul_i32 s11, s61, 1280")
    fin("s_add_u32 s10, s10, s11")
    fin("s_mul_i32 s11, s6, 320")
    fin("s_add_u32 s10, s10, s11")
    fin("s_add_u32 s44, s36, s10")
    fin("s_addc_u32 s45, s37, 0")
    fin("s_and_b32 s45, s45, 0xffff")
    fin("s_sub_u32 s46, 3932160, s10")
    fin("v_and_b32 v20, 15, v1")
    fin("v_mul_u32_u24 v20, 2560, v20")
    fin("v_bfe_u32 v21, v1, 4, 1")
    fin("v_lshl_add_u32 v20, v21, 5, v20")
    fin("v_lshrrev_b32 v21, 5, v1")
    fin("v_lshl_add_u32 v18, v21, 4, v20")
    fin("s_lshl_b32 s10, s60, 10")
    fin("v_add_u32 v16, s10, v0")
    for k in range(1, 4):
        fin(f"s_add_u32 s10, s4, {k}")
        fin("s_and_b32 s10, s10, 3")
        fin(f"s_mul_i32 s10, s10, {PS}")
        fin(f"v_add_u32 v{20+k}, s10, v16")
    fin("s_lshl_b32 s10, s60, 11")
    fin("v_add_u32 v17, s10, v17")
    fin("s_waitcnt vmcnt(0) lgkmcnt(0)")
    fin("global_store_dwordx2 v60, v[56:57], s[40:41] sc1")
    fin("s_barrier")
    for m in range(4):
        for h in range(2):
            fin(f"ds_read_b128 {vr(64 + 32*m + 4*h)}, v17 offset:{8192*m + 1024*h}")
    stamp(fin, cfg, 9)
    poll(fin, "L_PB", "v61", False)
    stamp(fin, cfg, 10)
    fin("s_cmp_eq_u32 s60, 3")
    fin("s_cselect_b32 s14, 0x40000000, 12288")
    fin("s_mov_b32 s12, 4096")
    fin("s_mov_b32 s13, 8192")
    for m in range(4):
        so = ("0", "s12", "s13", "s14")[m]
        for k in range(3):
            fin(f"buffer_load_dwordx4 {vr(64 + 32*m + 8 + 4*k)}, v{21+k}, s[56:59], {so} offen {cfg.pld}")
    fin("s_mov_b32 s67, 0xffff0000")
    fin("s_waitcnt lgkmcnt(0)")
    for m in range(4):
        fin(f"s_add_u32 s10, s60, {4*m}")
        fin("s_mul_i32 s11, s10, 13")
        fin("s_lshr_b32 s11, s11, 6")
        fin("s_mul_i32 s15, s11, 5")
        fin("s_sub_u32 s15, s10, s15")
        fin(f"s_mul_i32 s11, s11, {16*2560}")
        fin("s_lshl_b32 s15, s15, 6")
        fin("s_add_u32 s11, s11, s15")
        if m == 3:
            fin("s_cmp_eq_u32 s60, 3")
            fin("s_cselect_b32 s11, 0x40000000, s11")
        fin(f"s_waitcnt vmcnt({9 - 3*m + m})")
        d = 64 + 32*m
        for k in range(3):
            for p in range(4):
                x = d + 8 + 4*k + p
                fin(f"v_lshlrev_b32 v{d+20+2*p}, 16, v{x}")
                fin(f"v_and_b32 v{d+21+2*p}, s67, v{x}")
            for p in range(4):
                fin(f"v_pk_add_f32 {vr(d+2*p,2)}, {vr(d+2*p,2)}, {vr(d+20+2*p,2)}")
        for p in range(4): fin(f"v_cvt_pk_bf16_f32 v{d+p}, v{d+2*p}, v{d+2*p+1}")
        fin(f"v_permlane16_swap_b32 v{d}, v{d+2}")
        fin(f"v_permlane16_swap_b32 v{d+1}, v{d+3}")
        fin(f"buffer_store_dwordx4 {vr(d)}, v18, s[44:47], s11 offen {cfg.outst}")
    if cfg.stamps:
        fin("s_waitcnt vmcnt(0)")
        stamp(fin, cfg, 11)
        fin("s_lshl_b32 s10, s2, 2")
        fin("s_add_u32 s10, s10, s60")
        fin("s_lshl_b32 s10, s10, 8")
        fin(f"s_add_u32 s10, s10, {STAMP_OFF}")
        fin("v_lshlrev_b32 v16, 2, v1")
        fin("v_add_u32 v16, s10, v16")
        fin("global_store_dword v16, v15, s[40:41]")
    if cfg.diag:
        a_, b_ = cfg.diag // 100, cfg.diag % 100
        fin(f"v_readlane_b32 s10, v15, {a_ % 32}")
        fin(f"v_readlane_b32 s11, v15, {b_}")
        fin(f"v_readlane_b32 s12, v15, 11")
        fin("s_nop 4")
        fin("s_sub_u32 s10, s11, s10")
        fin("s_lshl_b32 s10, s10, 2")
        fin("L_DIAG:")
        fin("s_memrealtime s[98:99]")
        fin("s_waitcnt lgkmcnt(0)")
        fin("s_sub_u32 s11, s98, s12")
        fin("s_cmp_lt_u32 s11, s10")
        fin("s_cbranch_scc1 L_DIAG")
    fin("L_END:")
    fin("s_endpgm")
    fin.ins = pad_hazards(fin.ins, tl.ins[-16:])
    fb = Stream()
    fb("L_FALLBACK:")
    fb("s_mov_b32 s78, 1")
    fb("s_mov_b32 s71, 0")
    fb("s_mov_b32 s72, 4096")
    fb("s_mov_b32 s68, 31")
    fb("s_waitcnt vmcnt(0) lgkmcnt(0)")
    for i in R6: fb(f"v_mov_b32 v{NEGM(i)}, 0xff800000")
    fbl = Stream()
    fbl("L_FBLOOP:")
    fbl("s_barrier")
    for m, d in kvdma("s75", 0):
        fbl(m); fbl("s_nop 0"); fbl(d)
    for t in kvadv: fbl(t)
    fbl("s_waitcnt vmcnt(0)")
    fbl("s_barrier")
    for t in kreads(0, 0): fbl(t)
    fbl("s_waitcnt lgkmcnt(0)")
    for kt in range(2):
        for kk in range(4):
            for i in R6:
                d = vr(O0 + 8*i + 4*kt)
                fbl(f"{MF} {d}, {ar(KF(0, 4*kt+kk))}, {ar(QF(i, kk))}, {'0' if kk == 0 else d}")
    fbl("s_nop 7")
    for p in range(4):
        for i in R6:
            fbl(f"v_max3_f32 v{NEGM(i)}, v{NEGM(i)}, v{O0+8*i+2*p}, v{O0+8*i+2*p+1}")
    fbl("s_sub_u32 s68, s68, 1")
    fbl("s_cbranch_scc0 L_FBLOOP")
    fb2 = Stream()
    for i in R6:
        for r in (1, 2, 3): fb2(f"v_mov_b32 v{NEGM(i)+r}, v{NEGM(i)}")
    fb2("s_barrier")
    for t in range(4):
        for m, d in kvdma("s75", t * SLOT):
            fb2(m); fb2("s_nop 0"); fb2(d)
        for x in kvadv: fb2(x)
    fb2("s_waitcnt vmcnt(0)")
    parts = [pro, q0, qloop, qtail, qe, w0, loop, tail, ep, t0p, t0, tl, fin, tf, fb, fbl, fb2, st]
    def mk(lst):
        t = []
        for p in lst: t += p.ins
        out = []; skip = False
        for x in t:
            if x.cmt == "pace": continue
            if x.cmt == "spin": out.pop(); continue
            out.append(x)
        return out
    tr = mk([pro, q0, qloop, qtail, qe, w0, loop, loop, tail, ep, t0p, t0, tl, fin])
    tr3 = mk([tail, ep, t0p, tf, tl, fin])
    cut = [k for k, x in enumerate(ep.ins) if "L_FALLBACK" in x.text][0]
    epc = Stream(); epc.ins = ep.ins[:cut+1]
    tr2 = mk([loop, tail, epc, fb, fbl, fbl, fb2, st, w0])
    rules = [("s[44:47]", 0), ("s[48:51]", 0), ("s[52:55]", 0), ("s[84:87]", 0)]
    errs = []
    for nm_, t in (("main", tr), ("fb", tr2), ("fast", tr3)):
        errs += check_hazards(t, nm_) + check_waits(t, nm_) + check_dma(t, rules, nm_)
    errs = [e for e in errs if "buffer_load_dword a252" not in e]
    return parts, errs

KD = """.amdhsa_kernel {name}
  .amdhsa_next_free_vgpr 512
  .amdhsa_next_free_sgpr 102
  .amdhsa_accum_offset 256
  .amdhsa_group_segment_fixed_size 0
  .amdhsa_kernarg_size 104
  .amdhsa_user_sgpr_count 2
  .amdhsa_user_sgpr_kernarg_segment_ptr 1
  .amdhsa_system_sgpr_workgroup_id_x 1
.end_amdhsa_kernel
"""

def build_asm(cfg):
    ref = open(f"cdna_kernels/{NAME}.s.ref").read()
    head = []
    for line in ref.splitlines():
        if line.startswith(";") and "@launch" not in line: head.append(line)
        elif not line.startswith(";"): break
    nm = NAME + "_kernel"
    out = "\n".join(head) + "\n"
    out += "; @launch grid=(256,1,1) block=(256,1,1) lds=163840\n"
    out += '.amdgcn_target "amdgcn-amd-amdhsa--gfx950"\n.text\n'
    parts, errs = gen(cfg)
    out += f".globl {nm}\n.p2align 8\n.type {nm},@function\n{nm}:\n"
    for p in parts: out += p.text()
    out += f".fill (66560 - (. - {nm})) / 4, 4, 0xbf800000\n"
    out += '.section .rodata,"a"\n.p2align 6\n' + KD.format(name=nm)
    return out, errs

if __name__ == "__main__":
    cfg = Cfg()
    outp = f"cdna_kernels/{NAME}.s"
    for a in sys.argv[1:]:
        if a.startswith("out="): outp = a[4:]; continue
        k, v = a.split("=")
        cur = getattr(cfg, k)
        setattr(cfg, k, type(cur)(int(v)) if not isinstance(cur, str) else v.replace("+", " "))
    asm, errs = build_asm(cfg)
    for e in errs[:6]: print(e[:200])
    print(len(errs), "errors")
    open(outp, "w").write(asm)
    print("wrote", outp, len(asm), "bytes")
```

```python
import sys, struct, math
sys.path.insert(0, "work")
from asmlib import *

NAME = "concat_heads__mha_block_cached__gqa_block_cached__near_ridge"
MF = "v_mfma_f32_16x16x32_bf16"
def f32bits(x): return struct.unpack("<I", struct.pack("<f", x))[0]

CH = 1056
SUB = 8416
SLOT = 4 * SUB
XSL = [4 * SLOT, SLOT, SLOT + 24576]
WSL = [3 * SLOT, 3 * SLOT + 2 * SUB, SLOT + 49152]
FLAG_OFF = 61440
OWN_OFF = 65536
WOR = [0, 20480, 40960]
P_OFF = 32 << 20
F_OFF = 63 << 20
SCALE = math.log2(math.e) / math.sqrt(128.0)
THR = 2.0 ** 40
STAMP_OFF = 64 << 20
SPIN_MAX = 1 << 20

class Cfg:
    stamps = 0
    nt_kv = "nt"
    nt_xw = ""
    nt_wo = ""
    rot = 5
    d3 = 1
    outst = "sc1"
    lax = 1
    laxE = 0
    laxL = 0
    laxL2 = 12
    pkq = 1
    dith = 12
    rev = 0
    ramp = 6
    ramp2 = 0
    kvw3 = 16
    early = 0
    pke = 0
    smix = 0
    even = 0
    slide = 0
    sigp = 1
    sparse1 = 1
    burst = 0
    ltrips = 12
    n01 = 6
    use29 = 1
    kvwt = 3
    kvb = 0
    diag = 0
    orate = 40
    old = "sc1"
    pst = "sc1"
    pld = "sc1"
    preflag = 1
    nsp = 3
    fldp = 3
    dp = 2
    fstrict = 4
    tlw2 = 63
    t0slack = 0
    tlw = 14
    kvwE = 4
    cls = 0
    x_nowait = 0
    x_nodma = 0
    x_hot = 0
    up = 0
    upp = 3
    nt_up = "nt"
    laxw = 16
    fine = 1
    wo_win = 30
    nt_tw = ""
    ost = "sc1"
    qrot = 0
    kvw = 2
    kvw0 = 2
    kvw1 = 2
    pollp = 6
    force_fb = False
    warm_wo = 2
    twp = 19
    kvp0 = 1
    kvp1 = 16
    local_o = 0
    warm_code = 1
    pbf16 = 1
    force_remote = 0

def vr(b, n=4): return f"v[{b}:{b+n-1}]"
def ar(b, n=4): return f"a[{b}:{b+n-1}]"

O0 = 64
def OACC(i, dt): return O0 + 32 * i + 4 * dt
def SREG(par, kt): return 16 + 8 * par + 4 * kt
def PREG(par): return 32 + 4 * par
def NEGM(i): return 40 + 4 * i
def QF(i, kk): return 16 * i + 4 * kk
def KF(par, f): return 96 + 32 * par + 4 * f
def VF(par, dt): return 160 + 32 * par + 4 * dt
def LACC(i): return 224 + 4 * i
ONES = 248
def QA(par, dt): return 96 + 32 * par + 4 * dt
def QB(par, i): return 160 + 32 * par + 4 * i
def TACC(i, nt): return 64 + 4 * (10 * i + nt)
def TA(par, nt): return (184 if par == 0 else 16) + 4 * nt
def TB_(u, i): return 12 * u + 4 * i
def TOWN(u, i): return 96 + 12 * u + 4 * i

NST = 12
def stamp(s, cfg, n):
    if cfg.stamps:
        s("s_memrealtime s[98:99]")
        s("s_memtime s[100:101]")
        s("s_waitcnt lgkmcnt(0)")
        s(f"v_writelane_b32 v15, s98, {n}")
        s(f"v_writelane_b32 v15, s100, {32 + n}")

def spread(gaps, items, lo, hi, cap=2):
    n = len(items)
    last = lo
    for k, it in enumerate(items):
        g = max(lo + (k * (hi - lo)) // n, last)
        while len(gaps.get(g, [])) + len(it) > cap: g += 1
        gaps.setdefault(g, []).extend(it)
        last = g

def dma_chain(dl):
    out = []
    for k, x in enumerate(dl):
        if k == 0: out.append([x[0]])
        nxt = [dl[k+1][0]] if k + 1 < len(dl) else []
        out.append([x[1]] + nxt)
    return out

def gen(cfg):
    R6 = range(6)
    pro = Stream(); s = pro
    s("s_cmp_ge_u32 s2, 256")
    s("s_cbranch_scc1 L_END")
    s("s_load_dwordx16 s[16:31], s[0:1], 0")
    s("s_load_dwordx8 s[32:39], s[0:1], 64")
    s("s_load_dwordx2 s[40:41], s[0:1], 96")
    s("s_memrealtime s[96:97]")
    s("v_lshrrev_b32 v17, 6, v0")
    s("v_and_b32 v1, 63, v0")
    if cfg.warm_code:
        s("s_getpc_b64 s[98:99]")
        s("s_lshr_b32 s5, s2, 3")
        s("s_lshl_b32 s5, s5, 11")
        s("v_lshrrev_b32 v16, 4, v0")
        s("v_lshl_add_u32 v16, v16, 7, s5")
        s("global_load_dword v16, v16, s[98:99]")
    s("s_and_b32 s4, s2, 7")
    s("s_lshr_b32 s5, s2, 3")
    s("v_readfirstlane_b32 s60, v17")
    s("s_lshr_b32 s61, s4, 2")
    s("s_and_b32 s4, s4, 3")
    s("s_lshl_b32 s63, s4, 2")
    s("s_and_b32 s6, s5, 3")
    s("s_add_u32 s63, s63, s6")
    s("s_lshr_b32 s62, s5, 2")
    s("s_lshl_b32 s7, s61, 3")
    s("s_add_u32 s7, s7, s62")
    s("s_and_b32 s8, s60, 1")
    s("s_lshr_b32 s9, s60, 1")
    s("v_lshrrev_b32 v18, 4, v1")
    s("v_and_b32 v19, 15, v1")
    s("v_lshrrev_b32 v22, 3, v1")
    s("v_lshlrev_b32 v23, 1, v18")
    s("v_and_b32 v24, 7, v1")
    s("v_xor_b32 v23, v23, v24")
    s("v_mul_u32_u24 v22, 1280, v22")
    s("v_lshl_add_u32 v4, v23, 4, v22")
    s("s_mul_i32 s10, s60, 61440")
    s("v_add_u32 v4, s10, v4")
    for t in range(1, 6): s(f"v_add_u32 v{4+t}, {10240*t}, v4")
    s("v_lshrrev_b32 v22, 1, v18")
    s("v_lshlrev_b32 v22, 2, v22")
    s("v_and_b32 v23, 1, v18")
    s("v_lshl_add_u32 v22, v23, 4, v22")
    s("v_lshlrev_b32 v22, 13, v22")
    s("v_lshl_add_u32 v10, v19, 4, v22")
    s("s_lshl_b32 s10, s8, 16")
    s("s_lshl_b32 s11, s9, 8")
    s("s_add_u32 s10, s10, s11")
    s("v_add_u32 v10, s10, v10")
    for t in range(1, 4): s(f"v_add_u32 v{10+t}, {8192*t}, v10")
    s(f"s_mul_i32 s10, s9, {SUB}")
    s(f"s_mul_i32 s11, s8, {CH}")
    s("s_add_u32 s69, s10, s11")
    s("s_mul_i32 s70, s60, 6144")
    if cfg.qrot:
        s("s_lshl_b32 s10, s6, 1")
        s("s_add_u32 s10, s10, s62")
        s("s_mul_i32 s10, s10, 5")
        s("s_lshr_b32 s10, s10, 2")
        s("s_sub_u32 s11, s10, 10")
        s("s_cmp_ge_u32 s10, 10")
        s("s_cselect_b32 s10, s11, s10")
        s("s_lshl_b32 s64, s10, 7")
        s("s_lshl_b32 s65, s10, 19")
    else:
        s("s_mov_b32 s64, 0")
        s("s_mov_b32 s65, 0")
    s("s_waitcnt lgkmcnt(0)")
    if cfg.stamps:
        s("v_mov_b32 v15, 0")
        s("s_nop 0")
        s("v_writelane_b32 v15, s96, 0")
    s("s_or_b32 s10, s63, s60")
    s("s_cmp_lg_u32 s10, 0")
    s("s_cbranch_scc1 L_NOLEAD")
    s("s_lshl_b32 s10, s7, 3")
    s("s_or_b32 s96, s96, 1")
    s("v_mov_b32 v22, s10")
    s("v_mov_b32 v24, s96")
    s("v_mov_b32 v25, s97")
    s("global_store_dwordx2 v22, v[24:25], s[38:39] sc1")
    s("L_NOLEAD:")
    s("s_cmp_eq_u32 s61, 0")
    s("s_cselect_b64 s[44:45], s[16:17], s[26:27]")
    s("s_cselect_b64 s[48:49], s[22:23], s[32:33]")
    s("s_cselect_b64 s[12:13], s[18:19], s[28:29]")
    s("s_cselect_b64 s[14:15], s[20:21], s[30:31]")
    s("s_cselect_b64 s[84:85], s[24:25], s[34:35]")
    s("s_mul_i32 s10, s62, 245760")
    s("s_add_u32 s44, s44, s10")
    s("s_addc_u32 s45, s45, 0")
    s("s_and_b32 s45, s45, 0xffff")
    s("s_mov_b32 s46, 245760")
    s("s_mov_b32 s47, 0x20000")
    s("s_lshl_b32 s10, s63, 9")
    s("s_add_u32 s48, s48, s10")
    s("s_addc_u32 s49, s49, 0")
    s("s_and_b32 s49, s49, 0xffff")
    s("s_sub_u32 s50, 5242880, s10")
    s("s_mov_b32 s51, 0x20000")
    XADV = ["s_add_u32 s64, s64, 128", "s_cmp_eq_u32 s64, 1280", "s_cselect_b32 s64, 0, s64"]
    WADV = ["s_add_u32 s65, s65, 262144", "s_cmp_eq_u32 s65, 5242880", "s_cselect_b32 s65, 0, s65"]
    if cfg.x_hot: XADV = []; WADV = []
    def xdma(sreg, base, ts):
        return [(f"s_add_u32 m0, {sreg}, {base + 1024*t}", f"buffer_load_dwordx4 v{4+t}, s[44:47], s64 offen {cfg.nt_xw} lds") for t in ts]
    def wdma(sreg, base):
        return [(f"s_add_u32 m0, {sreg}, {base + 2*CH*r}", f"buffer_load_dwordx4 v{10+r}, s[48:51], s65 offen {cfg.nt_xw} lds") for r in range(4)]
    for st in range(2):
        for grp in dma_chain(xdma("s70", XSL[st], range(6)) + wdma("s69", WSL[st])):
            for t in grp: s(t)
        for t in XADV + WADV: s(t)
    upb = []
    if cfg.up:
        s("v_mul_u32_u24 v32, 13108, v1")
        s("v_lshrrev_b32 v32, 16, v32")
        s("v_mul_u32_u24 v33, 5, v32")
        s("v_sub_u32 v33, v1, v33")
        s("v_min_u32 v32, 11, v32")
        s("v_mul_u32_u24 v32, 1280, v32")
        s("v_lshl_add_u32 v32, v33, 7, v32")
        s("s_lshl_b32 s10, s6, 2")
        s("s_add_u32 s10, s10, s60")
        s("s_mul_i32 s96, s10, 15360")
        s("v_lshrrev_b32 v33, 2, v1")
        s("v_min_u32 v33, 9, v33")
        s("v_lshlrev_b32 v33, 13, v33")
        s("v_and_b32 v34, 3, v1")
        s("v_lshl_add_u32 v33, v34, 7, v33")
        s("s_lshl_b32 s10, s62, 2")
        s("s_add_u32 s10, s10, s60")
        s("s_mul_i32 s97, s10, 81920")
        s(f"buffer_load_dword a252, v32, s[44:47], s96 offen {cfg.nt_up}")
        s(f"buffer_load_dword a252, v33, s[48:51], s97 offen {cfg.nt_up}")
        s(f"s_add_u32 s97, s97, {320*8192}")
        upb = [("", f"buffer_load_dword a252, v32, s[44:47], s96 offen offset:640 {cfg.nt_up}"),
               ("", f"buffer_load_dword a252, v33, s[48:51], s97 offen {cfg.nt_up}")]
        if cfg.up == 1:
            for _, t in upb: s(t)
            upb = []
    s("v_lshlrev_b32 v0, 4, v1")
    s("v_and_b32 v20, 3, v1")
    s("v_bfe_u32 v21, v1, 2, 2")
    s("v_and_b32 v22, 1, v18")
    s("v_lshl_add_u32 v22, v21, 1, v22")
    s(f"v_mul_u32_u24 v22, {CH}, v22")
    s("v_lshrrev_b32 v23, 1, v18")
    s("v_lshl_add_u32 v22, v23, 8, v22")
    s("v_lshl_add_u32 v26, v20, 3, v22")
    s("v_xor_b32 v24, 2, v20")
    s("v_lshl_add_u32 v27, v24, 3, v22")
    s("v_and_b32 v22, 1, v21")
    s("v_lshl_add_u32 v22, v20, 1, v22")
    s(f"v_mul_u32_u24 v22, {CH}, v22")
    s("v_lshrrev_b32 v23, 1, v21")
    s("v_lshl_add_u32 v22, v23, 8, v22")
    s("v_lshlrev_b32 v23, 1, v18")
    s("v_mov_b32 v24, 0x9c")
    s("v_lshrrev_b32 v23, v23, v24")
    s("v_and_b32 v23, 3, v23")
    s("v_lshl_add_u32 v2, v23, 4, v22")
    s("v_and_b32 v22, 6, v19")
    s("v_xor_b32 v22, v22, v18")
    s("v_lshlrev_b32 v22, 4, v22")
    s("v_lshl_add_u32 v28, v19, 7, v22")
    s("s_mul_i32 s10, s8, 12288")
    s("v_add_u32 v28, s10, v28")
    s("v_xor_b32 v29, 64, v28")
    s(f"s_mul_i32 s10, s9, {2*SUB}")
    s("v_add_u32 v2, s10, v2")
    s(f"s_add_u32 s10, s10, {SUB}")
    s("v_add_u32 v3, s10, v26")
    s(f"s_mul_i32 s10, s9, {SUB}")
    s("v_add_u32 v26, s10, v26")
    s("v_add_u32 v27, s10, v27")
    s(f"s_mul_i32 s75, s60, {SUB}")
    s("s_cmp_eq_u32 s8, 0")
    s("s_cselect_b64 s[52:53], s[12:13], s[14:15]")
    s("s_lshl_b32 s10, s62, 5")
    s("s_lshl_b32 s11, s63, 1")
    s("s_add_u32 s11, s11, s9")
    s("s_add_u32 s10, s10, s11")
    s("s_lshl_b32 s10, s10, 18")
    s("s_add_u32 s52, s52, s10")
    s("s_addc_u32 s53, s53, 0")
    s("s_and_b32 s53, s53, 0xffff")
    s("s_mov_b32 s54, 262144")
    s("s_mov_b32 s55, 0x20000")
    late = Stream(); s = late
    s("s_lshl_b32 s35, s63, 1")
    s("s_add_u32 s35, s35, s9")
    s("s_mul_i32 s34, s7, 12")
    s("s_mul_i32 s3, s8, 6")
    s("s_add_u32 s34, s34, s3")
    s("s_lshl_b32 s34, s34, 17")
    s("s_lshl_b32 s35, s35, 12")
    s("s_add_u32 s34, s34, s35")
    s("s_add_u32 s56, s40, s34")
    s("s_addc_u32 s57, s41, 0")
    s("s_and_b32 s57, s57, 0xffff")
    s(f"s_mov_b32 s58, {5*131072 + 4096}")
    s("s_mov_b32 s59, 0x20000")
    s(f"s_mul_i32 s34, s4, {1024*1280}")
    s("s_add_u32 s92, s84, s34")
    s("s_addc_u32 s93, s85, 0")
    s("s_and_b32 s93, s93, 0xffff")
    s(f"s_mov_b32 s94, {1024*1280}")
    s("s_mov_b32 s95, 0x20000")
    s("s_mul_i32 s35, s6, 320")
    s("s_add_u32 s34, s34, s35")
    s("s_add_u32 s84, s84, s34")
    s("s_addc_u32 s85, s85, 0")
    s("s_and_b32 s85, s85, 0xffff")
    s("s_sub_u32 s86, 5242880, s34")
    s("s_mov_b32 s87, 0x20000")
    s("s_mul_i32 s34, s7, 12")
    s("s_mul_i32 s35, s60, 3")
    s("s_add_u32 s34, s34, s35")
    s("s_lshl_b32 s34, s34, 17")
    s("s_lshl_b32 s35, s4, 15")
    s("s_add_u32 s34, s34, s35")
    s("s_add_u32 s88, s40, s34")
    s("s_addc_u32 s89, s41, 0")
    s("s_and_b32 s89, s89, 0xffff")
    s(f"s_mov_b32 s90, {2*131072 + 32768}")
    s("s_mov_b32 s91, 0x20000")
    s("s_lshl_b32 s34, s7, 4")
    s("s_add_u32 s35, s34, s63")
    s("s_lshl_b32 s35, s35, 2")
    s("s_add_u32 s35, s35, s60")
    s("s_lshl_b32 s35, s35, 6")
    s(f"s_add_u32 s30, s35, {F_OFF}")
    s("s_lshl_b32 s35, s4, 2")
    s("s_add_u32 s35, s35, s34")
    s("s_lshl_b32 s35, s35, 2")
    s("s_add_u32 s35, s35, s9")
    s("s_lshl_b32 s35, s35, 6")
    s(f"s_add_u32 s31, s35, {F_OFF}")
    s("s_add_u32 s35, s34, s6")
    s("s_lshl_b32 s35, s35, 2")
    s("s_add_u32 s35, s35, s4")
    s("s_lshl_b32 s35, s35, 6")
    s(f"s_add_u32 s32, s35, {F_OFF + 65536}")
    s("s_mul_i32 s34, s60, 3072")
    s(f"s_add_u32 s33, s34, {OWN_OFF}")
    for k in range(3):
        s(f"s_add_u32 s34, s6, {k+1}")
        s("s_and_b32 s34, s34, 3")
        s(f"s_lshl_b32 s{16+2*k}, s34, 13")
        s(f"s_add_u32 s{17+2*k}, s{16+2*k}, 4096")
        s("s_lshl_b32 s34, s34, 1")
        s(f"s_lshl_b32 s{24+2*k}, 3, s34")
        s(f"s_mov_b32 s{25+2*k}, 0")
    s(f"s_mov_b32 s76, {f32bits(SCALE):#x}")
    s(f"s_mov_b32 s77, {f32bits(SCALE):#x}")
    s("s_mov_b32 s78, 0")
    if cfg.cls == 0: s("s_cmp_lt_u32 s4, 0")
    elif cfg.cls == 1: s("s_cmp_lt_u32 s4, 2")
    elif cfg.cls == 2: s("s_bitcmp0_b32 s4, 0")
    elif cfg.cls == 3: s("s_bitcmp0_b32 s62, 0")
    s(f"s_cselect_b32 s42, {cfg.laxE}, {cfg.laxL}")
    s(f"s_cselect_b32 s43, 64, {cfg.laxL2}")
    if cfg.dith:
        masks = [0] * 8; pos = 0
        for w in range(cfg.dith):
            cnt = 8 - ((w + 1) * 8) // (cfg.dith + 1)
            for c in range(cnt): masks[(pos + c) % 8] |= 2 << w
            pos += cnt
        s("s_add_u32 s34, s5, s2")
        s("s_and_b32 s34, s34, 7")
        for k in range(8):
            s(f"s_cmp_eq_u32 s34, {k}")
            s(f"s_cselect_b32 s43, {masks[k]}, s43")
    elif cfg.ramp:
        s("s_add_u32 s34, s5, s2")
        s("s_and_b32 s34, s34, 7")
        s(f"s_mul_i32 s35, s34, {cfg.ramp}")
        s("s_lshr_b32 s35, s35, 3")
        s(f"s_sub_u32 s43, {cfg.laxL2}, s35")
        if cfg.rev: s("s_sub_u32 s34, 7, s34")
        s(f"s_mul_i32 s35, s34, {cfg.ramp2}")
        s("s_lshr_b32 s35, s35, 3")
        s(f"s_sub_u32 s42, {cfg.laxL}, s35")
    s("v_mov_b32 v17, 0x3f803f80")
    if cfg.sparse1:
        s("v_cmp_eq_u32 vcc, 0, v20")
        s("s_nop 1")
        s("v_cndmask_b32 v17, 0, v17, vcc")
    for r in range(4): s(f"v_accvgpr_write_b32 a{ONES+r}, v17")
    s = pro
    if cfg.rot == 0: s("s_mov_b32 s71, 0")
    elif cfg.rot == 1: s("s_lshl_b32 s71, s5, 13")
    elif cfg.rot == 2:
        s("s_lshl_b32 s71, s2, 1")
        s("s_add_u32 s71, s71, s9")
        s("s_mul_i32 s71, s71, 0x9E3779B1")
        s("s_lshr_b32 s71, s71, 24")
        s("s_lshl_b32 s71, s71, 10")
    elif cfg.rot == 3:
        s("s_lshl_b32 s71, s5, 1")
        s("s_add_u32 s71, s71, s9")
        s("s_and_b32 s71, s71, 7")
        s("s_lshl_b32 s71, s71, 10")
    elif cfg.rot == 4:
        s("s_lshl_b32 s71, s9, 7")
        s("s_add_u32 s71, s71, s2")
        s("s_and_b32 s71, s71, 255")
        s("s_lshl_b32 s71, s71, 10")
    elif cfg.rot == 5:
        s("s_lshl_b32 s71, s5, 1")
        s("s_add_u32 s71, s71, s9")
        s("s_lshl_b32 s71, s71, 12")
    s("s_add_u32 s72, s71, 4096")
    for r, v in zip((80, 81, 82), WSL): s(f"s_mov_b32 s{r}, {v}")
    for r, v in zip((66, 67, 83), XSL): s(f"s_mov_b32 s{r}, {v}")
    s("v_add_u32 v14, s66, v28")
    s("v_add_u32 v30, s80, v26")
    s("v_add_u32 v31, s80, v27")
    s("s_add_u32 s73, s82, s69")
    s("s_add_u32 s74, s83, s70")
    s(f"s_waitcnt vmcnt({10 + (0, 4, 2)[cfg.up]})")
    stamp(s, cfg, 1)
    pro.ins = pad_hazards(pro.ins)

    def kvdma(m0base_sreg, base):
        if cfg.fine:
            return [(f"s_add_u32 m0, {m0base_sreg}, {base + CH*c}\ns_add_u32 s71, s71, 1024\ns_and_b32 s71, s71, 0x3ffff",
                     f"buffer_load_dwordx4 v0, s[52:55], s71 offen {cfg.nt_kv} lds") for c in range(8)]
        return [(f"s_add_u32 m0, {m0base_sreg}, {base + CH*c - 1024*(c&3)}",
                 f"buffer_load_dwordx4 v0, s[52:55], s{71 + (c>>2)} offen offset:{1024*(c&3)} {cfg.nt_kv} lds") for c in range(8)]
    kvadv = ["s_add_u32 s71, s71, 8192", "s_and_b32 s71, s71, 0x3ffff", "s_add_u32 s72, s71, 4096"]
    if cfg.fine: kvadv = ["", "", ""]

    def wodma(sreg, base):
        return [(f"s_add_u32 m0, {sreg}, {base + 1024*t}", f"buffer_load_dwordx4 v{4+t}, s[84:87], s64 offen {cfg.nt_wo} lds") for t in range(5)]
    WOADV = ["s_add_u32 s64, s64, 81920", "s_cmp_eq_u32 s64, 1310720", "s_cselect_b32 s64, 0, s64"]

    def kreads(par, off):
        return [f"ds_read_b128 {ar(KF(par, f))}, v2 offset:{off + 512*(f>>2) + 64*(f&3)}" for f in range(8)]
    def vreads(par, off):
        return [f"ds_read_b64_tr_b16 {ar(VF(par, dt) + 2*w, 2)}, v3 offset:{off + 512*w + 32*dt}" for dt in range(8) for w in range(2)]
    def qper(par, dmas, post, endwait, reads=True, mf=True, need=None, side=(), c0=False):
        mfl = []
        if mf:
            for dt in range(8):
                for i in range(6):
                    a = OACC(i, dt)
                    mfl.append(f"{MF} {vr(a)}, {ar(QA(par^1, dt))}, {ar(QB(par^1, i))}, {'0' if c0 else vr(a)}")
        rl = []
        if reads:
            for i in range(6):
                rl.append([f"ds_read_b128 {ar(QB(par, i))}, v14 offset:{2048*i}"])
            for dt in range(8):
                for w in range(2):
                    rl.append([f"ds_read_b64_tr_b16 {ar(QA(par, dt) + 2*w, 2)}, v{30 + (dt & 1)} offset:{512*w + 32*dt}"])
        gaps = {}
        dch = dma_chain(list(dmas or []))
        if dch: spread(gaps, dch, 0, 38, cap=3)
        if rl: spread(gaps, rl, 0, 34)
        assert not gaps or max(gaps) < 38
        for n, t in enumerate(post):
            gaps.setdefault(38 + n // 2, []).append(t)
        for g in gaps: gaps[g] = [t for t in gaps[g] if t]
        if side: spread(gaps, [[t] for t in side], 0, 36 if len(side) < 20 else 44)
        s = Stream()
        s("s_barrier", need if need is not None else ("s[48:51]:4 s[44:47]:6" if par == 0 else "s[48:51]:4 s[44:47]:9"))
        if mf:
            assert max(gaps) <= 47, max(gaps)
            s.extend(interleave(mfl, gaps))
        else:
            for k in sorted(gaps):
                for t in gaps[k]: s(t)
        if endwait: s(endwait)
        return s
    def upd(par, dma=True):
        l = []
        if dma: l += WADV + ["s_add_u32 s73, s80, s69"]
        l += ["s_mov_b32 s10, s80", "s_mov_b32 s80, s81", "s_mov_b32 s81, s82", "s_mov_b32 s82, s10",
              "v_add_u32 v30, s80, v26", "v_add_u32 v31, s80, v27"]
        if par == 0:
            l += ["v_add_u32 v14, s66, v29"]
        else:
            if dma: l += XADV + ["s_add_u32 s74, s66, s70"]
            l += ["s_mov_b32 s10, s66", "s_mov_b32 s66, s67", "s_mov_b32 s67, s83", "s_mov_b32 s83, s10"]
            l.append("v_add_u32 v14, s66, v28")
        return l
    def qd(par): return xdma("s74", 0, range(3*par, 3*par+3)) + wdma("s73", 0)
    ADV = "s_add_u32 s71, s71, 1024\ns_and_b32 s71, s71, 0x3ffff"
    kvp = kvdma("s75", 0) + [(ADV, f"buffer_load_dwordx4 {ar(4*n)}, v0, s[52:55], s71 offen {cfg.nt_kv}") for n in range(24)]
    wov = ["s_mul_i32 s10, s60, 320", "v_add_u32 v9, s10, v1"]
    for t in range(5):
        wov += [f"v_add_u32 v22, {64*t}, v9",
                "v_mul_u32_u24 v23, 3277, v22",
                "v_lshrrev_b32 v23, 16, v23",
                "v_mul_u32_u24 v24, 20, v23",
                "v_sub_u32 v24, v22, v24",
                "v_bfe_u32 v22, v23, 2, 1",
                "v_lshlrev_b32 v22, 1, v22",
                "v_xor_b32 v24, v24, v22",
                "v_mul_u32_u24 v23, 1280, v23",
                f"v_lshl_add_u32 v{4+t}, v24, 4, v23"]
    def flush(t):
        return [("", f"ds_write_b128 v25, {ar(32*(t-1) + 4*c)} offset:{CH*c}") for c in range(8)]
    tw2 = [("s_lshl_b32 s11, s5, 2\ns_add_u32 s11, s11, s60\ns_mul_i32 s11, s11, 10240\nv_mul_u32_u24 v17, 160, v1", f"buffer_load_dword a252, v17, s[92:95], s11 offen {cfg.nt_tw}"),
           ("", f"buffer_load_dword a253, v17, s[92:95], s11 offen offset:80 {cfg.nt_tw}")] if cfg.warm_wo == 2 else []
    if cfg.preflag:
        tw2 = tw2 + [("v_mov_b32 v32, s30\nv_mov_b32 v34, 0\nv_mov_b32 v35, 0\nv_add_u32 v33, 65536, v32", "global_store_dwordx2 v32, v[34:35], s[40:41] sc1"),
                     ("", "global_store_dwordx2 v33, v[34:35], s[40:41] sc1")]
    nper = [0] * 21
    p = cfg.kvp0; left = 32
    while left:
        nper[p] += 1; left -= 1; p += 1
        if p > cfg.kvp1: p = cfg.kvp0
    if cfg.kvb == 1:
        nper = [0] * 21
        for q in (4, 8, 12, 16): nper[q] = 8
    if cfg.kvb == 2:
        nper = [0] * 21
        for q in (6, 11, 16): nper[q] = 11
        nper[16] = 10
    if cfg.kvb == 3:
        nper = [0] * 21
        for q in (2, 4, 6, 8, 10, 12, 14, 16): nper[q] = 4
    lt = []
    for x in late.ins:
        if x.op in ("s_addc_u32", "s_cselect_b32"): lt[-1] += "\n" + x.text
        else: lt.append(x.text)
    lateg = [lt[k:k+14] for k in range(0, len(lt), 14)]
    q0 = None; qloop = Stream(); qtail = Stream()
    prev_extra = (0, 4, 2)[cfg.up]; pos = 0
    wov += ["v_lshrrev_b32 v22, 2, v1", "v_mul_u32_u24 v23, 320, v22", "v_lshl_add_u32 v23, v20, 3, v23", "v_bfe_u32 v22, v1, 4, 1",
            "v_lshl_add_u32 v9, v22, 5, v23", "v_xor_b32 v22, 1, v22", "v_lshl_add_u32 v10, v22, 5, v23",
            "v_add_u32 v11, 131072, v0", "v_add_u32 v12, 262144, v0", "s_mul_i32 s70, s60, 5120"]
    for sidx in range(20):
        par = sidx & 1
        own = qd(par) if sidx <= 15 else (wdma("s73", 0) if sidx <= 17 else [])
        ex_ = kvp[pos:pos + nper[sidx]]; pos += nper[sidx]
        if sidx == cfg.upp: ex_ = ex_ + upb
        dm = own + ex_
        post = upd(par, sidx <= 16) if sidx <= 18 else []
        need = None
        nvm = len(dm) + prev_extra
        if sidx == 17:
            need = "s[48:51]:4 s[44:47]:6"
            post = post + [f"s_add_u32 s10, s75, {SLOT}", "v_add_u32 v25, s10, v0"]
            nvm = min(nvm, 4 + len(ex_) + prev_extra)
        if sidx >= 18:
            need = "s[48:51]:4 s[44:47]:0" if sidx == 18 else "s[48:51]:0 s[44:47]:0"
            dm = flush(sidx - 17) + (tw2 if sidx == cfg.twp else [])
            post = post + [f"v_add_u32 v25, {SLOT}, v25"]
        endw = f"s_waitcnt vmcnt({nvm}) lgkmcnt(0)"
        if sidx == 17: endw = "WAIT17"
        if sidx == 18: endw = f"s_waitcnt vmcnt({len(tw2) if cfg.twp == 18 else 0}) lgkmcnt(0)"
        if sidx == 19: endw = "s_waitcnt lgkmcnt(0)"
        if sidx == 20: endw = "s_waitcnt lgkmcnt(0)"
        if endw == "WAIT17":
            later = 32 - 16 + 4 * sum(1 for q in range(21) if q <= 17 and sum(nper[:q]) >= 16) + 3 * sum(1 for q in range(16) if sum(nper[:q]) >= 16)
            endw = f"s_waitcnt vmcnt({min(nvm, later)}) lgkmcnt(0)"
        if cfg.x_nowait and sidx < 17: endw = "s_waitcnt vmcnt(40) lgkmcnt(0)"
        if cfg.x_nodma and sidx < 18: dm = []
        side = {18: wov[:31], 19: wov[31:]}.get(sidx, [])
        if 2 <= sidx < 2 + len(lateg): side = lateg[sidx - 2]
        per = qper(par, dm, post, endw, reads=True, mf=(sidx > 0), need=need, side=side, c0=(sidx == 1))
        if sidx == 0:
            q0 = per; q0.ins = pad_hazards(q0.ins)
        elif sidx < 15: qloop.extend(per)
        else:
            if sidx == 15: stamp(qtail, cfg, 15)
            qtail.extend(per)
        prev_extra = len(ex_)
    stamp(qtail, cfg, 2)
    def qepi(i):
        l = []
        for kk in range(4):
            b = OACC(i, 2*kk)
            if cfg.pkq:
                for p in range(4): l.append(f"v_pk_mul_f32 {vr(b+2*p,2)}, {vr(b+2*p,2)}, s[76:77]")
            else:
                for p in range(8): l.append(f"v_mul_f32 v{b+p}, s76, v{b+p}")
        for kk in range(4):
            b = OACC(i, 2*kk)
            for p in range(4): l.append(f"v_cvt_pk_bf16_f32 v{b+p}, v{b+2*p}, v{b+2*p+1}")
        for kk in range(4):
            b = OACC(i, 2*kk)
            l += [f"v_permlane16_swap_b32 v{b}, v{b+2}", f"v_permlane16_swap_b32 v{b+1}, v{b+3}"]
        for kk in range(4):
            b = OACC(i, 2*kk)
            for p in range(4): l.append(f"v_accvgpr_write_b32 a{QF(i,kk)+p}, v{b+p}")
        return l
    def redu(i):
        n = NEGM(i)
        return [f"v_max3_f32 v{n}, v{n}, v{n+1}, v{n+2}", f"v_max_f32 v{n}, v{n}, v{n+3}",
                f"v_mov_b32 v{n+1}, v{n}", f"v_permlane16_swap_b32 v{n}, v{n+1}", f"v_max_f32 v{n}, v{n}, v{n+1}",
                f"v_mov_b32 v{n+1}, v{n}", f"v_permlane32_swap_b32 v{n}, v{n+1}", f"v_max_f32 v{n}, v{n}, v{n+1}",
                f"v_sub_f32 v{n+3}, 0, v{n}", f"v_sub_f32 v{n+2}, 0, v{n}", f"v_sub_f32 v{n+1}, 0, v{n}", f"v_sub_f32 v{n}, 0, v{n}"]
    def M(i): return [f"{MF} {vr(OACC(i, dt))}, {ar(QA(1, dt))}, {ar(QB(1, i))}, {vr(OACC(i, dt))}" for dt in range(8)]
    def Rm(i): return [f"{MF} {vr(NEGM(i))}, {ar(KF(0, kk))}, {ar(QF(i, kk))}, {'0' if kk == 0 else vr(NEGM(i))}" for kk in range(4)]
    def merge(valu, other):
        out = []; n = len(valu); m = len(other); k = 0
        for x, t in enumerate(valu):
            while k < m and k * n <= x * m: out.append(other[k]); k += 1
            out.append(t)
        return out + other[k:]
    INIT = [f"s_add_u32 s73, s75, {2*SLOT}", "s_mov_b32 s72, s75", f"s_mov_b32 s74, {2*SLOT}", f"s_mov_b32 s68, {cfg.ltrips - 1}"]
    qe = Stream()
    qe("s_barrier")
    lds = [d for _, d in flush(3)] + kreads(0, 0) + vreads(0, 0)
    for t in merge(lds, M(0) + M(1)): qe(t)
    for t in INIT: qe(t)
    for t in merge(qepi(0), M(2)): qe(t)
    qe("s_waitcnt lgkmcnt(0)")
    for t in merge(qepi(1), M(3) + Rm(0)): qe(t)
    for t in merge(merge(qepi(2), [""] * 12 + redu(0)), M(4) + Rm(1)): qe(t)
    for t in merge(merge(qepi(3), [""] * 12 + redu(1)), M(5) + Rm(2)): qe(t)
    for t in merge(merge(qepi(4), [""] * 12 + redu(2)), Rm(3) + [""] * 4): qe(t)
    for t in merge(merge(qepi(5), redu(3)), Rm(4) + [""] * 4): qe(t)
    for t in Rm(5) + redu(4) + redu(5): qe(t)
    stamp(qe, cfg, 3)
    qe.ins = pad_hazards(qe.ins, qtail.ins[-16:])
    st = Stream()
    for t in INIT: st(t)
    st("s_barrier", "s[52:55]:0")
    for t in kreads(0, 0) + vreads(0, 0): st(t)
    for i in R6:
        for t in redu(i): st(t)
    st("s_waitcnt lgkmcnt(0)")
    st("s_branch L_W0")
    st.ins = pad_hazards(st.ins)

    def E(u, r):
        x = SREG(u & 1, r >> 2) + (r & 3)
        return f"v_exp_f32 v{x}, v{x}"
    def C(u, c):
        x = SREG(u & 1, 0) + 2 * c
        return f"v_cvt_pk_bf16_f32 v{PREG(u & 1) + c}, v{x}, v{x+1}"
    def QK(u, j):
        i = u % 6; l = []
        for kt in range(2):
            for kk in range(4):
                d = vr(SREG(u & 1, kt))
                c = vr(NEGM(i)) if kk == 0 else d
                l.append(f"{MF} {d}, {ar(KF(j & 1, 4*kt + kk))}, {ar(QF(i, kk))}, {c}")
        return l
    def PV(u):
        if u < 0: return [None] * 9
        i = u % 6; j = u // 6; l = []
        for dt in range(8):
            d = vr(OACC(i, dt))
            l.append(f"{MF} {d}, {ar(VF(j & 1, dt))}, {vr(PREG(u & 1))}, {'0' if j == 0 else d}")
        d = ar(LACC(i))
        l.append(f"{MF} {d}, {ar(ONES)}, {vr(PREG(u & 1))}, {'0' if j == 0 else d}")
        return l

    RCP = [40, 44, 48, 52, 42, 46]
    def epi(i):
        r = RCP[i]
        l = [f"v_accvgpr_read_b32 v{r}, a{LACC(i)}",
             f"v_cmp_nge_f32 vcc, s15, v{r}",
             f"v_rcp_f32 v{r}, v{r}",
             "s_nop 0",
             "s_or_b64 s[12:13], s[12:13], vcc"]
        for dtp in range(4):
            b = OACC(i, 2*dtp)
            if cfg.pke > i:
                for p in range(4): l.append(f"v_mul_f32 v{b+2*p}, v{r}, v{b+2*p}\nv_mul_f32 v{b+2*p+1}, v{r}, v{b+2*p+1}")
            else:
                for p in range(4): l.append(f"v_pk_mul_f32 {vr(b+2*p,2)}, {vr(b+2*p,2)}, {vr(r,2)} op_sel_hi:[1,0]")
            for p in range(4): l.append(f"v_cvt_pk_bf16_f32 v{b+p}, v{b+2*p}, v{b+2*p+1}")
            l.append(f"buffer_store_dwordx4 {vr(b)}, v0, s[56:59], s14 offen offset:{1024*dtp} {cfg.ost}")
            l.append(f"ds_write_b128 v13, {vr(b)} offset:{12288*dtp + 1024*i}")
        l.append("s_add_u32 s14, s14, 131072")
        return l
    def fill(gaps, base, n, items):
        for k, t in enumerate(items): gaps.setdefault(base + (k * n) // len(items), []).append(t)

    LT = cfg.ltrips
    NCH = [cfg.n01, cfg.n01] + [8] * (2 * LT)
    rem = 224 - sum(NCH); ntl = 29 - len(NCH)
    last29 = min(cfg.use29 - 1, rem) if cfg.use29 else 0
    rem -= last29
    for k in range(ntl): x = min(8, -(-rem // (ntl - k))) if cfg.use29 else min(8, rem); NCH.append(x); rem -= x
    NCH += [last29, 0, 0]
    assert sum(NCH) == 224 and len(NCH) == 32, NCH
    G0 = [32 + sum(NCH[:j]) for j in range(33)]
    def allowed(j): return max(0, G0[j + 1] - 8 * min(32, j + 3))
    for j in range(30): assert G0[j + 1] >= 8 * min(32, j + 3) and G0[j + 1] <= 8 * (j + 5), (j, NCH)
    def window(j, head=(), endw=None, inloop=False, reads=True, extra=(), last=False):
        par = j & 1
        need = f"s[52:55]:{allowed(j - 1) if j else 0}"
        mfl = []; gaps = {}
        def put(i, k, t): gaps.setdefault(17*i + k, []).append(t)
        for i in range(6):
            u = 6*j + i
            mfl += QK(u, j) + PV(u - 2)
            for n, k in enumerate((9, 11, 13, 15)): put(i, k, E(u, n))
            if u >= 1:
                for n, k in enumerate((0, 2, 4, 6)): put(i, k, E(u-1, 4+n))
                put(i, 1, C(u-1, 0)); put(i, 1, C(u-1, 1)); put(i, 5, C(u-1, 2)); put(i, 8, C(u-1, 3))
        off = SLOT if par == 0 else 0
        for t in head: put(0, 3, t)
        if reads:
            kr = kreads(par ^ 1, off); vrd = vreads(par ^ 1, off)
            kpos = [(0, 7), (0, 12), (1, 3), (1, 7)]
            for n, (i, k) in enumerate(kpos):
                put(i, k, kr[2*n]); put(i, k, kr[2*n+1])
            vpos = [(i, k) for i in (2, 3, 4, 5) for k in (3, 7)]
            for n, (i, k) in enumerate(vpos):
                put(i, k, vrd[2*n]); put(i, k, vrd[2*n+1])
        n = NCH[j]; g0 = G0[j]
        if n:
            dall = [(0, 10), (0, 16), (1, 12), (2, 10), (3, 10), (3, 16), (4, 12), (5, 10)]
            mall = [(0, 8), (0, 10), (0, 16), (1, 12), (2, 10), (3, 10), (3, 16), (4, 12)]
            aall = [(0, 3), (0, 14), (1, 10), (1, 14), (2, 14), (3, 12), (4, 10), (4, 14)]
            if cfg.d3 == 1:
                dall[3] = (2, 16); mall[4] = (2, 16); aall[4] = (3, 5)
            if cfg.even:
                dall = [(0, 10), (1, 5), (1, 16), (2, 14), (3, 10), (4, 5), (4, 16), (5, 12)]
                mall = [(0, 8), (0, 10), (1, 8), (1, 16), (2, 14), (3, 10), (4, 8), (4, 16)]
                aall = [(0, 3), (0, 14), (1, 10), (2, 10), (2, 16), (3, 14), (4, 10), (5, 10)]
            if cfg.burst:
                a_, b_ = cfg.burst - 1, cfg.burst + 2
                dall = [(a_, 10), (a_, 12), (a_, 14), (a_, 16), (b_, 10), (b_, 12), (b_, 14), (b_, 16)]
                mall = [(a_, 8), (a_, 10), (a_, 12), (a_, 14), (b_, 8), (b_, 10), (b_, 12), (b_, 14)]
                aall = [(a_, 5), (a_, 11), (a_, 13), (a_, 15), (b_, 5), (b_, 11), (b_, 13), (b_, 15)]
            sel = list(range(n)) if j == 29 else [(k * 8) // n for k in range(n)]
            items = []
            for c, k in enumerate(sel):
                g = g0 + c; tile = g >> 3
                if not inloop: m = f"s_add_u32 m0, s75, {SLOT * (tile & 3) + CH * (g & 7)}"
                elif (tile >> 1) % 2 == (j >> 1) % 2: m = f"s_add_u32 m0, s73, {SLOT * (tile & 1) + CH * (g & 7)}"
                else: m = f"s_add_u32 m0, s72, {SLOT * (tile & 1) + CH * (g & 7)}"
                items.append((k, m))
            for k, m in items:
                if cfg.slide: put(*dall[k], f"s_waitcnt vmcnt({cfg.slide + (1 if (cfg.smix >> k) & 1 else 0)})")
                put(*dall[k], f"buffer_load_dwordx4 v0, s[52:55], s71 offen {cfg.nt_kv} lds")
            for k, m in items:
                put(*mall[k], m)
                put(*aall[k], "s_add_u32 s71, s71, 1024"); put(*aall[k], "s_and_b32 s71, s71, 0x3ffff")
        if inloop and par == 1:
            put(5, 16, "s_mov_b32 s72, s73"); put(5, 16, "s_sub_u32 s73, s73, s74")
        if par == 0:
            put(2, 12, "v_add_u32 v2, s74, v2")
            put(5, 14, "v_add_u32 v3, s74, v3")
        else:
            put(5, 14, "s_sub_u32 s74, 0, s74")
        fpos = [(i, k) for i in range(6) for k in (10, 12, 14, 16)]
        fpos = [x for x in fpos if x not in ((0, 12), (2, 12), (5, 14)) and not gaps.get(17*x[0] + x[1])]
        assert len(extra) <= len(fpos)
        for grp, (i, k) in zip(extra, fpos):
            for t in grp: put(i, k, t)
        if last:
            u = 6*j + 5
            mfl += PV(u - 1) + PV(u)
            b = 102
            for k, t in ((0, E(u,4)), (1, C(u,0)), (1, C(u,1)), (2, E(u,5)), (3, E(u,6)), (4, C(u,2)), (5, E(u,7)), (7, C(u,3))):
                gaps.setdefault(b + k, []).append(t)
            fill(gaps, 17*3 + 4, 17, epi(0))
            fill(gaps, 17*4 + 4, 17, epi(1))
            fill(gaps, 17*5 + 4, 17, epi(2))
            fill(gaps, b + 4, 9, epi(3))
            fill(gaps, b + 13, 5, epi(4)[:16])
        s = Stream()
        s("s_barrier", need)
        s.extend(interleave(mfl, gaps))
        if endw != "": s(endw or f"s_waitcnt vmcnt({min(cfg.kvwt, allowed(j))}) lgkmcnt(0)")
        return s
    w0 = Stream()
    w0("L_W0:")
    w0.extend(window(0, endw=f"s_waitcnt vmcnt({cfg.kvw0}) lgkmcnt(0)"))
    w0.extend(window(1, endw=f"s_waitcnt vmcnt({cfg.kvw1}) lgkmcnt(0)"))
    w0.ins = pad_hazards(w0.ins, qe.ins[-16:])
    loop = Stream()
    loop("L_LOOP:")
    if cfg.lax:
        for jj, lb in ((2, "L_LX0"), (3, "L_LX1")):
            loop.extend(window(jj, endw="", inloop=True, extra=([["s_lshr_b32 s43, s43, 1"]] if cfg.dith else [])))
            if cfg.dith:
                loop("s_bitcmp0_b32 s43, 0")
                loop(f"s_waitcnt vmcnt({cfg.kvwE}) lgkmcnt(0)")
                loop(f"s_cbranch_scc1 {lb}")
                loop(f"s_waitcnt vmcnt({cfg.kvw})", "pace")
            else:
                loop("s_cmp_lt_u32 s68, s42")
                loop(f"s_waitcnt vmcnt({min(cfg.kvw3, allowed(2))}) lgkmcnt(0)")
                loop(f"s_cbranch_scc1 {lb}")
                loop("s_cmp_lt_u32 s68, s43" if not cfg.early else f"s_cmp_ge_u32 s68, {cfg.ltrips - cfg.early}")
                loop(f"s_waitcnt vmcnt({cfg.kvwE})", "pace")
                loop(f"s_cbranch_scc1 {lb}")
                loop(f"s_waitcnt vmcnt({cfg.kvw})", "pace")
            loop(f"{lb}:")
    else:
        loop.extend(window(2)); loop.extend(window(3))
    if cfg.stamps == 2:
        loop("s_memrealtime s[98:99]")
        loop("s_sub_u32 m0, 28, s68")
        loop("s_waitcnt lgkmcnt(0)")
        loop("v_writelane_b32 v15, s98, m0")
    loop("s_sub_u32 s68, s68, 1")
    loop("s_cbranch_scc0 L_LOOP")
    tail = Stream()
    stamp(tail, cfg, 12)
    for jj in range(2 * LT + 2, 29): tail.extend(window(jj))
    wx = [["s_mul_i32 s64, s6, 327680"]]
    for st_ in range(3):
        ch = dma_chain(wodma("s70", WOR[st_]))
        ch[-1] = ch[-1] + WOADV
        wx[-1] = wx[-1] + ch[0]; ch = ch[1:]
        wx += ch
    ex = [[f"s_mov_b32 s15, {f32bits(float('inf') if (cfg.x_nowait or cfg.x_nodma) else (THR if not cfg.force_fb else 1.0)):#x}", "s_mov_b64 s[12:13], 0"],
          ["s_mov_b32 s14, 0", "s_mul_i32 s10, s9, 49152"],
          ["s_mul_i32 s11, s8, 6144", "s_add_u32 s10, s10, s11"],
          [f"s_add_u32 s10, s10, {OWN_OFF}", "v_add_u32 v13, s10, v0"]]
    tail.extend(window(29, extra=ex))
    tail.extend(window(30, extra=wx, endw="s_waitcnt lgkmcnt(0)"))
    stamp(tail, cfg, 13)
    tail.extend(window(31, reads=False, last=True, endw=""))
    stamp(tail, cfg, 4)
    tail.ins = pad_hazards(tail.ins, loop.ins[-16:])
    ep = Stream()
    ep("s_lshl_b32 s10, s7, 3")
    ep("v_mov_b32 v16, s10")
    ep("global_load_dwordx2 v[56:57], v16, s[38:39] sc1")
    ep("v_mov_b32 v58, s30")
    ep("v_add_u32 v60, 65536, v58")
    ep("v_and_b32 v59, 7, v1")
    ep("v_lshl_add_u32 v59, v59, 7, s31")
    ep("v_and_b32 v61, 3, v1")
    ep("v_max_u32 v61, 1, v61")
    ep("v_add_u32 v61, s4, v61")
    ep("v_and_b32 v61, 3, v61")
    ep("v_lshl_add_u32 v61, v61, 10, s32")
    ep("v_add_u32 v62, s33, v0")
    ep("v_add_u32 v63, 49152, v62")
    for t in epi(4)[16:] + epi(5): ep(t)
    ep("s_cmp_lg_u64 s[12:13], 0")
    ep("s_cselect_b32 s10, 1, 0")
    ep("v_mov_b32 v16, s10")
    ep("s_lshl_b32 s10, s60, 2")
    ep(f"s_add_u32 s10, s10, {FLAG_OFF}")
    ep("v_mov_b32 v17, s10")
    ep(f"v_mov_b32 v18, {FLAG_OFF}")
    ep("ds_write_b32 v17, v16")
    ep("global_load_dwordx2 v[228:229], v59, s[40:41] sc1")
    ep("s_waitcnt vmcnt(26) lgkmcnt(0)")
    ep("s_barrier", "s[84:87]:0")
    ep("ds_read_b128 v[20:23], v18")
    for nt in range(10):
        for w in range(2): ep(f"ds_read_b64_tr_b16 {vr(TA(0, nt) + 2*w, 2)}, v{9 + (nt & 1)} offset:{WOR[0] + 5120*w + 32*(nt & ~1)}")
    own = [f"ds_read_b128 {ar(TOWN(u, i))}, v{62 + (u >> 2)} offset:{12288*(u & 3) + 1024*i}" for u in range(8) for i in range(3)]
    for t in own[:6]: ep(t)
    ep("s_waitcnt lgkmcnt(15)")
    ep("v_or_b32 v20, v20, v21")
    ep("v_or3_b32 v20, v20, v22, v23")
    ep("v_readfirstlane_b32 s10, v20")
    ep("s_andn2_b32 s10, s10, s78")
    if cfg.x_nowait or cfg.x_nodma: ep("s_mov_b32 s10, 0")
    ep("s_cmp_lg_u32 s10, 0")
    ep("s_cbranch_scc1 L_FALLBACK")
    stamp(ep, cfg, 5)
    def signal(s, w):
        s(f"s_waitcnt vmcnt({w})")
        s(f"s_mov_b32 s79, {SPIN_MAX}")
        s("L_TAG:")
        s("v_readfirstlane_b32 s10, v56")
        s("s_nop 0")
        s("s_cmp_lg_u32 s10, 0")
        s("s_cbranch_scc1 L_TAGOK")
        s("s_lshl_b32 s10, s7, 3")
        s("v_mov_b32 v230, s10")
        s("s_sleep 2")
        s("s_sub_u32 s79, s79, 1")
        s("global_load_dwordx2 v[56:57], v230, s[38:39] sc1")
        s("s_waitcnt vmcnt(0)", "spin")
        s("s_cbranch_scc0 L_TAG")
        s("L_TAGOK:")
        s("global_store_dwordx2 v58, v[56:57], s[40:41] sc1")
    if cfg.sigp < 0: signal(ep, 1)
    ep("s_waitcnt lgkmcnt(0)")
    stamp(ep, cfg, 6)
    ep.ins = pad_hazards(ep.ins, tail.ins[-16:])

    def poll(s, lbl, vaddr, first_issued):
        s(f"s_mov_b32 s79, {SPIN_MAX}")
        if first_issued: s(f"s_branch {lbl}_C")
        s(f"{lbl}:")
        s(f"global_load_dwordx2 v[228:229], {vaddr}, s[40:41] sc1")
        s(f"{lbl}_C:")
        s("s_waitcnt vmcnt(0)")
        s("v_cmp_ne_u64 vcc, v[228:229], v[56:57]")
        s("s_sub_u32 s79, s79, 1")
        s(f"s_cbranch_scc1 {lbl}_OK")
        s("s_cmp_lg_u64 vcc, 0")
        s(f"s_cbranch_scc1 {lbl}")
        s(f"{lbl}_OK:")
    def OB(p, i):
        t, u = p >> 3, p & 7
        return (96 if t % 2 == 0 else 0) + 12 * u + 4 * i
    def oload(p, i):
        t, u = p >> 3, p & 7
        return f"buffer_load_dwordx4 {ar(OB(p, i))}, v{(0, 11, 12)[i]}, s[88:91], s{16 + 2*(t-1) + (u >> 2)} offen offset:{1024*(u & 3)} {cfg.old}"
    def treads2(p):
        st_ = p >> 1
        return [f"ds_read_b64_tr_b16 {vr(TA(p & 1, nt) + 2*w, 2)}, v{9 + (nt & 1)} offset:{WOR[st_ % 3] + 10240*(p & 1) + 5120*w + 32*(nt & ~1)}"
                for nt in range(10) for w in range(2)]
    FLD = "global_load_dwordx2 v[228:229], v59, s[40:41] sc1"
    def tper(p, items, pre=()):
        mfl = []
        for nt in range(10):
            for i in range(3):
                a = vr(TACC(i, nt))
                mfl.append(f"{MF} {a}, {vr(TA(p & 1, nt))}, {ar(OB(p, i))}, {'0' if p == 0 else a}")
        gaps = {}; s = Stream(); tags = []; grp = []
        if p & 1:
            s("s_barrier", "s[84:87]:5" if p <= 27 else "s[84:87]:0")
            stg = (p + 1) // 2 + 2
            if stg <= 15:
                ch = dma_chain(wodma("s70", WOR[stg % 3])); ch[-1] = ch[-1] + [WOADV[0]]
                grp += ch + [WOADV[1:]]; tags += [("w", stg)] * 5
        for tg_, t in items:
            grp.append([t])
            if tg_ is not None: tags.append(tg_)
        for t in pre: s(t)
        if grp: spread(gaps, grp, 0, 27, cap=2)
        if p < 31: spread(gaps, [[t] for t in treads2(p + 1)], 0, 24, cap=2)
        assert max(gaps, default=0) <= 29, max(gaps)
        s.extend(interleave(mfl, gaps))
        return s, tags
    def need_after(p):
        n = [("o", p + 1)]
        if p % 2 == 0: n.append(("w", p // 2 + 1))
        return n
    def minwait(q, needs):
        idx = [k for k, x in enumerate(q) if x in needs]
        return (len(q) - 1 - idx[-1]) if idx else None
    def check_partner(s, lbl, k):
        s(f"s_and_b64 s[10:11], s[22:23], s[{24 + 2*k}:{25 + 2*k}]")
        s(f"s_cbranch_scc0 {lbl}_OK")
        s(f"s_mov_b32 s79, {SPIN_MAX}")
        s(f"{lbl}:")
        s(FLD)
        s("s_waitcnt vmcnt(0)", "spin")
        s("v_cmp_ne_u64 s[22:23], v[228:229], v[56:57]")
        s("s_sub_u32 s79, s79, 1")
        s(f"s_cbranch_scc1 {lbl}_OK")
        s(f"s_and_b64 s[10:11], s[22:23], s[{24 + 2*k}:{25 + 2*k}]")
        s(f"s_cbranch_scc1 {lbl}")
        s(f"{lbl}_OK:")
    allo = [(("o", p), oload(p, i)) for p in range(8, 32) for i in range(3)]
    when = []
    for n in range(72):
        p = 8 + n // 3
        when.append(max(cfg.pollp + (n * 10) // cfg.orate, p - 15 if p >= 16 else 0, 8 if p >= 16 else 0))
    n0 = sum(1 for x in when if x < 8)
    p1 = allo[:n0]
    def trip0(mode, q):
        s = Stream(); q = list(q)
        fast = mode == "fast"
        first = cfg.dp if fast else cfg.pollp
        nsp = 8 - first - (1 if fast else 0)
        for u in (range(cfg.dp) if mode == "pre" else range(cfg.dp, 8)):
            items = []
            if u < 3: items += [(None, t) for t in own[6 + 6*u: 12 + 6*u]]
            if mode == "slow" and u == cfg.fldp: items.append((("f", 1), FLD))
            pre = Stream()
            if mode == "slow" and u == cfg.pollp:
                w = minwait(q, [('f', 1)])
                if w is not None: pre(f"s_waitcnt vmcnt({w})")
                pre("v_cmp_ne_u64 s[22:23], v[228:229], v[56:57]")
                pre("s_nop 0")
                check_partner(pre, "L_PA", 0)
                stamp(pre, cfg, 7)
            if mode != "pre" and first <= u < first + nsp:
                k = u - first
                items += p1[(k * n0) // nsp: ((k + 1) * n0) // nsp]
            s.extend(pre)
            st_, tags = tper(u, items)
            s.extend(st_); q += tags
            if mode == "pre" and u == cfg.sigp:
                w = minwait(q, [("ost", 0)]); signal(s, w); q = q[len(q) - w:] + [("s", 0)]
            nd = need_after(u)
            if fast and u == 7: nd = nd + [("w", 5)] + [x for x, _ in p1[:n0 - 4]]
            if mode == "pre" and u == cfg.dp - 1: nd = nd + [("f", 0)]
            w = minwait(q, nd)
            s(f"s_waitcnt vmcnt({w}) lgkmcnt(0)" if w is not None else "s_waitcnt lgkmcnt(0)")
            if w is not None: q = q[len(q) - w:] if w else []
            if cfg.stamps == 3: stamp(s, cfg, 16 + u)
        return s, q
    t0p, qp = trip0("pre", [("f", 0), ("s", 0)] if cfg.sigp < 0 else [("ost", 0), ("f", 0)])
    t0p("v_cmp_ne_u64 s[22:23], v[228:229], v[56:57]")
    t0p("s_nop 0")
    t0p("s_and_b64 s[10:11], s[22:23], s[24:25]")
    t0p("s_cbranch_scc0 L_T0F")
    t0, qs = trip0("slow", qp)
    t0("L_T1:")
    tf = Stream(); tf("L_T0F:")
    stamp(tf, cfg, 7)
    tf_, qf = trip0("fast", qp); tf.extend(tf_); tf("s_branch L_T1")
    tl = Stream()
    stamp(tl, cfg, 14)
    for p in range(8, 32):
        items = []
        pre = Stream()
        if p == when[24]: check_partner(pre, "L_PA2", 1)
        if p == when[48]: check_partner(pre, "L_PA3", 2)
        items += [allo[n] for n in range(72) if when[n] == p]
        tl.extend(pre)
        st_, tags = tper(p, items)
        tl.extend(st_); qs += tags; qf += tags
        ws_ = [w for w in (minwait(qs, need_after(p)), minwait(qf, need_after(p))) if w is not None]
        if p < 31: tl(f"s_waitcnt vmcnt({min(ws_)}) lgkmcnt(0)" if ws_ else "s_waitcnt lgkmcnt(0)")
        if cfg.stamps == 3 and p < 16: stamp(tl, cfg, 16 + p)
        if ws_:
            w = min(ws_)
            qs = qs[max(0, len(qs) - w):] if w else []
            qf = qf[max(0, len(qf) - w):] if w else []
    PS = 15360
    fin = Stream()
    stamp(fin, cfg, 8)
    fin("s_lshl_b32 s10, s7, 2")
    fin("s_add_u32 s10, s10, s6")
    fin("s_lshl_b32 s10, s10, 2")
    fin("s_add_u32 s11, s10, s60")
    fin("s_lshl_b32 s11, s11, 2")
    fin("s_add_u32 s11, s11, s4")
    fin(f"s_mul_i32 s11, s11, {PS}")
    fin(f"s_add_u32 s11, s11, {P_OFF}")
    fin("s_add_u32 s52, s40, s11")
    fin("s_addc_u32 s53, s41, 0")
    fin("s_and_b32 s53, s53, 0xffff")
    fin(f"s_mov_b32 s54, {PS}")
    fin("s_mov_b32 s11, 0")
    fin(f"v_add_u32 v17, {OWN_OFF}, v0")
    fin("s_cmp_eq_u32 s60, s4")
    fin("s_cbranch_scc1 L_OWNSLAB")
    for pp in range(15):
        b = 64 + 8*pp
        for p in range(4): fin(f"v_cvt_pk_bf16_f32 v{b+p}, v{b+2*p}, v{b+2*p+1}")
        fin(f"buffer_store_dwordx4 {vr(b)}, v0, s[52:55], s11 offen offset:{1024*(pp & 3)} {cfg.pst}")
        if pp & 3 == 3: fin("s_add_u32 s11, s11, 4096")
    fin("s_branch L_SLABDONE")
    fin("L_OWNSLAB:")
    for T in range(30): fin(f"ds_write_b128 v17, {vr(64 + 4*T)} offset:{1024*T}")
    fin("L_SLABDONE:")
    fin("s_add_u32 s11, s10, s4")
    fin(f"s_mul_i32 s11, s11, {4*PS}")
    fin(f"s_add_u32 s11, s11, {P_OFF}")
    fin("s_add_u32 s56, s40, s11")
    fin("s_addc_u32 s57, s41, 0")
    fin("s_and_b32 s57, s57, 0xffff")
    fin(f"s_mov_b32 s58, {4*PS}")
    fin("s_mul_i32 s10, s62, 192")
    fin("s_mul_i32 s11, s4, 48")
    fin("s_add_u32 s10, s10, s11")
    fin("s_mul_i32 s10, s10, 2560")
    fin("s_mul_i32 s11, s61, 1280")
    fin("s_add_u32 s10, s10, s11")
    fin("s_mul_i32 s11, s6, 320")
    fin("s_add_u32 s10, s10, s11")
    fin("s_add_u32 s44, s36, s10")
    fin("s_addc_u32 s45, s37, 0")
    fin("s_and_b32 s45, s45, 0xffff")
    fin("s_sub_u32 s46, 3932160, s10")
    fin("v_and_b32 v20, 15, v1")
    fin("v_mul_u32_u24 v20, 2560, v20")
    fin("v_bfe_u32 v21, v1, 4, 1")
    fin("v_lshl_add_u32 v20, v21, 5, v20")
    fin("v_lshrrev_b32 v21, 5, v1")
    fin("v_lshl_add_u32 v18, v21, 4, v20")
    fin("s_lshl_b32 s10, s60, 10")
    fin("v_add_u32 v16, s10, v0")
    for k in range(1, 4):
        fin(f"s_add_u32 s10, s4, {k}")
        fin("s_and_b32 s10, s10, 3")
        fin(f"s_mul_i32 s10, s10, {PS}")
        fin(f"v_add_u32 v{20+k}, s10, v16")
    fin("s_lshl_b32 s10, s60, 11")
    fin("v_add_u32 v17, s10, v17")
    fin("s_waitcnt vmcnt(0) lgkmcnt(0)")
    fin("global_store_dwordx2 v60, v[56:57], s[40:41] sc1")
    fin("s_barrier")
    for m in range(4):
        for h in range(2):
            fin(f"ds_read_b128 {vr(64 + 32*m + 4*h)}, v17 offset:{8192*m + 1024*h}")
    stamp(fin, cfg, 9)
    poll(fin, "L_PB", "v61", False)
    stamp(fin, cfg, 10)
    fin("s_cmp_eq_u32 s60, 3")
    fin("s_cselect_b32 s14, 0x40000000, 12288")
    fin("s_mov_b32 s12, 4096")
    fin("s_mov_b32 s13, 8192")
    for m in range(4):
        so = ("0", "s12", "s13", "s14")[m]
        for k in range(3):
            fin(f"buffer_load_dwordx4 {vr(64 + 32*m + 8 + 4*k)}, v{21+k}, s[56:59], {so} offen {cfg.pld}")
    fin("s_mov_b32 s67, 0xffff0000")
    fin("s_waitcnt lgkmcnt(0)")
    for m in range(4):
        fin(f"s_add_u32 s10, s60, {4*m}")
        fin("s_mul_i32 s11, s10, 13")
        fin("s_lshr_b32 s11, s11, 6")
        fin("s_mul_i32 s15, s11, 5")
        fin("s_sub_u32 s15, s10, s15")
        fin(f"s_mul_i32 s11, s11, {16*2560}")
        fin("s_lshl_b32 s15, s15, 6")
        fin("s_add_u32 s11, s11, s15")
        if m == 3:
            fin("s_cmp_eq_u32 s60, 3")
            fin("s_cselect_b32 s11, 0x40000000, s11")
        fin(f"s_waitcnt vmcnt({9 - 3*m + m})")
        d = 64 + 32*m
        for k in range(3):
            for p in range(4):
                x = d + 8 + 4*k + p
                fin(f"v_lshlrev_b32 v{d+20+2*p}, 16, v{x}")
                fin(f"v_and_b32 v{d+21+2*p}, s67, v{x}")
            for p in range(4):
                fin(f"v_pk_add_f32 {vr(d+2*p,2)}, {vr(d+2*p,2)}, {vr(d+20+2*p,2)}")
        for p in range(4): fin(f"v_cvt_pk_bf16_f32 v{d+p}, v{d+2*p}, v{d+2*p+1}")
        fin(f"v_permlane16_swap_b32 v{d}, v{d+2}")
        fin(f"v_permlane16_swap_b32 v{d+1}, v{d+3}")
        fin(f"buffer_store_dwordx4 {vr(d)}, v18, s[44:47], s11 offen {cfg.outst}")
    if cfg.stamps:
        fin("s_waitcnt vmcnt(0)")
        stamp(fin, cfg, 11)
        fin("s_lshl_b32 s10, s2, 2")
        fin("s_add_u32 s10, s10, s60")
        fin("s_lshl_b32 s10, s10, 8")
        fin(f"s_add_u32 s10, s10, {STAMP_OFF}")
        fin("v_lshlrev_b32 v16, 2, v1")
        fin("v_add_u32 v16, s10, v16")
        fin("global_store_dword v16, v15, s[40:41]")
    if cfg.diag:
        a_, b_ = cfg.diag // 100, cfg.diag % 100
        fin(f"v_readlane_b32 s10, v15, {a_ % 32}")
        fin(f"v_readlane_b32 s11, v15, {b_}")
        fin(f"v_readlane_b32 s12, v15, 11")
        fin("s_nop 4")
        fin("s_sub_u32 s10, s11, s10")
        fin("s_lshl_b32 s10, s10, 2")
        fin("L_DIAG:")
        fin("s_memrealtime s[98:99]")
        fin("s_waitcnt lgkmcnt(0)")
        fin("s_sub_u32 s11, s98, s12")
        fin("s_cmp_lt_u32 s11, s10")
        fin("s_cbranch_scc1 L_DIAG")
    fin("L_END:")
    fin("s_endpgm")
    fin.ins = pad_hazards(fin.ins, tl.ins[-16:])
    fb = Stream()
    fb("L_FALLBACK:")
    fb("s_mov_b32 s78, 1")
    fb("s_mov_b32 s71, 0")
    fb("s_mov_b32 s72, 4096")
    fb("s_mov_b32 s68, 31")
    fb("s_waitcnt vmcnt(0) lgkmcnt(0)")
    for i in R6: fb(f"v_mov_b32 v{NEGM(i)}, 0xff800000")
    fbl = Stream()
    fbl("L_FBLOOP:")
    fbl("s_barrier")
    for m, d in kvdma("s75", 0):
        fbl(m); fbl("s_nop 0"); fbl(d)
    for t in kvadv: fbl(t)
    fbl("s_waitcnt vmcnt(0)")
    fbl("s_barrier")
    for t in kreads(0, 0): fbl(t)
    fbl("s_waitcnt lgkmcnt(0)")
    for kt in range(2):
        for kk in range(4):
            for i in R6:
                d = vr(O0 + 8*i + 4*kt)
                fbl(f"{MF} {d}, {ar(KF(0, 4*kt+kk))}, {ar(QF(i, kk))}, {'0' if kk == 0 else d}")
    fbl("s_nop 7")
    for p in range(4):
        for i in R6:
            fbl(f"v_max3_f32 v{NEGM(i)}, v{NEGM(i)}, v{O0+8*i+2*p}, v{O0+8*i+2*p+1}")
    fbl("s_sub_u32 s68, s68, 1")
    fbl("s_cbranch_scc0 L_FBLOOP")
    fb2 = Stream()
    for i in R6:
        for r in (1, 2, 3): fb2(f"v_mov_b32 v{NEGM(i)+r}, v{NEGM(i)}")
    fb2("s_barrier")
    for t in range(4):
        for m, d in kvdma("s75", t * SLOT):
            fb2(m); fb2("s_nop 0"); fb2(d)
        for x in kvadv: fb2(x)
    fb2("s_waitcnt vmcnt(0)")
    parts = [pro, q0, qloop, qtail, qe, w0, loop, tail, ep, t0p, t0, tl, fin, tf, fb, fbl, fb2, st]
    def mk(lst):
        t = []
        for p in lst: t += p.ins
        out = []; skip = False
        for x in t:
            if x.cmt == "pace": continue
            if x.cmt == "spin": out.pop(); continue
            out.append(x)
        return out
    tr = mk([pro, q0, qloop, qtail, qe, w0, loop, loop, tail, ep, t0p, t0, tl, fin])
    tr3 = mk([tail, ep, t0p, tf, tl, fin])
    cut = [k for k, x in enumerate(ep.ins) if "L_FALLBACK" in x.text][0]
    epc = Stream(); epc.ins = ep.ins[:cut+1]
    tr2 = mk([loop, tail, epc, fb, fbl, fbl, fb2, st, w0])
    rules = [("s[44:47]", 0), ("s[48:51]", 0), ("s[52:55]", 0), ("s[84:87]", 0)]
    errs = []
    for nm_, t in (("main", tr), ("fb", tr2), ("fast", tr3)):
        errs += check_hazards(t, nm_) + check_waits(t, nm_) + check_dma(t, rules, nm_) + check_scc(t, nm_)
    errs = [e for e in errs if "buffer_load_dword a252" not in e]
    return parts, errs

KD = """.amdhsa_kernel {name}
  .amdhsa_next_free_vgpr 512
  .amdhsa_next_free_sgpr 102
  .amdhsa_accum_offset 256
  .amdhsa_group_segment_fixed_size 0
  .amdhsa_kernarg_size 104
  .amdhsa_user_sgpr_count 2
  .amdhsa_user_sgpr_kernarg_segment_ptr 1
  .amdhsa_system_sgpr_workgroup_id_x 1
.end_amdhsa_kernel
"""

DOC = """; Fused kernel (generated by my own script): one workgroup per CU = (block, batch, head pair), 4 waves x 96 queries.
;     recomputes the exact row max over all keys and reruns the attention with it (L_FALLBACK).
"""

def build_asm(cfg):
    ref = open(f"cdna_kernels/{NAME}.s.ref").read()
    head = []
    for line in ref.splitlines():
        if line.startswith(";") and "@launch" not in line: head.append(line)
        elif not line.startswith(";"): break
    nm = NAME + "_kernel"
    out = "\n".join(head) + "\n"
    out += "; @launch grid=(256,1,1) block=(256,1,1) lds=163840\n"
    out += '.amdgcn_target "amdgcn-amd-amdhsa--gfx950"\n'
    out += DOC
    out += '.text\n'
    parts, errs = gen(cfg)
    out += f".globl {nm}\n.p2align 8\n.type {nm},@function\n{nm}:\n"
    for p in parts: out += p.text()
    out += f".fill (66560 - (. - {nm})) / 4, 4, 0xbf800000\n"
    out += '.section .rodata,"a"\n.p2align 6\n' + KD.format(name=nm)
    return out, errs

if __name__ == "__main__":
    cfg = Cfg()
    outp = f"cdna_kernels/{NAME}.s"
    for a in sys.argv[1:]:
        if a.startswith("out="): outp = a[4:]; continue
        k, v = a.split("=")
        cur = getattr(cfg, k)
        setattr(cfg, k, type(cur)(int(v)) if not isinstance(cur, str) else v.replace("+", " "))
    asm, errs = build_asm(cfg)
    for e in errs[:6]: print(e[:200])
    print(len(errs), "errors")
    open(outp, "w").write(asm)
    print("wrote", outp, len(asm), "bytes")
```

```python
import sys, struct, math
sys.path.insert(0, "work")
from asmlib import *

NAME = "concat_heads__mha_block_cached__gqa_block_cached__near_ridge"
MF = "v_mfma_f32_16x16x32_bf16"
def f32bits(x): return struct.unpack("<I", struct.pack("<f", x))[0]

CH = 1056
SUB = 8416
SLOT = 4 * SUB
XSL = [4 * SLOT, SLOT, SLOT + 24576]
WSL = [3 * SLOT, 3 * SLOT + 2 * SUB, SLOT + 49152]
FLAG_OFF = 61440
OWN_OFF = 65536
WOR = [0, 20480, 40960]
P_OFF = 32 << 20
F_OFF = 63 << 20
SCALE = math.log2(math.e) / math.sqrt(128.0)
THR = 2.0 ** 40
STAMP_OFF = 64 << 20
SPIN_MAX = 1 << 20

class Cfg:
    stamps = 0
    nt_kv = "nt"
    nt_xw = ""
    nt_wo = ""
    rot = 2
    d3 = 1
    outst = "sc1"
    lax = 1
    laxE = 0
    laxL = 0
    laxL2 = 12
    pkq = 1
    rewarm = 0
    freej = 27
    poll2 = 0
    dith = 12
    rev = 0
    ramp = 6
    ramp2 = 0
    kvw3 = 16
    early = 0
    pke = 0
    smix = 0
    even = 0
    slide = 0
    sigp = 1
    sparse1 = 1
    burst = 0
    ltrips = 12
    n01 = 6
    use29 = 1
    kvwt = 3
    kvb = 0
    diag = 0
    orate = 40
    old = "sc1"
    pst = "sc1"
    pld = "sc1"
    preflag = 1
    nsp = 3
    fldp = 3
    dp = 2
    fstrict = 4
    tlw2 = 63
    t0slack = 0
    tlw = 14
    kvwE = 4
    cls = 0
    x_nowait = 0
    x_nodma = 0
    x_hot = 0
    up = 0
    upp = 3
    nt_up = "nt"
    laxw = 16
    fine = 1
    wo_win = 30
    nt_tw = ""
    ost = "sc1"
    qrot = 0
    kvw = 2
    kvw0 = 2
    kvw1 = 2
    pollp = 6
    force_fb = False
    warm_wo = 2
    twp = 18
    kvp0 = 3
    kvp1 = 17
    local_o = 0
    warm_code = 1
    pbf16 = 1
    force_remote = 0

def vr(b, n=4): return f"v[{b}:{b+n-1}]"
def ar(b, n=4): return f"a[{b}:{b+n-1}]"

O0 = 64
def OACC(i, dt): return O0 + 32 * i + 4 * dt
def SREG(par, kt): return 16 + 8 * par + 4 * kt
def PREG(par): return 32 + 4 * par
def NEGM(i): return 40 + 4 * i
def QF(i, kk): return 16 * i + 4 * kk
def KF(par, f): return 96 + 32 * par + 4 * f
def VF(par, dt): return 160 + 32 * par + 4 * dt
def LACC(i): return 224 + 4 * i
ONES = 248
def QA(par, dt): return 96 + 32 * par + 4 * dt
def QB(par, i): return 160 + 32 * par + 4 * i
def TACC(i, nt): return 64 + 4 * (10 * i + nt)
def TA(par, nt): return (184 if par == 0 else 16) + 4 * nt
def TB_(u, i): return 12 * u + 4 * i
def TOWN(u, i): return 96 + 12 * u + 4 * i

NST = 12
def stamp(s, cfg, n):
    if cfg.stamps:
        s("s_memrealtime s[98:99]")
        s("s_memtime s[100:101]")
        s("s_waitcnt lgkmcnt(0)")
        s(f"v_writelane_b32 v15, s98, {n}")
        s(f"v_writelane_b32 v15, s100, {32 + n}")

def spread(gaps, items, lo, hi, cap=2):
    n = len(items)
    last = lo
    for k, it in enumerate(items):
        g = max(lo + (k * (hi - lo)) // n, last)
        while len(gaps.get(g, [])) + len(it) > cap: g += 1
        gaps.setdefault(g, []).extend(it)
        last = g

def dma_chain(dl):
    out = []
    for k, x in enumerate(dl):
        if k == 0: out.append([x[0]])
        nxt = [dl[k+1][0]] if k + 1 < len(dl) else []
        out.append([x[1]] + nxt)
    return out

def gen(cfg):
    R6 = range(6)
    pro = Stream(); s = pro
    s("s_cmp_ge_u32 s2, 256")
    s("s_cbranch_scc1 L_END")
    s("s_load_dwordx16 s[16:31], s[0:1], 0")
    s("s_load_dwordx8 s[32:39], s[0:1], 64")
    s("s_load_dwordx2 s[40:41], s[0:1], 96")
    s("s_memrealtime s[96:97]")
    s("v_lshrrev_b32 v17, 6, v0")
    s("v_and_b32 v1, 63, v0")
    if cfg.warm_code:
        s("s_getpc_b64 s[98:99]")
        s("s_lshr_b32 s5, s2, 3")
        s("s_lshl_b32 s5, s5, 11")
        s("v_lshrrev_b32 v16, 4, v0")
        s("v_lshl_add_u32 v16, v16, 7, s5")
        s("global_load_dword v16, v16, s[98:99]")
    s("s_and_b32 s4, s2, 7")
    s("s_lshr_b32 s5, s2, 3")
    s("v_readfirstlane_b32 s60, v17")
    s("s_lshr_b32 s61, s4, 2")
    s("s_and_b32 s4, s4, 3")
    s("s_lshl_b32 s63, s4, 2")
    s("s_and_b32 s6, s5, 3")
    s("s_add_u32 s63, s63, s6")
    s("s_lshr_b32 s62, s5, 2")
    s("s_lshl_b32 s7, s61, 3")
    s("s_add_u32 s7, s7, s62")
    s("s_and_b32 s8, s60, 1")
    s("s_lshr_b32 s9, s60, 1")
    s("v_lshrrev_b32 v18, 4, v1")
    s("v_and_b32 v19, 15, v1")
    s("v_lshrrev_b32 v22, 3, v1")
    s("v_lshlrev_b32 v23, 1, v18")
    s("v_and_b32 v24, 7, v1")
    s("v_xor_b32 v23, v23, v24")
    s("v_mul_u32_u24 v22, 1280, v22")
    s("v_lshl_add_u32 v4, v23, 4, v22")
    s("s_mul_i32 s10, s60, 61440")
    s("v_add_u32 v4, s10, v4")
    for t in range(1, 6): s(f"v_add_u32 v{4+t}, {10240*t}, v4")
    s("v_lshrrev_b32 v22, 1, v18")
    s("v_lshlrev_b32 v22, 2, v22")
    s("v_and_b32 v23, 1, v18")
    s("v_lshl_add_u32 v22, v23, 4, v22")
    s("v_lshlrev_b32 v22, 13, v22")
    s("v_lshl_add_u32 v10, v19, 4, v22")
    s("s_lshl_b32 s10, s8, 16")
    s("s_lshl_b32 s11, s9, 8")
    s("s_add_u32 s10, s10, s11")
    s("v_add_u32 v10, s10, v10")
    for t in range(1, 4): s(f"v_add_u32 v{10+t}, {8192*t}, v10")
    s(f"s_mul_i32 s10, s9, {SUB}")
    s(f"s_mul_i32 s11, s8, {CH}")
    s("s_add_u32 s69, s10, s11")
    s("s_mul_i32 s70, s60, 6144")
    if cfg.qrot:
        s("s_lshl_b32 s10, s6, 1")
        s("s_add_u32 s10, s10, s62")
        s("s_mul_i32 s10, s10, 5")
        s("s_lshr_b32 s10, s10, 2")
        s("s_sub_u32 s11, s10, 10")
        s("s_cmp_ge_u32 s10, 10")
        s("s_cselect_b32 s10, s11, s10")
        s("s_lshl_b32 s64, s10, 7")
        s("s_lshl_b32 s65, s10, 19")
    else:
        s("s_mov_b32 s64, 0")
        s("s_mov_b32 s65, 0")
    s("s_waitcnt lgkmcnt(0)")
    if cfg.stamps:
        s("v_mov_b32 v15, 0")
        s("s_nop 0")
        s("v_writelane_b32 v15, s96, 0")
    s("s_or_b32 s10, s63, s60")
    s("s_cmp_lg_u32 s10, 0")
    s("s_cbranch_scc1 L_NOLEAD")
    s("s_lshl_b32 s10, s7, 3")
    s("s_or_b32 s96, s96, 1")
    s("v_mov_b32 v22, s10")
    s("v_mov_b32 v24, s96")
    s("v_mov_b32 v25, s97")
    s("global_store_dwordx2 v22, v[24:25], s[38:39] sc1")
    s("L_NOLEAD:")
    s("s_getpc_b64 s[96:97]")
    s("s_cmp_eq_u32 s61, 0")
    s("s_cselect_b64 s[44:45], s[16:17], s[26:27]")
    s("s_cselect_b64 s[48:49], s[22:23], s[32:33]")
    s("s_cselect_b64 s[12:13], s[18:19], s[28:29]")
    s("s_cselect_b64 s[14:15], s[20:21], s[30:31]")
    s("s_cselect_b64 s[84:85], s[24:25], s[34:35]")
    s("s_mul_i32 s10, s62, 245760")
    s("s_add_u32 s44, s44, s10")
    s("s_addc_u32 s45, s45, 0")
    s("s_and_b32 s45, s45, 0xffff")
    s("s_mov_b32 s46, 245760")
    s("s_mov_b32 s47, 0x20000")
    s("s_lshl_b32 s10, s63, 9")
    s("s_add_u32 s48, s48, s10")
    s("s_addc_u32 s49, s49, 0")
    s("s_and_b32 s49, s49, 0xffff")
    s("s_sub_u32 s50, 5242880, s10")
    s("s_mov_b32 s51, 0x20000")
    XADV = ["s_add_u32 s64, s64, 128", "s_cmp_eq_u32 s64, 1280", "s_cselect_b32 s64, 0, s64"]
    WADV = ["s_add_u32 s65, s65, 262144", "s_cmp_eq_u32 s65, 5242880", "s_cselect_b32 s65, 0, s65"]
    if cfg.x_hot: XADV = []; WADV = []
    def xdma(sreg, base, ts):
        return [(f"s_add_u32 m0, {sreg}, {base + 1024*t}", f"buffer_load_dwordx4 v{4+t}, s[44:47], s64 offen {cfg.nt_xw} lds") for t in ts]
    def wdma(sreg, base):
        return [(f"s_add_u32 m0, {sreg}, {base + 2*CH*r}", f"buffer_load_dwordx4 v{10+r}, s[48:51], s65 offen {cfg.nt_xw} lds") for r in range(4)]
    for st in range(2):
        for grp in dma_chain(xdma("s70", XSL[st], range(6)) + wdma("s69", WSL[st])):
            for t in grp: s(t)
        for t in XADV + WADV: s(t)
    upb = []
    if cfg.up:
        s("v_mul_u32_u24 v32, 13108, v1")
        s("v_lshrrev_b32 v32, 16, v32")
        s("v_mul_u32_u24 v33, 5, v32")
        s("v_sub_u32 v33, v1, v33")
        s("v_min_u32 v32, 11, v32")
        s("v_mul_u32_u24 v32, 1280, v32")
        s("v_lshl_add_u32 v32, v33, 7, v32")
        s("s_lshl_b32 s10, s6, 2")
        s("s_add_u32 s10, s10, s60")
        s("s_mul_i32 s96, s10, 15360")
        s("v_lshrrev_b32 v33, 2, v1")
        s("v_min_u32 v33, 9, v33")
        s("v_lshlrev_b32 v33, 13, v33")
        s("v_and_b32 v34, 3, v1")
        s("v_lshl_add_u32 v33, v34, 7, v33")
        s("s_lshl_b32 s10, s62, 2")
        s("s_add_u32 s10, s10, s60")
        s("s_mul_i32 s97, s10, 81920")
        s(f"buffer_load_dword a252, v32, s[44:47], s96 offen {cfg.nt_up}")
        s(f"buffer_load_dword a252, v33, s[48:51], s97 offen {cfg.nt_up}")
        s(f"s_add_u32 s97, s97, {320*8192}")
        upb = [("", f"buffer_load_dword a252, v32, s[44:47], s96 offen offset:640 {cfg.nt_up}"),
               ("", f"buffer_load_dword a252, v33, s[48:51], s97 offen {cfg.nt_up}")]
        if cfg.up == 1:
            for _, t in upb: s(t)
            upb = []
    s("v_lshlrev_b32 v0, 4, v1")
    s("v_and_b32 v20, 3, v1")
    s("v_bfe_u32 v21, v1, 2, 2")
    s("v_and_b32 v22, 1, v18")
    s("v_lshl_add_u32 v22, v21, 1, v22")
    s(f"v_mul_u32_u24 v22, {CH}, v22")
    s("v_lshrrev_b32 v23, 1, v18")
    s("v_lshl_add_u32 v22, v23, 8, v22")
    s("v_lshl_add_u32 v26, v20, 3, v22")
    s("v_xor_b32 v24, 2, v20")
    s("v_lshl_add_u32 v27, v24, 3, v22")
    s("v_and_b32 v22, 1, v21")
    s("v_lshl_add_u32 v22, v20, 1, v22")
    s(f"v_mul_u32_u24 v22, {CH}, v22")
    s("v_lshrrev_b32 v23, 1, v21")
    s("v_lshl_add_u32 v22, v23, 8, v22")
    s("v_lshlrev_b32 v23, 1, v18")
    s("v_mov_b32 v24, 0x9c")
    s("v_lshrrev_b32 v23, v23, v24")
    s("v_and_b32 v23, 3, v23")
    s("v_lshl_add_u32 v2, v23, 4, v22")
    s("v_and_b32 v22, 6, v19")
    s("v_xor_b32 v22, v22, v18")
    s("v_lshlrev_b32 v22, 4, v22")
    s("v_lshl_add_u32 v28, v19, 7, v22")
    s("s_mul_i32 s10, s8, 12288")
    s("v_add_u32 v28, s10, v28")
    s("v_xor_b32 v29, 64, v28")
    s(f"s_mul_i32 s10, s9, {2*SUB}")
    s("v_add_u32 v2, s10, v2")
    s(f"s_add_u32 s10, s10, {SUB}")
    s("v_add_u32 v3, s10, v26")
    s(f"s_mul_i32 s10, s9, {SUB}")
    s("v_add_u32 v26, s10, v26")
    s("v_add_u32 v27, s10, v27")
    s(f"s_mul_i32 s75, s60, {SUB}")
    s("s_cmp_eq_u32 s8, 0")
    s("s_cselect_b64 s[52:53], s[12:13], s[14:15]")
    s("s_lshl_b32 s10, s62, 5")
    s("s_lshl_b32 s11, s63, 1")
    s("s_add_u32 s11, s11, s9")
    s("s_add_u32 s10, s10, s11")
    s("s_lshl_b32 s10, s10, 18")
    s("s_add_u32 s52, s52, s10")
    s("s_addc_u32 s53, s53, 0")
    s("s_and_b32 s53, s53, 0xffff")
    s("s_mov_b32 s54, 262144")
    s("s_mov_b32 s55, 0x20000")
    late = Stream(); s = late
    s("s_lshl_b32 s35, s63, 1")
    s("s_add_u32 s35, s35, s9")
    s("s_mul_i32 s34, s7, 12")
    s("s_mul_i32 s3, s8, 6")
    s("s_add_u32 s34, s34, s3")
    s("s_lshl_b32 s34, s34, 17")
    s("s_lshl_b32 s35, s35, 12")
    s("s_add_u32 s34, s34, s35")
    s("s_add_u32 s56, s40, s34")
    s("s_addc_u32 s57, s41, 0")
    s("s_and_b32 s57, s57, 0xffff")
    s(f"s_mov_b32 s58, {5*131072 + 4096}")
    s("s_mov_b32 s59, 0x20000")
    s(f"s_mul_i32 s34, s4, {1024*1280}")
    s("s_add_u32 s92, s84, s34")
    s("s_addc_u32 s93, s85, 0")
    s("s_and_b32 s93, s93, 0xffff")
    s(f"s_mov_b32 s94, {1024*1280}")
    s("s_mov_b32 s95, 0x20000")
    s("s_mul_i32 s35, s6, 320")
    s("s_add_u32 s34, s34, s35")
    s("s_add_u32 s84, s84, s34")
    s("s_addc_u32 s85, s85, 0")
    s("s_and_b32 s85, s85, 0xffff")
    s("s_sub_u32 s86, 5242880, s34")
    s("s_mov_b32 s87, 0x20000")
    s("s_mul_i32 s34, s7, 12")
    s("s_mul_i32 s35, s60, 3")
    s("s_add_u32 s34, s34, s35")
    s("s_lshl_b32 s34, s34, 17")
    s("s_lshl_b32 s35, s4, 15")
    s("s_add_u32 s34, s34, s35")
    s("s_add_u32 s88, s40, s34")
    s("s_addc_u32 s89, s41, 0")
    s("s_and_b32 s89, s89, 0xffff")
    s(f"s_mov_b32 s90, {2*131072 + 32768}")
    s("s_mov_b32 s91, 0x20000")
    s("s_lshl_b32 s34, s7, 4")
    s("s_add_u32 s35, s34, s63")
    s("s_lshl_b32 s35, s35, 2")
    s("s_add_u32 s35, s35, s60")
    s("s_lshl_b32 s35, s35, 6")
    s(f"s_add_u32 s30, s35, {F_OFF}")
    s("s_lshl_b32 s35, s4, 2")
    s("s_add_u32 s35, s35, s34")
    s("s_lshl_b32 s35, s35, 2")
    s("s_add_u32 s35, s35, s9")
    s("s_lshl_b32 s35, s35, 6")
    s(f"s_add_u32 s31, s35, {F_OFF}")
    s("s_add_u32 s35, s34, s6")
    s("s_lshl_b32 s35, s35, 2")
    s("s_add_u32 s35, s35, s4")
    s("s_lshl_b32 s35, s35, 6")
    s(f"s_add_u32 s32, s35, {F_OFF + 65536}")
    s("s_mul_i32 s34, s60, 3072")
    s(f"s_add_u32 s33, s34, {OWN_OFF}")
    for k in range(3):
        s(f"s_add_u32 s34, s6, {k+1}")
        s("s_and_b32 s34, s34, 3")
        s(f"s_lshl_b32 s{16+2*k}, s34, 13")
        s(f"s_add_u32 s{17+2*k}, s{16+2*k}, 4096")
        s("s_lshl_b32 s34, s34, 1")
        s(f"s_lshl_b32 s{24+2*k}, 3, s34")
        s(f"s_mov_b32 s{25+2*k}, 0")
    s(f"s_mov_b32 s76, {f32bits(SCALE):#x}")
    s(f"s_mov_b32 s77, {f32bits(SCALE):#x}")
    s("s_mov_b32 s78, 0")
    if cfg.cls == 0: s("s_cmp_lt_u32 s4, 0")
    elif cfg.cls == 1: s("s_cmp_lt_u32 s4, 2")
    elif cfg.cls == 2: s("s_bitcmp0_b32 s4, 0")
    elif cfg.cls == 3: s("s_bitcmp0_b32 s62, 0")
    s(f"s_cselect_b32 s42, {cfg.laxE}, {cfg.laxL}")
    s(f"s_cselect_b32 s43, 64, {cfg.laxL2}")
    if cfg.dith:
        masks = [0] * 8; pos = 0
        for w in range(cfg.dith):
            cnt = 8 - ((w + 1) * 8) // (cfg.dith + 1)
            for c in range(cnt): masks[(pos + c) % 8] |= 2 << w
            pos += cnt
        s("s_add_u32 s34, s5, s2")
        s("s_and_b32 s34, s34, 7")
        for k in range(8):
            s(f"s_cmp_eq_u32 s34, {k}")
            s(f"s_cselect_b32 s43, {masks[k]}, s43")
    elif cfg.ramp:
        s("s_add_u32 s34, s5, s2")
        s("s_and_b32 s34, s34, 7")
        s(f"s_mul_i32 s35, s34, {cfg.ramp}")
        s("s_lshr_b32 s35, s35, 3")
        s(f"s_sub_u32 s43, {cfg.laxL2}, s35")
        if cfg.rev: s("s_sub_u32 s34, 7, s34")
        s(f"s_mul_i32 s35, s34, {cfg.ramp2}")
        s("s_lshr_b32 s35, s35, 3")
        s(f"s_sub_u32 s42, {cfg.laxL}, s35")
    s("v_mov_b32 v17, 0x3f803f80")
    if cfg.sparse1:
        s("v_cmp_eq_u32 vcc, 0, v20")
        s("s_nop 1")
        s("v_cndmask_b32 v17, 0, v17, vcc")
    for r in range(4): s(f"v_accvgpr_write_b32 a{ONES+r}, v17")
    s = pro
    if cfg.rot == 0: s("s_mov_b32 s71, 0")
    elif cfg.rot == 1: s("s_lshl_b32 s71, s5, 13")
    elif cfg.rot == 2:
        s("s_lshl_b32 s71, s2, 1")
        s("s_add_u32 s71, s71, s9")
        s("s_mul_i32 s71, s71, 0x9E3779B1")
        s("s_lshr_b32 s71, s71, 24")
        s("s_lshl_b32 s71, s71, 10")
    elif cfg.rot == 3:
        s("s_lshl_b32 s71, s5, 1")
        s("s_add_u32 s71, s71, s9")
        s("s_and_b32 s71, s71, 7")
        s("s_lshl_b32 s71, s71, 10")
    elif cfg.rot == 4:
        s("s_lshl_b32 s71, s9, 7")
        s("s_add_u32 s71, s71, s2")
        s("s_and_b32 s71, s71, 255")
        s("s_lshl_b32 s71, s71, 10")
    elif cfg.rot == 5:
        s("s_lshl_b32 s71, s5, 1")
        s("s_add_u32 s71, s71, s9")
        s("s_lshl_b32 s71, s71, 12")
    s("s_add_u32 s72, s71, 4096")
    for r, v in zip((80, 81, 82), WSL): s(f"s_mov_b32 s{r}, {v}")
    for r, v in zip((66, 67, 83), XSL): s(f"s_mov_b32 s{r}, {v}")
    s("v_add_u32 v14, s66, v28")
    s("v_add_u32 v30, s80, v26")
    s("v_add_u32 v31, s80, v27")
    s("s_add_u32 s73, s82, s69")
    s("s_add_u32 s74, s83, s70")
    s(f"s_waitcnt vmcnt({10 + (0, 4, 2)[cfg.up]})")
    stamp(s, cfg, 1)
    pro.ins = pad_hazards(pro.ins)

    def kvdma(m0base_sreg, base):
        if cfg.fine:
            return [(f"s_add_u32 m0, {m0base_sreg}, {base + CH*c}\ns_add_u32 s71, s71, 1024\ns_and_b32 s71, s71, 0x3ffff",
                     f"buffer_load_dwordx4 v0, s[52:55], s71 offen {cfg.nt_kv} lds") for c in range(8)]
        return [(f"s_add_u32 m0, {m0base_sreg}, {base + CH*c - 1024*(c&3)}",
                 f"buffer_load_dwordx4 v0, s[52:55], s{71 + (c>>2)} offen offset:{1024*(c&3)} {cfg.nt_kv} lds") for c in range(8)]
    kvadv = ["s_add_u32 s71, s71, 8192", "s_and_b32 s71, s71, 0x3ffff", "s_add_u32 s72, s71, 4096"]
    if cfg.fine: kvadv = ["", "", ""]

    def wodma(sreg, base):
        return [(f"s_add_u32 m0, {sreg}, {base + 1024*t}", f"buffer_load_dwordx4 v{4+t}, s[84:87], s64 offen {cfg.nt_wo} lds") for t in range(5)]
    WOADV = ["s_add_u32 s64, s64, 81920", "s_cmp_eq_u32 s64, 1310720", "s_cselect_b32 s64, 0, s64"]

    def kreads(par, off):
        return [f"ds_read_b128 {ar(KF(par, f))}, v2 offset:{off + 512*(f>>2) + 64*(f&3)}" for f in range(8)]
    def vreads(par, off):
        return [f"ds_read_b64_tr_b16 {ar(VF(par, dt) + 2*w, 2)}, v3 offset:{off + 512*w + 32*dt}" for dt in range(8) for w in range(2)]
    def qper(par, dmas, post, endwait, reads=True, mf=True, need=None, side=(), c0=False):
        mfl = []
        if mf:
            for dt in range(8):
                for i in range(6):
                    a = OACC(i, dt)
                    mfl.append(f"{MF} {vr(a)}, {ar(QA(par^1, dt))}, {ar(QB(par^1, i))}, {'0' if c0 else vr(a)}")
        rl = []
        if reads:
            for i in range(6):
                rl.append([f"ds_read_b128 {ar(QB(par, i))}, v14 offset:{2048*i}"])
            for dt in range(8):
                for w in range(2):
                    rl.append([f"ds_read_b64_tr_b16 {ar(QA(par, dt) + 2*w, 2)}, v{30 + (dt & 1)} offset:{512*w + 32*dt}"])
        gaps = {}
        dch = dma_chain(list(dmas or []))
        if dch: spread(gaps, dch, 0, 38, cap=3)
        if rl: spread(gaps, rl, 0, 34)
        assert not gaps or max(gaps) < 38
        for n, t in enumerate(post):
            gaps.setdefault(38 + n // 2, []).append(t)
        for g in gaps: gaps[g] = [t for t in gaps[g] if t]
        if side: spread(gaps, [[t] for t in side], 0, 36 if len(side) < 20 else 44)
        s = Stream()
        s("s_barrier", need if need is not None else ("s[48:51]:4 s[44:47]:6" if par == 0 else "s[48:51]:4 s[44:47]:9"))
        if mf:
            assert max(gaps) <= 47, max(gaps)
            s.extend(interleave(mfl, gaps))
        else:
            for k in sorted(gaps):
                for t in gaps[k]: s(t)
        if endwait: s(endwait)
        return s
    def upd(par, dma=True):
        l = []
        if dma: l += WADV + ["s_add_u32 s73, s80, s69"]
        l += ["s_mov_b32 s10, s80", "s_mov_b32 s80, s81", "s_mov_b32 s81, s82", "s_mov_b32 s82, s10",
              "v_add_u32 v30, s80, v26", "v_add_u32 v31, s80, v27"]
        if par == 0:
            l += ["v_add_u32 v14, s66, v29"]
        else:
            if dma: l += XADV + ["s_add_u32 s74, s66, s70"]
            l += ["s_mov_b32 s10, s66", "s_mov_b32 s66, s67", "s_mov_b32 s67, s83", "s_mov_b32 s83, s10"]
            l.append("v_add_u32 v14, s66, v28")
        return l
    def qd(par): return xdma("s74", 0, range(3*par, 3*par+3)) + wdma("s73", 0)
    ADV = "s_add_u32 s71, s71, 1024\ns_and_b32 s71, s71, 0x3ffff"
    kvp = kvdma("s75", 0) + [(ADV, f"buffer_load_dwordx4 {ar(4*n)}, v0, s[52:55], s71 offen {cfg.nt_kv}") for n in range(24)]
    wov = ["s_mul_i32 s10, s60, 320", "v_add_u32 v9, s10, v1"]
    for t in range(5):
        wov += [f"v_add_u32 v22, {64*t}, v9",
                "v_mul_u32_u24 v23, 3277, v22",
                "v_lshrrev_b32 v23, 16, v23",
                "v_mul_u32_u24 v24, 20, v23",
                "v_sub_u32 v24, v22, v24",
                "v_bfe_u32 v22, v23, 2, 1",
                "v_lshlrev_b32 v22, 1, v22",
                "v_xor_b32 v24, v24, v22",
                "v_mul_u32_u24 v23, 1280, v23",
                f"v_lshl_add_u32 v{4+t}, v24, 4, v23"]
    def flush(t):
        return [("", f"ds_write_b128 v25, {ar(32*(t-1) + 4*c)} offset:{CH*c}") for c in range(8)]
    tw2 = [("s_lshl_b32 s11, s5, 2\ns_add_u32 s11, s11, s60\ns_mul_i32 s11, s11, 10240\nv_mul_u32_u24 v17, 160, v1", f"buffer_load_dword a252, v17, s[92:95], s11 offen {cfg.nt_tw}"),
           ("", f"buffer_load_dword a253, v17, s[92:95], s11 offen offset:80 {cfg.nt_tw}")] if cfg.warm_wo == 2 else []
    if cfg.preflag:
        tw2 = tw2 + [("v_mov_b32 v32, s30\nv_mov_b32 v34, 0\nv_mov_b32 v35, 0\nv_add_u32 v33, 65536, v32", "global_store_dwordx2 v32, v[34:35], s[40:41] sc1"),
                     ("", "global_store_dwordx2 v33, v[34:35], s[40:41] sc1")]
    nper = [0] * 21
    p = cfg.kvp0; left = 32
    while left:
        nper[p] += 1; left -= 1; p += 1
        if p > cfg.kvp1: p = cfg.kvp0
    if cfg.kvb == 1:
        nper = [0] * 21
        for q in (4, 8, 12, 16): nper[q] = 8
    if cfg.kvb == 2:
        nper = [0] * 21
        for q in (6, 11, 16): nper[q] = 11
        nper[16] = 10
    if cfg.kvb == 3:
        nper = [0] * 21
        for q in (2, 4, 6, 8, 10, 12, 14, 16): nper[q] = 4
    lt = []
    for x in late.ins:
        if x.op in ("s_addc_u32", "s_cselect_b32"): lt[-1] += "\n" + x.text
        else: lt.append(x.text)
    lateg = [lt[k:k+14] for k in range(0, len(lt), 14)]
    q0 = None; qloop = Stream(); qtail = Stream()
    prev_extra = (0, 4, 2)[cfg.up]; pos = 0
    wov += ["v_lshrrev_b32 v22, 2, v1", "v_mul_u32_u24 v23, 320, v22", "v_lshl_add_u32 v23, v20, 3, v23", "v_bfe_u32 v22, v1, 4, 1",
            "v_lshl_add_u32 v9, v22, 5, v23", "v_xor_b32 v22, 1, v22", "v_lshl_add_u32 v10, v22, 5, v23",
            "v_add_u32 v11, 131072, v0", "v_add_u32 v12, 262144, v0", "s_mul_i32 s70, s60, 5120"]
    for sidx in range(20):
        par = sidx & 1
        own = qd(par) if sidx <= 15 else (wdma("s73", 0) if sidx <= 17 else [])
        ex_ = kvp[pos:pos + nper[sidx]]; pos += nper[sidx]
        if sidx == cfg.upp: ex_ = ex_ + upb
        dm = own + ex_
        post = upd(par, sidx <= 16) if sidx <= 18 else []
        need = None
        nvm = len(dm) + prev_extra
        if sidx == 17:
            need = "s[48:51]:4 s[44:47]:6"
            post = post + [f"s_add_u32 s10, s75, {SLOT}", "v_add_u32 v25, s10, v0"]
            nvm = min(nvm, 4 + len(ex_) + prev_extra)
        if sidx >= 18:
            need = "s[48:51]:4 s[44:47]:0" if sidx == 18 else "s[48:51]:0 s[44:47]:0"
            dm = flush(sidx - 17) + (tw2 if sidx == cfg.twp else [])
            post = post + [f"v_add_u32 v25, {SLOT}, v25"]
        endw = f"s_waitcnt vmcnt({nvm}) lgkmcnt(0)"
        if sidx == 17: endw = "WAIT17"
        if sidx == 18: endw = f"s_waitcnt vmcnt({len(tw2) if cfg.twp == 18 else 0}) lgkmcnt(0)"
        if sidx == 19: endw = "s_waitcnt lgkmcnt(0)"
        if sidx == 20: endw = "s_waitcnt lgkmcnt(0)"
        if endw == "WAIT17":
            later = 32 - 16 + 4 * sum(1 for q in range(21) if q <= 17 and sum(nper[:q]) >= 16) + 3 * sum(1 for q in range(16) if sum(nper[:q]) >= 16)
            endw = f"s_waitcnt vmcnt({min(nvm, later)}) lgkmcnt(0)"
        if cfg.x_nowait and sidx < 17: endw = "s_waitcnt vmcnt(40) lgkmcnt(0)"
        if cfg.x_nodma and sidx < 18: dm = []
        side = {18: wov[:31], 19: wov[31:]}.get(sidx, [])
        if 2 <= sidx < 2 + len(lateg): side = lateg[sidx - 2]
        per = qper(par, dm, post, endw, reads=True, mf=(sidx > 0), need=need, side=side, c0=(sidx == 1))
        if sidx == 0:
            q0 = per; q0.ins = pad_hazards(q0.ins)
        elif sidx < 15: qloop.extend(per)
        else:
            if sidx == 15: stamp(qtail, cfg, 15)
            qtail.extend(per)
        prev_extra = len(ex_)
    stamp(qtail, cfg, 2)
    def qepi(i):
        l = []
        for kk in range(4):
            b = OACC(i, 2*kk)
            if cfg.pkq:
                for p in range(4): l.append(f"v_pk_mul_f32 {vr(b+2*p,2)}, {vr(b+2*p,2)}, s[76:77]")
            else:
                for p in range(8): l.append(f"v_mul_f32 v{b+p}, s76, v{b+p}")
        for kk in range(4):
            b = OACC(i, 2*kk)
            for p in range(4): l.append(f"v_cvt_pk_bf16_f32 v{b+p}, v{b+2*p}, v{b+2*p+1}")
        for kk in range(4):
            b = OACC(i, 2*kk)
            l += [f"v_permlane16_swap_b32 v{b}, v{b+2}", f"v_permlane16_swap_b32 v{b+1}, v{b+3}"]
        for kk in range(4):
            b = OACC(i, 2*kk)
            for p in range(4): l.append(f"v_accvgpr_write_b32 a{QF(i,kk)+p}, v{b+p}")
        return l
    def redu(i):
        n = NEGM(i)
        return [f"v_max3_f32 v{n}, v{n}, v{n+1}, v{n+2}", f"v_max_f32 v{n}, v{n}, v{n+3}",
                f"v_mov_b32 v{n+1}, v{n}", f"v_permlane16_swap_b32 v{n}, v{n+1}", f"v_max_f32 v{n}, v{n}, v{n+1}",
                f"v_mov_b32 v{n+1}, v{n}", f"v_permlane32_swap_b32 v{n}, v{n+1}", f"v_max_f32 v{n}, v{n}, v{n+1}",
                f"v_sub_f32 v{n+3}, 0, v{n}", f"v_sub_f32 v{n+2}, 0, v{n}", f"v_sub_f32 v{n+1}, 0, v{n}", f"v_sub_f32 v{n}, 0, v{n}"]
    def M(i): return [f"{MF} {vr(OACC(i, dt))}, {ar(QA(1, dt))}, {ar(QB(1, i))}, {vr(OACC(i, dt))}" for dt in range(8)]
    def Rm(i): return [f"{MF} {vr(NEGM(i))}, {ar(KF(0, kk))}, {ar(QF(i, kk))}, {'0' if kk == 0 else vr(NEGM(i))}" for kk in range(4)]
    def merge(valu, other):
        out = []; n = len(valu); m = len(other); k = 0
        for x, t in enumerate(valu):
            while k < m and k * n <= x * m: out.append(other[k]); k += 1
            out.append(t)
        return out + other[k:]
    INIT = [f"s_add_u32 s73, s75, {2*SLOT}", "s_mov_b32 s72, s75", f"s_mov_b32 s74, {2*SLOT}", f"s_mov_b32 s68, {cfg.ltrips - 1}"]
    qe = Stream()
    qe("s_barrier")
    lds = [d for _, d in flush(3)] + kreads(0, 0) + vreads(0, 0)
    for t in merge(lds, M(0) + M(1)): qe(t)
    for t in INIT: qe(t)
    for t in merge(qepi(0), M(2)): qe(t)
    qe("s_waitcnt lgkmcnt(0)")
    for t in merge(qepi(1), M(3) + Rm(0)): qe(t)
    for t in merge(merge(qepi(2), [""] * 12 + redu(0)), M(4) + Rm(1)): qe(t)
    for t in merge(merge(qepi(3), [""] * 12 + redu(1)), M(5) + Rm(2)): qe(t)
    for t in merge(merge(qepi(4), [""] * 12 + redu(2)), Rm(3) + [""] * 4): qe(t)
    for t in merge(merge(qepi(5), redu(3)), Rm(4) + [""] * 4): qe(t)
    for t in Rm(5) + redu(4) + redu(5): qe(t)
    stamp(qe, cfg, 3)
    qe.ins = pad_hazards(qe.ins, qtail.ins[-16:])
    st = Stream()
    for t in INIT: st(t)
    st("s_barrier", "s[52:55]:0")
    for t in kreads(0, 0) + vreads(0, 0): st(t)
    for i in R6:
        for t in redu(i): st(t)
    st("s_waitcnt lgkmcnt(0)")
    st("s_branch L_W0")
    st.ins = pad_hazards(st.ins)

    def E(u, r):
        x = SREG(u & 1, r >> 2) + (r & 3)
        return f"v_exp_f32 v{x}, v{x}"
    def C(u, c):
        x = SREG(u & 1, 0) + 2 * c
        return f"v_cvt_pk_bf16_f32 v{PREG(u & 1) + c}, v{x}, v{x+1}"
    def QK(u, j):
        i = u % 6; l = []
        for kt in range(2):
            for kk in range(4):
                d = vr(SREG(u & 1, kt))
                c = vr(NEGM(i)) if kk == 0 else d
                l.append(f"{MF} {d}, {ar(KF(j & 1, 4*kt + kk))}, {ar(QF(i, kk))}, {c}")
        return l
    def PV(u):
        if u < 0: return [None] * 9
        i = u % 6; j = u // 6; l = []
        for dt in range(8):
            d = vr(OACC(i, dt))
            l.append(f"{MF} {d}, {ar(VF(j & 1, dt))}, {vr(PREG(u & 1))}, {'0' if j == 0 else d}")
        d = ar(LACC(i))
        l.append(f"{MF} {d}, {ar(ONES)}, {vr(PREG(u & 1))}, {'0' if j == 0 else d}")
        return l

    RCP = [40, 44, 48, 52, 42, 46]
    def epi(i):
        r = RCP[i]
        l = [f"v_accvgpr_read_b32 v{r}, a{LACC(i)}",
             f"v_cmp_nge_f32 vcc, s15, v{r}",
             f"v_rcp_f32 v{r}, v{r}",
             "s_nop 0",
             "s_or_b64 s[12:13], s[12:13], vcc"]
        for dtp in range(4):
            b = OACC(i, 2*dtp)
            if cfg.pke > i:
                for p in range(4): l.append(f"v_mul_f32 v{b+2*p}, v{r}, v{b+2*p}\nv_mul_f32 v{b+2*p+1}, v{r}, v{b+2*p+1}")
            else:
                for p in range(4): l.append(f"v_pk_mul_f32 {vr(b+2*p,2)}, {vr(b+2*p,2)}, {vr(r,2)} op_sel_hi:[1,0]")
            for p in range(4): l.append(f"v_cvt_pk_bf16_f32 v{b+p}, v{b+2*p}, v{b+2*p+1}")
            l.append(f"buffer_store_dwordx4 {vr(b)}, v0, s[56:59], s14 offen offset:{1024*dtp} {cfg.ost}")
            l.append(f"ds_write_b128 v13, {vr(b)} offset:{12288*dtp + 1024*i}")
        l.append("s_add_u32 s14, s14, 131072")
        return l
    def fill(gaps, base, n, items):
        for k, t in enumerate(items): gaps.setdefault(base + (k * n) // len(items), []).append(t)

    LT = cfg.ltrips
    NCH = [cfg.n01, cfg.n01] + [8] * (2 * LT)
    rem = 224 - sum(NCH); ntl = 29 - len(NCH)
    last29 = min(cfg.use29 - 1, rem) if cfg.use29 else 0
    rem -= last29
    for k in range(ntl): x = min(8, -(-rem // (ntl - k))) if cfg.use29 else min(8, rem); NCH.append(x); rem -= x
    NCH += [last29, 0, 0]
    assert sum(NCH) == 224 and len(NCH) == 32, NCH
    G0 = [32 + sum(NCH[:j]) for j in range(33)]
    def allowed(j): return max(0, G0[j + 1] - 8 * min(32, j + 3))
    for j in range(30): assert G0[j + 1] >= 8 * min(32, j + 3) and G0[j + 1] <= 8 * (j + 5), (j, NCH)
    def window(j, head=(), endw=None, inloop=False, reads=True, extra=(), last=False):
        par = j & 1
        need = f"s[52:55]:{allowed(j - 1) if j else 0}"
        mfl = []; gaps = {}
        def put(i, k, t): gaps.setdefault(17*i + k, []).append(t)
        for i in range(6):
            u = 6*j + i
            mfl += QK(u, j) + PV(u - 2)
            for n, k in enumerate((9, 11, 13, 15)): put(i, k, E(u, n))
            if u >= 1:
                for n, k in enumerate((0, 2, 4, 6)): put(i, k, E(u-1, 4+n))
                put(i, 1, C(u-1, 0)); put(i, 1, C(u-1, 1)); put(i, 5, C(u-1, 2)); put(i, 8, C(u-1, 3))
        off = SLOT if par == 0 else 0
        for t in head: put(0, 3, t)
        if reads:
            kr = kreads(par ^ 1, off); vrd = vreads(par ^ 1, off)
            kpos = [(0, 7), (0, 12), (1, 3), (1, 7)]
            for n, (i, k) in enumerate(kpos):
                put(i, k, kr[2*n]); put(i, k, kr[2*n+1])
            vpos = [(i, k) for i in (2, 3, 4, 5) for k in (3, 7)]
            for n, (i, k) in enumerate(vpos):
                put(i, k, vrd[2*n]); put(i, k, vrd[2*n+1])
        n = NCH[j]; g0 = G0[j]
        if n:
            dall = [(0, 10), (0, 16), (1, 12), (2, 10), (3, 10), (3, 16), (4, 12), (5, 10)]
            mall = [(0, 8), (0, 10), (0, 16), (1, 12), (2, 10), (3, 10), (3, 16), (4, 12)]
            aall = [(0, 3), (0, 14), (1, 10), (1, 14), (2, 14), (3, 12), (4, 10), (4, 14)]
            if cfg.d3 == 1:
                dall[3] = (2, 16); mall[4] = (2, 16); aall[4] = (3, 5)
            if cfg.even:
                dall = [(0, 10), (1, 5), (1, 16), (2, 14), (3, 10), (4, 5), (4, 16), (5, 12)]
                mall = [(0, 8), (0, 10), (1, 8), (1, 16), (2, 14), (3, 10), (4, 8), (4, 16)]
                aall = [(0, 3), (0, 14), (1, 10), (2, 10), (2, 16), (3, 14), (4, 10), (5, 10)]
            if cfg.burst:
                a_, b_ = cfg.burst - 1, cfg.burst + 2
                dall = [(a_, 10), (a_, 12), (a_, 14), (a_, 16), (b_, 10), (b_, 12), (b_, 14), (b_, 16)]
                mall = [(a_, 8), (a_, 10), (a_, 12), (a_, 14), (b_, 8), (b_, 10), (b_, 12), (b_, 14)]
                aall = [(a_, 5), (a_, 11), (a_, 13), (a_, 15), (b_, 5), (b_, 11), (b_, 13), (b_, 15)]
            sel = list(range(n)) if j == 29 else [(k * 8) // n for k in range(n)]
            items = []
            for c, k in enumerate(sel):
                g = g0 + c; tile = g >> 3
                if not inloop: m = f"s_add_u32 m0, s75, {SLOT * (tile & 3) + CH * (g & 7)}"
                elif (tile >> 1) % 2 == (j >> 1) % 2: m = f"s_add_u32 m0, s73, {SLOT * (tile & 1) + CH * (g & 7)}"
                else: m = f"s_add_u32 m0, s72, {SLOT * (tile & 1) + CH * (g & 7)}"
                items.append((k, m))
            for k, m in items:
                if cfg.slide: put(*dall[k], f"s_waitcnt vmcnt({cfg.slide + (1 if (cfg.smix >> k) & 1 else 0)})")
                put(*dall[k], f"buffer_load_dwordx4 v0, s[52:55], s71 offen {cfg.nt_kv} lds")
            for k, m in items:
                put(*mall[k], m)
                put(*aall[k], "s_add_u32 s71, s71, 1024"); put(*aall[k], "s_and_b32 s71, s71, 0x3ffff")
        if inloop and par == 1:
            put(5, 16, "s_mov_b32 s72, s73"); put(5, 16, "s_sub_u32 s73, s73, s74")
        if par == 0:
            put(2, 12, "v_add_u32 v2, s74, v2")
            put(5, 14, "v_add_u32 v3, s74, v3")
        else:
            put(5, 14, "s_sub_u32 s74, 0, s74")
        fpos = [(i, k) for i in range(6) for k in (10, 12, 14, 16)]
        fpos = [x for x in fpos if x not in ((0, 12), (2, 12), (5, 14)) and not gaps.get(17*x[0] + x[1])]
        assert len(extra) <= len(fpos)
        for grp, (i, k) in zip(extra, fpos):
            for t in grp: put(i, k, t)
        if last:
            u = 6*j + 5
            mfl += PV(u - 1) + PV(u)
            b = 102
            for k, t in ((0, E(u,4)), (1, C(u,0)), (1, C(u,1)), (2, E(u,5)), (3, E(u,6)), (4, C(u,2)), (5, E(u,7)), (7, C(u,3))):
                gaps.setdefault(b + k, []).append(t)
            fill(gaps, 17*3 + 4, 17, epi(0))
            fill(gaps, 17*4 + 4, 17, epi(1))
            fill(gaps, 17*5 + 4, 17, epi(2))
            fill(gaps, b + 4, 9, epi(3))
            fill(gaps, b + 13, 5, epi(4)[:16])
        s = Stream()
        s("s_barrier", need)
        s.extend(interleave(mfl, gaps))
        if endw != "": s(endw or f"s_waitcnt vmcnt({min(cfg.kvwt if j < cfg.freej else 16, allowed(j))}) lgkmcnt(0)")
        return s
    w0 = Stream()
    w0("L_W0:")
    w0.extend(window(0, endw=f"s_waitcnt vmcnt({cfg.kvw0}) lgkmcnt(0)"))
    w0.extend(window(1, endw=f"s_waitcnt vmcnt({cfg.kvw1}) lgkmcnt(0)"))
    w0.ins = pad_hazards(w0.ins, qe.ins[-16:])
    loop = Stream()
    loop("L_LOOP:")
    if cfg.lax:
        for jj, lb in ((2, "L_LX0"), (3, "L_LX1")):
            loop.extend(window(jj, endw="", inloop=True, extra=([["s_lshr_b32 s43, s43, 1"]] if cfg.dith else [])))
            if cfg.dith:
                loop("s_bitcmp0_b32 s43, 0")
                loop(f"s_waitcnt vmcnt({cfg.kvwE}) lgkmcnt(0)")
                loop(f"s_cbranch_scc1 {lb}")
                loop(f"s_waitcnt vmcnt({cfg.kvw})", "pace")
            else:
                loop("s_cmp_lt_u32 s68, s42")
                loop(f"s_waitcnt vmcnt({min(cfg.kvw3, allowed(2))}) lgkmcnt(0)")
                loop(f"s_cbranch_scc1 {lb}")
                loop("s_cmp_lt_u32 s68, s43" if not cfg.early else f"s_cmp_ge_u32 s68, {cfg.ltrips - cfg.early}")
                loop(f"s_waitcnt vmcnt({cfg.kvwE})", "pace")
                loop(f"s_cbranch_scc1 {lb}")
                loop(f"s_waitcnt vmcnt({cfg.kvw})", "pace")
            loop(f"{lb}:")
    else:
        loop.extend(window(2)); loop.extend(window(3))
    if cfg.stamps == 2:
        loop("s_memrealtime s[98:99]")
        loop("s_sub_u32 m0, 28, s68")
        loop("s_waitcnt lgkmcnt(0)")
        loop("v_writelane_b32 v15, s98, m0")
    loop("s_sub_u32 s68, s68, 1")
    loop("s_cbranch_scc0 L_LOOP")
    tail = Stream()
    stamp(tail, cfg, 12)
    cw = [["s_lshl_b32 s10, s5, 2", "s_add_u32 s10, s10, s60"], ["s_lshl_b32 s10, s10, 9", "v_and_b32 v13, 3, v1"],
          ["v_lshl_add_u32 v13, v13, 7, s10"], ["global_load_dword a252, v13, s[96:97]"]] if cfg.rewarm else []
    for jj in range(2 * LT + 2, 29): tail.extend(window(jj, extra=(cw if jj == 2 * LT + 2 else [])))
    wx = [["s_mul_i32 s64, s6, 327680"]]
    for st_ in range(3):
        ch = dma_chain(wodma("s70", WOR[st_]))
        ch[-1] = ch[-1] + WOADV
        wx[-1] = wx[-1] + ch[0]; ch = ch[1:]
        wx += ch
    ex = [[f"s_mov_b32 s15, {f32bits(float('inf') if (cfg.x_nowait or cfg.x_nodma) else (THR if not cfg.force_fb else 1.0)):#x}", "s_mov_b64 s[12:13], 0"],
          ["s_mov_b32 s14, 0", "s_mul_i32 s10, s9, 49152"],
          ["s_mul_i32 s11, s8, 6144", "s_add_u32 s10, s10, s11"],
          [f"s_add_u32 s10, s10, {OWN_OFF}", "v_add_u32 v13, s10, v0"]]
    if cfg.wo_win == 29:
        assert NCH[29] == 0
        tail.extend(window(29, extra=wx, endw="s_waitcnt vmcnt(15) lgkmcnt(0)"))
        tail.extend(window(30, extra=ex, endw="s_waitcnt lgkmcnt(0)"))
    else:
        tail.extend(window(29, extra=ex))
        tail.extend(window(30, extra=wx, endw="s_waitcnt lgkmcnt(0)"))
    stamp(tail, cfg, 13)
    tail.extend(window(31, reads=False, last=True, endw=""))
    stamp(tail, cfg, 4)
    tail.ins = pad_hazards(tail.ins, loop.ins[-16:])
    ep = Stream()
    ep("s_lshl_b32 s10, s7, 3")
    ep("v_mov_b32 v16, s10")
    ep("global_load_dwordx2 v[56:57], v16, s[38:39] sc1")
    ep("v_mov_b32 v58, s30")
    ep("v_add_u32 v60, 65536, v58")
    ep("v_and_b32 v59, 7, v1")
    ep("v_lshl_add_u32 v59, v59, 7, s31")
    ep("v_and_b32 v61, 3, v1")
    ep("v_max_u32 v61, 1, v61")
    ep("v_add_u32 v61, s4, v61")
    ep("v_and_b32 v61, 3, v61")
    ep("v_lshl_add_u32 v61, v61, 10, s32")
    ep("v_add_u32 v62, s33, v0")
    ep("v_add_u32 v63, 49152, v62")
    for t in epi(4)[16:] + epi(5): ep(t)
    ep("s_cmp_lg_u64 s[12:13], 0")
    ep("s_cselect_b32 s10, 1, 0")
    ep("v_mov_b32 v16, s10")
    ep("s_lshl_b32 s10, s60, 2")
    ep(f"s_add_u32 s10, s10, {FLAG_OFF}")
    ep("v_mov_b32 v17, s10")
    ep(f"v_mov_b32 v18, {FLAG_OFF}")
    ep("ds_write_b32 v17, v16")
    ep("global_load_dwordx2 v[228:229], v59, s[40:41] sc1")
    ep("s_waitcnt vmcnt(26) lgkmcnt(0)")
    ep("s_barrier", "s[84:87]:0")
    ep("ds_read_b128 v[20:23], v18")
    for nt in range(10):
        for w in range(2): ep(f"ds_read_b64_tr_b16 {vr(TA(0, nt) + 2*w, 2)}, v{9 + (nt & 1)} offset:{WOR[0] + 5120*w + 32*(nt & ~1)}")
    own = [f"ds_read_b128 {ar(TOWN(u, i))}, v{62 + (u >> 2)} offset:{12288*(u & 3) + 1024*i}" for u in range(8) for i in range(3)]
    for t in own[:6]: ep(t)
    ep("s_waitcnt lgkmcnt(15)")
    ep("v_or_b32 v20, v20, v21")
    ep("v_or3_b32 v20, v20, v22, v23")
    ep("v_readfirstlane_b32 s10, v20")
    ep("s_andn2_b32 s10, s10, s78")
    if cfg.x_nowait or cfg.x_nodma: ep("s_mov_b32 s10, 0")
    ep("s_cmp_lg_u32 s10, 0")
    ep("s_cbranch_scc1 L_FALLBACK")
    stamp(ep, cfg, 5)
    def signal(s, w):
        s(f"s_waitcnt vmcnt({w})")
        s(f"s_mov_b32 s79, {SPIN_MAX}")
        s("L_TAG:")
        s("v_readfirstlane_b32 s10, v56")
        s("s_nop 0")
        s("s_cmp_lg_u32 s10, 0")
        s("s_cbranch_scc1 L_TAGOK")
        s("s_lshl_b32 s10, s7, 3")
        s("v_mov_b32 v230, s10")
        s("s_sleep 2")
        s("s_sub_u32 s79, s79, 1")
        s("global_load_dwordx2 v[56:57], v230, s[38:39] sc1")
        s("s_waitcnt vmcnt(0)", "spin")
        s("s_cbranch_scc0 L_TAG")
        s("L_TAGOK:")
        s("global_store_dwordx2 v58, v[56:57], s[40:41] sc1")
    if cfg.sigp < 0: signal(ep, 1)
    ep("s_waitcnt lgkmcnt(0)")
    stamp(ep, cfg, 6)
    ep.ins = pad_hazards(ep.ins, tail.ins[-16:])

    def poll(s, lbl, vaddr, first_issued):
        s(f"s_mov_b32 s79, {SPIN_MAX}")
        if first_issued: s(f"s_branch {lbl}_C")
        s(f"{lbl}:")
        s(f"global_load_dwordx2 v[228:229], {vaddr}, s[40:41] sc1")
        s(f"{lbl}_C:")
        s("s_waitcnt vmcnt(0)")
        s("v_cmp_ne_u64 vcc, v[228:229], v[56:57]")
        s("s_sub_u32 s79, s79, 1")
        s(f"s_cbranch_scc1 {lbl}_OK")
        s("s_cmp_lg_u64 vcc, 0")
        s(f"s_cbranch_scc1 {lbl}")
        s(f"{lbl}_OK:")
    def OB(p, i):
        t, u = p >> 3, p & 7
        return (96 if t % 2 == 0 else 0) + 12 * u + 4 * i
    def oload(p, i):
        t, u = p >> 3, p & 7
        return f"buffer_load_dwordx4 {ar(OB(p, i))}, v{(0, 11, 12)[i]}, s[88:91], s{16 + 2*(t-1) + (u >> 2)} offen offset:{1024*(u & 3)} {cfg.old}"
    def treads2(p):
        st_ = p >> 1
        return [f"ds_read_b64_tr_b16 {vr(TA(p & 1, nt) + 2*w, 2)}, v{9 + (nt & 1)} offset:{WOR[st_ % 3] + 10240*(p & 1) + 5120*w + 32*(nt & ~1)}"
                for nt in range(10) for w in range(2)]
    FLD = "global_load_dwordx2 v[228:229], v59, s[40:41] sc1"
    def tper(p, items, pre=()):
        mfl = []
        for nt in range(10):
            for i in range(3):
                a = vr(TACC(i, nt))
                mfl.append(f"{MF} {a}, {vr(TA(p & 1, nt))}, {ar(OB(p, i))}, {'0' if p == 0 else a}")
        gaps = {}; s = Stream(); tags = []; grp = []
        if p & 1:
            s("s_barrier", "s[84:87]:5" if p <= 27 else "s[84:87]:0")
            stg = (p + 1) // 2 + 2
            if stg <= 15:
                ch = dma_chain(wodma("s70", WOR[stg % 3])); ch[-1] = ch[-1] + [WOADV[0]]
                grp += ch + [WOADV[1:]]; tags += [("w", stg)] * 5
        for tg_, t in items:
            grp.append([t])
            if tg_ is not None: tags.append(tg_)
        for t in pre: s(t)
        if grp: spread(gaps, grp, 0, 27, cap=2)
        spread(gaps, [[t] for t in treads2(p + 1)], 0, 24, cap=2)
        assert max(gaps, default=0) <= 29, max(gaps)
        s.extend(interleave(mfl, gaps))
        return s, tags
    def need_after(p):
        n = [("o", p + 1)]
        if p % 2 == 0: n.append(("w", p // 2 + 1))
        return n
    def minwait(q, needs):
        idx = [k for k, x in enumerate(q) if x in needs]
        return (len(q) - 1 - idx[-1]) if idx else None
    def check_partner(s, lbl, k):
        s(f"s_and_b64 s[10:11], s[22:23], s[{24 + 2*k}:{25 + 2*k}]")
        s(f"s_cbranch_scc0 {lbl}_OK")
        s(f"s_mov_b32 s79, {SPIN_MAX}")
        s(f"{lbl}:")
        s(FLD)
        s("s_waitcnt vmcnt(0)", "spin")
        s("v_cmp_ne_u64 s[22:23], v[228:229], v[56:57]")
        s("s_sub_u32 s79, s79, 1")
        s(f"s_cbranch_scc1 {lbl}_OK")
        s(f"s_and_b64 s[10:11], s[22:23], s[{24 + 2*k}:{25 + 2*k}]")
        s(f"s_cbranch_scc1 {lbl}")
        s(f"{lbl}_OK:")
    allo = [(("o", p), oload(p, i)) for p in range(8, 32) for i in range(3)]
    when = []
    for n in range(72):
        p = 8 + n // 3
        when.append(max(cfg.pollp + (n * 10) // cfg.orate, p - 15 if p >= 16 else 0, 8 if p >= 16 else 0))
    n0 = sum(1 for x in when if x < 8)
    p1 = allo[:n0]
    def trip0(mode, q):
        s = Stream(); q = list(q)
        fast = mode == "fast"
        first = cfg.dp if fast else cfg.pollp
        nsp = 8 - first - (1 if fast else 0)
        for u in (range(cfg.dp) if mode == "pre" else range(cfg.dp, 8)):
            items = []
            if u < 3: items += [(None, t) for t in own[6 + 6*u: 12 + 6*u]]
            if mode == "slow" and u == cfg.fldp: items.append((("f", 1), FLD))
            pre = Stream()
            if mode == "slow" and u == cfg.pollp:
                w = minwait(q, [('f', 1)])
                if w is not None: pre(f"s_waitcnt vmcnt({w})")
                pre("v_cmp_ne_u64 s[22:23], v[228:229], v[56:57]")
                pre("s_nop 0")
                check_partner(pre, "L_PA", 0)
                stamp(pre, cfg, 7)
            if mode != "pre" and first <= u < first + nsp:
                k = u - first
                items += p1[(k * n0) // nsp: ((k + 1) * n0) // nsp]
            s.extend(pre)
            st_, tags = tper(u, items)
            s.extend(st_); q += tags
            if mode == "pre" and u == cfg.sigp:
                w = minwait(q, [("ost", 0)]); signal(s, w); q = q[len(q) - w:] + [("s", 0)]
            nd = need_after(u)
            if fast and u == 7: nd = nd + [("w", 5)] + [x for x, _ in p1[:n0 - 4]]
            if mode == "pre" and u == cfg.dp - 1: nd = nd + [("f", 0)]
            w = minwait(q, nd)
            s(f"s_waitcnt vmcnt({w}) lgkmcnt(0)" if w is not None else "s_waitcnt lgkmcnt(0)")
            if w is not None: q = q[len(q) - w:] if w else []
            if cfg.stamps == 3: stamp(s, cfg, 16 + u)
        return s, q
    t0p, qp = trip0("pre", [("f", 0), ("s", 0)] if cfg.sigp < 0 else [("ost", 0), ("f", 0)])
    t0p("v_cmp_ne_u64 s[22:23], v[228:229], v[56:57]")
    t0p("s_nop 0")
    t0p("s_and_b64 s[10:11], s[22:23], s[24:25]")
    t0p("s_cbranch_scc0 L_T0F")
    t0, qs = trip0("slow", qp)
    t0("L_T1:")
    tf = Stream(); tf("L_T0F:")
    stamp(tf, cfg, 7)
    tf_, qf = trip0("fast", qp); tf.extend(tf_); tf("s_branch L_T1")
    tl = Stream()
    stamp(tl, cfg, 14)
    PS = 15360
    su = Stream()
    for t in ["s_lshl_b32 s34, s7, 2", "s_add_u32 s34, s34, s6", "s_lshl_b32 s34, s34, 2", "s_add_u32 s35, s34, s60", "s_lshl_b32 s35, s35, 2",
              "s_add_u32 s35, s35, s4", f"s_mul_i32 s35, s35, {PS}", f"s_add_u32 s35, s35, {P_OFF}", "s_add_u32 s52, s40, s35\ns_addc_u32 s53, s41, 0",
              "s_and_b32 s53, s53, 0xffff", f"s_mov_b32 s54, {PS}", f"v_add_u32 v231, {OWN_OFF}, v0",
              "s_add_u32 s35, s34, s4", f"s_mul_i32 s35, s35, {4*PS}", f"s_add_u32 s35, s35, {P_OFF}", "s_add_u32 s56, s40, s35\ns_addc_u32 s57, s41, 0",
              "s_and_b32 s57, s57, 0xffff", f"s_mov_b32 s58, {4*PS}",
              "s_mul_i32 s34, s62, 192", "s_mul_i32 s35, s4, 48", "s_add_u32 s34, s34, s35", "s_mul_i32 s34, s34, 2560", "s_mul_i32 s35, s61, 1280",
              "s_add_u32 s34, s34, s35", "s_mul_i32 s35, s6, 320", "s_add_u32 s34, s34, s35", "s_add_u32 s44, s36, s34\ns_addc_u32 s45, s37, 0",
              "s_and_b32 s45, s45, 0xffff", "s_sub_u32 s46, 3932160, s34",
              "v_and_b32 v237, 15, v1", "v_mul_u32_u24 v237, 2560, v237", "v_bfe_u32 v238, v1, 4, 1", "v_lshl_add_u32 v237, v238, 5, v237",
              "v_lshrrev_b32 v238, 5, v1", "v_lshl_add_u32 v233, v238, 4, v237", "s_lshl_b32 s34, s60, 10", "v_add_u32 v237, s34, v0"]: su.ins.append(t)
    for k in range(1, 4):
        su.ins += [f"s_add_u32 s34, s4, {k}", "s_and_b32 s34, s34, 3", f"s_mul_i32 s34, s34, {PS}", f"v_add_u32 v{233+k}, s34, v237"]
    su.ins += ["s_lshl_b32 s34, s60, 11", "v_add_u32 v232, s34, v231", "s_mov_b32 s12, 4096", "s_mov_b32 s13, 8192", "s_mov_b32 s15, 12288",
               "s_cmp_eq_u32 s60, 3\ns_cselect_b32 s14, 0x40000000, 12288", "s_mov_b32 s67, 0xffff0000"]
    for m in range(4):
        su.ins += [f"s_add_u32 s34, s60, {4*m}", "s_mul_i32 s35, s34, 13", "s_lshr_b32 s35, s35, 6", "s_mul_i32 s3, s35, 5", "s_sub_u32 s3, s34, s3",
                   f"s_mul_i32 s35, s35, {16*2560}", "s_lshl_b32 s3, s3, 6", f"s_add_u32 s{80+m}, s35, s3"]
    su.ins += ["s_cmp_eq_u32 s60, 3\ns_cselect_b32 s83, 0x40000000, s83"]
    sul = su.ins; nsu = -(-len(sul) // 4)
    for p in range(8, 31):
        items = []
        pre = Stream()
        if p == when[24]: check_partner(pre, "L_PA2", 1)
        if p == when[48]: check_partner(pre, "L_PA3", 2)
        items += [allo[n] for n in range(72) if when[n] == p]
        if p >= 27: items += [(None, t) for t in sul[(p - 27) * nsu:(p - 26) * nsu]]
        tl.extend(pre)
        st_, tags = tper(p, items)
        tl.extend(st_); qs += tags; qf += tags
        ws_ = [w for w in (minwait(qs, need_after(p)), minwait(qf, need_after(p))) if w is not None]
        tl(f"s_waitcnt vmcnt({min(ws_)}) lgkmcnt(0)" if ws_ else "s_waitcnt lgkmcnt(0)")
        if ws_:
            w = min(ws_)
            qs = qs[max(0, len(qs) - w):] if w else []
            qf = qf[max(0, len(qf) - w):] if w else []
    fin = Stream()
    def lastper(ownslab):
        mfl = [f"{MF} {vr(TACC(i, nt))}, {vr(TA(1, nt))}, {ar(OB(31, i))}, {vr(TACC(i, nt))}" for nt in range(10) for i in range(3)]
        gaps = {}
        for k in range(5):
            l = []
            for i in range(3):
                pp = 5*i + k; b = 64 + 8*pp
                if ownslab: l += [f"ds_write_b128 v231, {vr(b + 4*h)} offset:{1024*(2*pp + h)}" for h in range(2)]
                else:
                    l += [f"v_cvt_pk_bf16_f32 v{b+p}, v{b+2*p}, v{b+2*p+1}" for p in range(4)]
                    l.append(f"buffer_store_dwordx4 {vr(b)}, v0, s[52:55], {('0', 's12', 's13', 's15')[pp >> 2]} offen offset:{1024*(pp & 3)} {cfg.pst}")
            for n, t in enumerate(l): gaps.setdefault(min(29, 6*k + 8 + (n * 6) // len(l)), []).append(t)
        return interleave(mfl, gaps)
    fin("s_cmp_eq_u32 s60, s4")
    fin("s_cbranch_scc1 L_OWNSLAB")
    fin.extend(lastper(False))
    fin("s_branch L_SLABDONE")
    fin("L_OWNSLAB:")
    fin.extend(lastper(True))
    fin("L_SLABDONE:")
    stamp(fin, cfg, 8)
    fin("s_waitcnt vmcnt(0) lgkmcnt(0)")
    fin("global_store_dwordx2 v60, v[56:57], s[40:41] sc1")
    fin("s_barrier")
    for m in range(4):
        for h in range(2):
            fin(f"ds_read_b128 {vr(64 + 32*m + 4*h)}, v232 offset:{8192*m + 1024*h}")
    stamp(fin, cfg, 9)
    if cfg.poll2:
        fin(f"s_mov_b32 s79, {SPIN_MAX}")
        fin("global_load_dwordx2 v[228:229], v61, s[40:41] sc1")
        fin("s_sleep 6")
        fin("L_PB:")
        fin("global_load_dwordx2 v[226:227], v61, s[40:41] sc1")
        fin("s_waitcnt vmcnt(1)")
        fin("v_cmp_ne_u64 vcc, v[228:229], v[56:57]")
        fin("s_sub_u32 s79, s79, 1")
        fin("s_cbranch_scc1 L_PB_OK")
        fin("s_cmp_eq_u64 vcc, 0")
        fin("s_cbranch_scc1 L_PB_OK")
        fin("global_load_dwordx2 v[228:229], v61, s[40:41] sc1")
        fin("s_waitcnt vmcnt(1)")
        fin("v_cmp_ne_u64 vcc, v[226:227], v[56:57]")
        fin("s_nop 1")
        fin("s_cmp_lg_u64 vcc, 0")
        fin("s_cbranch_scc1 L_PB")
        fin("L_PB_OK:")
    else:
        poll(fin, "L_PB", "v61", False)
    stamp(fin, cfg, 10)
    for m in range(4):
        so = ("0", "s12", "s13", "s14")[m]
        for k in range(3):
            fin(f"buffer_load_dwordx4 {vr(64 + 32*m + 8 + 4*k)}, v{234+k}, s[56:59], {so} offen {cfg.pld}")
    fin("s_waitcnt lgkmcnt(0)")
    for m in range(4):
        fin(f"s_waitcnt vmcnt({9 - 3*m + m})")
        d = 64 + 32*m
        for k in range(3):
            for p in range(4):
                x = d + 8 + 4*k + p
                fin(f"v_lshlrev_b32 v{d+20+2*p}, 16, v{x}")
                fin(f"v_and_b32 v{d+21+2*p}, s67, v{x}")
            for p in range(4):
                fin(f"v_pk_add_f32 {vr(d+2*p,2)}, {vr(d+2*p,2)}, {vr(d+20+2*p,2)}")
        for p in range(4): fin(f"v_cvt_pk_bf16_f32 v{d+p}, v{d+2*p}, v{d+2*p+1}")
        fin(f"v_permlane16_swap_b32 v{d}, v{d+2}")
        fin(f"v_permlane16_swap_b32 v{d+1}, v{d+3}")
        fin(f"buffer_store_dwordx4 {vr(d)}, v233, s[44:47], s{80+m} offen {cfg.outst}")
    if cfg.stamps:
        fin("s_waitcnt vmcnt(0)")
        stamp(fin, cfg, 11)
        fin("s_lshl_b32 s10, s2, 2")
        fin("s_add_u32 s10, s10, s60")
        fin("s_lshl_b32 s10, s10, 8")
        fin(f"s_add_u32 s10, s10, {STAMP_OFF}")
        fin("v_lshlrev_b32 v16, 2, v1")
        fin("v_add_u32 v16, s10, v16")
        fin("global_store_dword v16, v15, s[40:41]")
    if cfg.diag:
        a_, b_ = cfg.diag // 100, cfg.diag % 100
        fin(f"v_readlane_b32 s10, v15, {a_ % 32}")
        fin(f"v_readlane_b32 s11, v15, {b_}")
        fin(f"v_readlane_b32 s12, v15, 11")
        fin("s_nop 4")
        fin("s_sub_u32 s10, s11, s10")
        fin("s_lshl_b32 s10, s10, 2")
        fin("L_DIAG:")
        fin("s_memrealtime s[98:99]")
        fin("s_waitcnt lgkmcnt(0)")
        fin("s_sub_u32 s11, s98, s12")
        fin("s_cmp_lt_u32 s11, s10")
        fin("s_cbranch_scc1 L_DIAG")
    fin("L_END:")
    fin("s_endpgm")
    fin.ins = pad_hazards(fin.ins, tl.ins[-16:])
    fb = Stream()
    fb("L_FALLBACK:")
    fb("s_mov_b32 s78, 1")
    fb("s_mov_b32 s71, 0")
    fb("s_mov_b32 s72, 4096")
    fb("s_mov_b32 s68, 31")
    fb("s_waitcnt vmcnt(0) lgkmcnt(0)")
    for i in R6: fb(f"v_mov_b32 v{NEGM(i)}, 0xff800000")
    fbl = Stream()
    fbl("L_FBLOOP:")
    fbl("s_barrier")
    for m, d in kvdma("s75", 0):
        fbl(m); fbl("s_nop 0"); fbl(d)
    for t in kvadv: fbl(t)
    fbl("s_waitcnt vmcnt(0)")
    fbl("s_barrier")
    for t in kreads(0, 0): fbl(t)
    fbl("s_waitcnt lgkmcnt(0)")
    for kt in range(2):
        for kk in range(4):
            for i in R6:
                d = vr(O0 + 8*i + 4*kt)
                fbl(f"{MF} {d}, {ar(KF(0, 4*kt+kk))}, {ar(QF(i, kk))}, {'0' if kk == 0 else d}")
    fbl("s_nop 7")
    for p in range(4):
        for i in R6:
            fbl(f"v_max3_f32 v{NEGM(i)}, v{NEGM(i)}, v{O0+8*i+2*p}, v{O0+8*i+2*p+1}")
    fbl("s_sub_u32 s68, s68, 1")
    fbl("s_cbranch_scc0 L_FBLOOP")
    fb2 = Stream()
    for i in R6:
        for r in (1, 2, 3): fb2(f"v_mov_b32 v{NEGM(i)+r}, v{NEGM(i)}")
    fb2("s_barrier")
    for t in range(4):
        for m, d in kvdma("s75", t * SLOT):
            fb2(m); fb2("s_nop 0"); fb2(d)
        for x in kvadv: fb2(x)
    fb2("s_waitcnt vmcnt(0)")
    parts = [pro, q0, qloop, qtail, qe, w0, loop, tail, ep, t0p, t0, tl, fin, tf, fb, fbl, fb2, st]
    def mk(lst):
        t = []
        for p in lst: t += p.ins
        out = []; skip = False
        for x in t:
            if x.cmt == "pace": continue
            if x.cmt == "spin": out.pop(); continue
            out.append(x)
        return out
    tr = mk([pro, q0, qloop, qtail, qe, w0, loop, loop, tail, ep, t0p, t0, tl, fin])
    tr3 = mk([tail, ep, t0p, tf, tl, fin])
    cut = [k for k, x in enumerate(ep.ins) if "L_FALLBACK" in x.text][0]
    epc = Stream(); epc.ins = ep.ins[:cut+1]
    tr2 = mk([loop, tail, epc, fb, fbl, fbl, fb2, st, w0])
    rules = [("s[44:47]", 0), ("s[48:51]", 0), ("s[52:55]", 0), ("s[84:87]", 0)]
    errs = []
    for nm_, t in (("main", tr), ("fb", tr2), ("fast", tr3)):
        errs += check_hazards(t, nm_) + check_waits(t, nm_) + check_dma(t, rules, nm_) + check_scc(t, nm_)
    errs = [e for e in errs if "_load_dword a252" not in e]
    return parts, errs

KD = """.amdhsa_kernel {name}
  .amdhsa_next_free_vgpr 512
  .amdhsa_next_free_sgpr 102
  .amdhsa_accum_offset 256
  .amdhsa_group_segment_fixed_size 0
  .amdhsa_kernarg_size 104
  .amdhsa_user_sgpr_count 2
  .amdhsa_user_sgpr_kernarg_segment_ptr 1
  .amdhsa_system_sgpr_workgroup_id_x 1
.end_amdhsa_kernel
"""

DOC = """; Fused kernel (generated by my own script): one workgroup per CU = (block, batch, head pair), 4 waves x 96 queries.
;     recomputes the exact row max over all keys and reruns the attention with it (L_FALLBACK).
"""

def build_asm(cfg):
    ref = open(f"cdna_kernels/{NAME}.s.ref").read()
    head = []
    for line in ref.splitlines():
        if line.startswith(";") and "@launch" not in line: head.append(line)
        elif not line.startswith(";"): break
    nm = NAME + "_kernel"
    out = "\n".join(head) + "\n"
    out += "; @launch grid=(256,1,1) block=(256,1,1) lds=163840\n"
    out += '.amdgcn_target "amdgcn-amd-amdhsa--gfx950"\n'
    out += DOC
    out += '.text\n'
    parts, errs = gen(cfg)
    out += f".globl {nm}\n.p2align 8\n.type {nm},@function\n{nm}:\n"
    for p in parts: out += p.text()
    out += f".fill (67584 - (. - {nm})) / 4, 4, 0xbf800000\n"
    out += '.section .rodata,"a"\n.p2align 6\n' + KD.format(name=nm)
    return out, errs

if __name__ == "__main__":
    cfg = Cfg()
    outp = f"cdna_kernels/{NAME}.s"
    for a in sys.argv[1:]:
        if a.startswith("out="): outp = a[4:]; continue
        k, v = a.split("=")
        cur = getattr(cfg, k)
        setattr(cfg, k, type(cur)(int(v)) if not isinstance(cur, str) else v.replace("+", " "))
    asm, errs = build_asm(cfg)
    for e in errs[:6]: print(e[:200])
    print(len(errs), "errors")
    open(outp, "w").write(asm)
    print("wrote", outp, len(asm), "bytes")
```

```python
import sys, struct, math
sys.path.insert(0, "work")
from asmlib import *

NAME = "concat_heads__mha_block_cached__gqa_block_cached__near_ridge"
MF = "v_mfma_f32_16x16x32_bf16"
def f32bits(x): return struct.unpack("<I", struct.pack("<f", x))[0]

CH = 1056
SUB = 8416
SLOT = 4 * SUB
XSL = [4 * SLOT, SLOT, SLOT + 24576]
WSL = [3 * SLOT, 3 * SLOT + 2 * SUB, SLOT + 49152]
FLAG_OFF = 61440
OWN_OFF = 65536
WOR = [0, 20480, 40960]
P_OFF = 32 << 20
F_OFF = 63 << 20
SCALE = math.log2(math.e) / math.sqrt(128.0)
THR = 2.0 ** 40
STAMP_OFF = 64 << 20
SPIN_MAX = 1 << 20

class Cfg:
    stamps = 0
    nt_kv = "nt"
    nt_xw = ""
    nt_wo = ""
    rot = 2
    d3 = 1
    outst = "sc1"
    lax = 1
    laxE = 0
    laxL = 0
    laxL2 = 12
    pkq = 1
    wb = 0
    rewarm = 0
    freej = 27
    poll2 = 0
    dith = 12
    rev = 0
    ramp = 6
    ramp2 = 0
    kvw3 = 16
    early = 0
    pke = 0
    smix = 0
    even = 0
    slide = 0
    sigp = 1
    sparse1 = 1
    burst = 0
    ltrips = 12
    n01 = 6
    use29 = 1
    kvwt = 3
    kvb = 0
    diag = 0
    orate = 40
    old = "sc1"
    pst = "sc1"
    pld = "sc1"
    preflag = 1
    nsp = 3
    fldp = 3
    dp = 2
    fstrict = 4
    tlw2 = 63
    t0slack = 0
    tlw = 14
    kvwE = 4
    cls = 0
    x_nowait = 0
    x_nodma = 0
    x_hot = 0
    up = 0
    upp = 3
    nt_up = "nt"
    laxw = 16
    fine = 1
    wo_win = 30
    nt_tw = ""
    ost = "sc1"
    qrot = 0
    kvw = 2
    kvw0 = 2
    kvw1 = 2
    pollp = 6
    force_fb = False
    warm_wo = 2
    twp = 18
    kvp0 = 3
    kvp1 = 17
    local_o = 0
    warm_code = 1
    pbf16 = 1
    force_remote = 0

def vr(b, n=4): return f"v[{b}:{b+n-1}]"
def ar(b, n=4): return f"a[{b}:{b+n-1}]"

O0 = 64
def OACC(i, dt): return O0 + 32 * i + 4 * dt
def SREG(par, kt): return 16 + 8 * par + 4 * kt
def PREG(par): return 32 + 4 * par
def NEGM(i): return 40 + 4 * i
def QF(i, kk): return 16 * i + 4 * kk
def KF(par, f): return 96 + 32 * par + 4 * f
def VF(par, dt): return 160 + 32 * par + 4 * dt
def LACC(i): return 224 + 4 * i
ONES = 248
def QA(par, dt): return 96 + 32 * par + 4 * dt
def QB(par, i): return 160 + 32 * par + 4 * i
def TACC(i, nt): return 64 + 4 * (10 * i + nt)
def TA(par, nt): return (184 if par == 0 else 16) + 4 * nt
def TB_(u, i): return 12 * u + 4 * i
def TOWN(u, i): return 96 + 12 * u + 4 * i

NST = 12
def stamp(s, cfg, n):
    if cfg.stamps:
        s("s_memrealtime s[98:99]")
        s("s_memtime s[100:101]")
        s("s_waitcnt lgkmcnt(0)")
        s(f"v_writelane_b32 v15, s98, {n}")
        s(f"v_writelane_b32 v15, s100, {32 + n}")

def spread(gaps, items, lo, hi, cap=2):
    n = len(items)
    last = lo
    for k, it in enumerate(items):
        g = max(lo + (k * (hi - lo)) // n, last)
        while len(gaps.get(g, [])) + len(it) > cap: g += 1
        gaps.setdefault(g, []).extend(it)
        last = g

def dma_chain(dl):
    out = []
    for k, x in enumerate(dl):
        if k == 0: out.append([x[0]])
        nxt = [dl[k+1][0]] if k + 1 < len(dl) else []
        out.append([x[1]] + nxt)
    return out

def gen(cfg):
    R6 = range(6)
    pro = Stream(); s = pro
    s("s_cmp_ge_u32 s2, 256")
    s("s_cbranch_scc1 L_END")
    s("s_load_dwordx16 s[16:31], s[0:1], 0")
    s("s_load_dwordx8 s[32:39], s[0:1], 64")
    s("s_load_dwordx2 s[40:41], s[0:1], 96")
    s("s_memrealtime s[96:97]")
    s("v_lshrrev_b32 v17, 6, v0")
    s("v_and_b32 v1, 63, v0")
    if cfg.warm_code:
        s("s_getpc_b64 s[98:99]")
        s("s_lshr_b32 s5, s2, 3")
        s("s_lshl_b32 s5, s5, 11")
        s("v_lshrrev_b32 v16, 4, v0")
        s("v_lshl_add_u32 v16, v16, 7, s5")
        s("global_load_dword v16, v16, s[98:99]")
    s("s_and_b32 s4, s2, 7")
    s("s_lshr_b32 s5, s2, 3")
    s("v_readfirstlane_b32 s60, v17")
    s("s_lshr_b32 s61, s4, 2")
    s("s_and_b32 s4, s4, 3")
    s("s_lshl_b32 s63, s4, 2")
    s("s_and_b32 s6, s5, 3")
    s("s_add_u32 s63, s63, s6")
    s("s_lshr_b32 s62, s5, 2")
    s("s_lshl_b32 s7, s61, 3")
    s("s_add_u32 s7, s7, s62")
    s("s_and_b32 s8, s60, 1")
    s("s_lshr_b32 s9, s60, 1")
    s("v_lshrrev_b32 v18, 4, v1")
    s("v_and_b32 v19, 15, v1")
    s("v_lshrrev_b32 v22, 3, v1")
    s("v_lshlrev_b32 v23, 1, v18")
    s("v_and_b32 v24, 7, v1")
    s("v_xor_b32 v23, v23, v24")
    s("v_mul_u32_u24 v22, 1280, v22")
    s("v_lshl_add_u32 v4, v23, 4, v22")
    s("s_mul_i32 s10, s60, 61440")
    s("v_add_u32 v4, s10, v4")
    for t in range(1, 6): s(f"v_add_u32 v{4+t}, {10240*t}, v4")
    s("v_lshrrev_b32 v22, 1, v18")
    s("v_lshlrev_b32 v22, 2, v22")
    s("v_and_b32 v23, 1, v18")
    s("v_lshl_add_u32 v22, v23, 4, v22")
    s("v_lshlrev_b32 v22, 13, v22")
    s("v_lshl_add_u32 v10, v19, 4, v22")
    s("s_lshl_b32 s10, s8, 16")
    s("s_lshl_b32 s11, s9, 8")
    s("s_add_u32 s10, s10, s11")
    s("v_add_u32 v10, s10, v10")
    for t in range(1, 4): s(f"v_add_u32 v{10+t}, {8192*t}, v10")
    s(f"s_mul_i32 s10, s9, {SUB}")
    s(f"s_mul_i32 s11, s8, {CH}")
    s("s_add_u32 s69, s10, s11")
    s("s_mul_i32 s70, s60, 6144")
    if cfg.qrot:
        s("s_lshl_b32 s10, s6, 1")
        s("s_add_u32 s10, s10, s62")
        s("s_mul_i32 s10, s10, 5")
        s("s_lshr_b32 s10, s10, 2")
        s("s_sub_u32 s11, s10, 10")
        s("s_cmp_ge_u32 s10, 10")
        s("s_cselect_b32 s10, s11, s10")
        s("s_lshl_b32 s64, s10, 7")
        s("s_lshl_b32 s65, s10, 19")
    else:
        s("s_mov_b32 s64, 0")
        s("s_mov_b32 s65, 0")
    s("s_waitcnt lgkmcnt(0)")
    if cfg.stamps:
        s("v_mov_b32 v15, 0")
        s("s_nop 0")
        s("v_writelane_b32 v15, s96, 0")
    s("s_or_b32 s10, s63, s60")
    s("s_cmp_lg_u32 s10, 0")
    s("s_cbranch_scc1 L_NOLEAD")
    s("s_lshl_b32 s10, s7, 3")
    s("s_or_b32 s96, s96, 1")
    s("v_mov_b32 v22, s10")
    s("v_mov_b32 v24, s96")
    s("v_mov_b32 v25, s97")
    s("global_store_dwordx2 v22, v[24:25], s[38:39] sc1")
    s("L_NOLEAD:")
    s("s_getpc_b64 s[96:97]")
    s("s_cmp_eq_u32 s61, 0")
    s("s_cselect_b64 s[44:45], s[16:17], s[26:27]")
    s("s_cselect_b64 s[48:49], s[22:23], s[32:33]")
    s("s_cselect_b64 s[12:13], s[18:19], s[28:29]")
    s("s_cselect_b64 s[14:15], s[20:21], s[30:31]")
    s("s_cselect_b64 s[84:85], s[24:25], s[34:35]")
    s("s_mul_i32 s10, s62, 245760")
    s("s_add_u32 s44, s44, s10")
    s("s_addc_u32 s45, s45, 0")
    s("s_and_b32 s45, s45, 0xffff")
    s("s_mov_b32 s46, 245760")
    s("s_mov_b32 s47, 0x20000")
    s("s_lshl_b32 s10, s63, 9")
    s("s_add_u32 s48, s48, s10")
    s("s_addc_u32 s49, s49, 0")
    s("s_and_b32 s49, s49, 0xffff")
    s("s_sub_u32 s50, 5242880, s10")
    s("s_mov_b32 s51, 0x20000")
    XADV = ["s_add_u32 s64, s64, 128", "s_cmp_eq_u32 s64, 1280", "s_cselect_b32 s64, 0, s64"]
    WADV = ["s_add_u32 s65, s65, 262144", "s_cmp_eq_u32 s65, 5242880", "s_cselect_b32 s65, 0, s65"]
    if cfg.x_hot: XADV = []; WADV = []
    def xdma(sreg, base, ts):
        return [(f"s_add_u32 m0, {sreg}, {base + 1024*t}", f"buffer_load_dwordx4 v{4+t}, s[44:47], s64 offen {cfg.nt_xw} lds") for t in ts]
    def wdma(sreg, base):
        return [(f"s_add_u32 m0, {sreg}, {base + 2*CH*r}", f"buffer_load_dwordx4 v{10+r}, s[48:51], s65 offen {cfg.nt_xw} lds") for r in range(4)]
    for st in range(2):
        for grp in dma_chain(xdma("s70", XSL[st], range(6)) + wdma("s69", WSL[st])):
            for t in grp: s(t)
        for t in XADV + WADV: s(t)
    upb = []
    if cfg.up:
        s("v_mul_u32_u24 v32, 13108, v1")
        s("v_lshrrev_b32 v32, 16, v32")
        s("v_mul_u32_u24 v33, 5, v32")
        s("v_sub_u32 v33, v1, v33")
        s("v_min_u32 v32, 11, v32")
        s("v_mul_u32_u24 v32, 1280, v32")
        s("v_lshl_add_u32 v32, v33, 7, v32")
        s("s_lshl_b32 s10, s6, 2")
        s("s_add_u32 s10, s10, s60")
        s("s_mul_i32 s96, s10, 15360")
        s("v_lshrrev_b32 v33, 2, v1")
        s("v_min_u32 v33, 9, v33")
        s("v_lshlrev_b32 v33, 13, v33")
        s("v_and_b32 v34, 3, v1")
        s("v_lshl_add_u32 v33, v34, 7, v33")
        s("s_lshl_b32 s10, s62, 2")
        s("s_add_u32 s10, s10, s60")
        s("s_mul_i32 s97, s10, 81920")
        s(f"buffer_load_dword a252, v32, s[44:47], s96 offen {cfg.nt_up}")
        s(f"buffer_load_dword a252, v33, s[48:51], s97 offen {cfg.nt_up}")
        s(f"s_add_u32 s97, s97, {320*8192}")
        upb = [("", f"buffer_load_dword a252, v32, s[44:47], s96 offen offset:640 {cfg.nt_up}"),
               ("", f"buffer_load_dword a252, v33, s[48:51], s97 offen {cfg.nt_up}")]
        if cfg.up == 1:
            for _, t in upb: s(t)
            upb = []
    s("v_lshlrev_b32 v0, 4, v1")
    s("v_and_b32 v20, 3, v1")
    s("v_bfe_u32 v21, v1, 2, 2")
    s("v_and_b32 v22, 1, v18")
    s("v_lshl_add_u32 v22, v21, 1, v22")
    s(f"v_mul_u32_u24 v22, {CH}, v22")
    s("v_lshrrev_b32 v23, 1, v18")
    s("v_lshl_add_u32 v22, v23, 8, v22")
    s("v_lshl_add_u32 v26, v20, 3, v22")
    s("v_xor_b32 v24, 2, v20")
    s("v_lshl_add_u32 v27, v24, 3, v22")
    s("v_and_b32 v22, 1, v21")
    s("v_lshl_add_u32 v22, v20, 1, v22")
    s(f"v_mul_u32_u24 v22, {CH}, v22")
    s("v_lshrrev_b32 v23, 1, v21")
    s("v_lshl_add_u32 v22, v23, 8, v22")
    s("v_lshlrev_b32 v23, 1, v18")
    s("v_mov_b32 v24, 0x9c")
    s("v_lshrrev_b32 v23, v23, v24")
    s("v_and_b32 v23, 3, v23")
    s("v_lshl_add_u32 v2, v23, 4, v22")
    s("v_and_b32 v22, 6, v19")
    s("v_xor_b32 v22, v22, v18")
    s("v_lshlrev_b32 v22, 4, v22")
    s("v_lshl_add_u32 v28, v19, 7, v22")
    s("s_mul_i32 s10, s8, 12288")
    s("v_add_u32 v28, s10, v28")
    s("v_xor_b32 v29, 64, v28")
    s(f"s_mul_i32 s10, s9, {2*SUB}")
    s("v_add_u32 v2, s10, v2")
    s(f"s_add_u32 s10, s10, {SUB}")
    s("v_add_u32 v3, s10, v26")
    s(f"s_mul_i32 s10, s9, {SUB}")
    s("v_add_u32 v26, s10, v26")
    s("v_add_u32 v27, s10, v27")
    s(f"s_mul_i32 s75, s60, {SUB}")
    s("s_cmp_eq_u32 s8, 0")
    s("s_cselect_b64 s[52:53], s[12:13], s[14:15]")
    s("s_lshl_b32 s10, s62, 5")
    s("s_lshl_b32 s11, s63, 1")
    s("s_add_u32 s11, s11, s9")
    s("s_add_u32 s10, s10, s11")
    s("s_lshl_b32 s10, s10, 18")
    s("s_add_u32 s52, s52, s10")
    s("s_addc_u32 s53, s53, 0")
    s("s_and_b32 s53, s53, 0xffff")
    s("s_mov_b32 s54, 262144")
    s("s_mov_b32 s55, 0x20000")
    late = Stream(); s = late
    s("s_lshl_b32 s35, s63, 1")
    s("s_add_u32 s35, s35, s9")
    s("s_mul_i32 s34, s7, 12")
    s("s_mul_i32 s3, s8, 6")
    s("s_add_u32 s34, s34, s3")
    s("s_lshl_b32 s34, s34, 17")
    s("s_lshl_b32 s35, s35, 12")
    s("s_add_u32 s34, s34, s35")
    s("s_add_u32 s56, s40, s34")
    s("s_addc_u32 s57, s41, 0")
    s("s_and_b32 s57, s57, 0xffff")
    s(f"s_mov_b32 s58, {5*131072 + 4096}")
    s("s_mov_b32 s59, 0x20000")
    s(f"s_mul_i32 s34, s4, {1024*1280}")
    s("s_add_u32 s92, s84, s34")
    s("s_addc_u32 s93, s85, 0")
    s("s_and_b32 s93, s93, 0xffff")
    s(f"s_mov_b32 s94, {1024*1280}")
    s("s_mov_b32 s95, 0x20000")
    s("s_mul_i32 s35, s6, 320")
    s("s_add_u32 s34, s34, s35")
    s("s_add_u32 s84, s84, s34")
    s("s_addc_u32 s85, s85, 0")
    s("s_and_b32 s85, s85, 0xffff")
    s("s_sub_u32 s86, 5242880, s34")
    s("s_mov_b32 s87, 0x20000")
    s("s_mul_i32 s34, s7, 12")
    s("s_mul_i32 s35, s60, 3")
    s("s_add_u32 s34, s34, s35")
    s("s_lshl_b32 s34, s34, 17")
    s("s_lshl_b32 s35, s4, 15")
    s("s_add_u32 s34, s34, s35")
    s("s_add_u32 s88, s40, s34")
    s("s_addc_u32 s89, s41, 0")
    s("s_and_b32 s89, s89, 0xffff")
    s(f"s_mov_b32 s90, {2*131072 + 32768}")
    s("s_mov_b32 s91, 0x20000")
    s("s_lshl_b32 s34, s7, 4")
    s("s_add_u32 s35, s34, s63")
    s("s_lshl_b32 s35, s35, 2")
    s("s_add_u32 s35, s35, s60")
    s("s_lshl_b32 s35, s35, 6")
    s(f"s_add_u32 s30, s35, {F_OFF}")
    s("s_lshl_b32 s35, s4, 2")
    s("s_add_u32 s35, s35, s34")
    s("s_lshl_b32 s35, s35, 2")
    s("s_add_u32 s35, s35, s9")
    s("s_lshl_b32 s35, s35, 6")
    s(f"s_add_u32 s31, s35, {F_OFF}")
    s("s_add_u32 s35, s34, s6")
    s("s_lshl_b32 s35, s35, 2")
    s("s_add_u32 s35, s35, s4")
    s("s_lshl_b32 s35, s35, 6")
    s(f"s_add_u32 s32, s35, {F_OFF + 65536}")
    s("s_mul_i32 s34, s60, 3072")
    s(f"s_add_u32 s33, s34, {OWN_OFF}")
    for k in range(3):
        s(f"s_add_u32 s34, s6, {k+1}")
        s("s_and_b32 s34, s34, 3")
        s(f"s_lshl_b32 s{16+2*k}, s34, 13")
        s(f"s_add_u32 s{17+2*k}, s{16+2*k}, 4096")
        s("s_lshl_b32 s34, s34, 1")
        s(f"s_lshl_b32 s{24+2*k}, 3, s34")
        s(f"s_mov_b32 s{25+2*k}, 0")
    s(f"s_mov_b32 s76, {f32bits(SCALE):#x}")
    s(f"s_mov_b32 s77, {f32bits(SCALE):#x}")
    s("s_mov_b32 s78, 0")
    if cfg.cls == 0: s("s_cmp_lt_u32 s4, 0")
    elif cfg.cls == 1: s("s_cmp_lt_u32 s4, 2")
    elif cfg.cls == 2: s("s_bitcmp0_b32 s4, 0")
    elif cfg.cls == 3: s("s_bitcmp0_b32 s62, 0")
    s(f"s_cselect_b32 s42, {cfg.laxE}, {cfg.laxL}")
    s(f"s_cselect_b32 s43, 64, {cfg.laxL2}")
    if cfg.dith:
        masks = [0] * 8; pos = 0
        for w in range(cfg.dith):
            cnt = 8 - ((w + 1) * 8) // (cfg.dith + 1)
            for c in range(cnt): masks[(pos + c) % 8] |= 2 << w
            pos += cnt
        s("s_add_u32 s34, s5, s2")
        s("s_and_b32 s34, s34, 7")
        for k in range(8):
            s(f"s_cmp_eq_u32 s34, {k}")
            s(f"s_cselect_b32 s43, {masks[k]}, s43")
    elif cfg.ramp:
        s("s_add_u32 s34, s5, s2")
        s("s_and_b32 s34, s34, 7")
        s(f"s_mul_i32 s35, s34, {cfg.ramp}")
        s("s_lshr_b32 s35, s35, 3")
        s(f"s_sub_u32 s43, {cfg.laxL2}, s35")
        if cfg.rev: s("s_sub_u32 s34, 7, s34")
        s(f"s_mul_i32 s35, s34, {cfg.ramp2}")
        s("s_lshr_b32 s35, s35, 3")
        s(f"s_sub_u32 s42, {cfg.laxL}, s35")
    s("v_mov_b32 v17, 0x3f803f80")
    if cfg.sparse1:
        s("v_cmp_eq_u32 vcc, 0, v20")
        s("s_nop 1")
        s("v_cndmask_b32 v17, 0, v17, vcc")
    for r in range(4): s(f"v_accvgpr_write_b32 a{ONES+r}, v17")
    s = pro
    if cfg.rot == 0: s("s_mov_b32 s71, 0")
    elif cfg.rot == 1: s("s_lshl_b32 s71, s5, 13")
    elif cfg.rot == 2:
        s("s_lshl_b32 s71, s2, 1")
        s("s_add_u32 s71, s71, s9")
        s("s_mul_i32 s71, s71, 0x9E3779B1")
        s("s_lshr_b32 s71, s71, 24")
        s("s_lshl_b32 s71, s71, 10")
    elif cfg.rot == 3:
        s("s_lshl_b32 s71, s5, 1")
        s("s_add_u32 s71, s71, s9")
        s("s_and_b32 s71, s71, 7")
        s("s_lshl_b32 s71, s71, 10")
    elif cfg.rot == 4:
        s("s_lshl_b32 s71, s9, 7")
        s("s_add_u32 s71, s71, s2")
        s("s_and_b32 s71, s71, 255")
        s("s_lshl_b32 s71, s71, 10")
    elif cfg.rot == 5:
        s("s_lshl_b32 s71, s5, 1")
        s("s_add_u32 s71, s71, s9")
        s("s_lshl_b32 s71, s71, 12")
    s("s_add_u32 s72, s71, 4096")
    for r, v in zip((80, 81, 82), WSL): s(f"s_mov_b32 s{r}, {v}")
    for r, v in zip((66, 67, 83), XSL): s(f"s_mov_b32 s{r}, {v}")
    s("v_add_u32 v14, s66, v28")
    s("v_add_u32 v30, s80, v26")
    s("v_add_u32 v31, s80, v27")
    s("s_add_u32 s73, s82, s69")
    s("s_add_u32 s74, s83, s70")
    s(f"s_waitcnt vmcnt({10 + (0, 4, 2)[cfg.up]})")
    stamp(s, cfg, 1)
    pro.ins = pad_hazards(pro.ins)

    def kvdma(m0base_sreg, base):
        if cfg.fine:
            return [(f"s_add_u32 m0, {m0base_sreg}, {base + CH*c}\ns_add_u32 s71, s71, 1024\ns_and_b32 s71, s71, 0x3ffff",
                     f"buffer_load_dwordx4 v0, s[52:55], s71 offen {cfg.nt_kv} lds") for c in range(8)]
        return [(f"s_add_u32 m0, {m0base_sreg}, {base + CH*c - 1024*(c&3)}",
                 f"buffer_load_dwordx4 v0, s[52:55], s{71 + (c>>2)} offen offset:{1024*(c&3)} {cfg.nt_kv} lds") for c in range(8)]
    kvadv = ["s_add_u32 s71, s71, 8192", "s_and_b32 s71, s71, 0x3ffff", "s_add_u32 s72, s71, 4096"]
    if cfg.fine: kvadv = ["", "", ""]

    def wodma(sreg, base):
        return [(f"s_add_u32 m0, {sreg}, {base + 1024*t}", f"buffer_load_dwordx4 v{4+t}, s[84:87], s64 offen {cfg.nt_wo} lds") for t in range(5)]
    WOADV = ["s_add_u32 s64, s64, 81920", "s_cmp_eq_u32 s64, 1310720", "s_cselect_b32 s64, 0, s64"]

    def kreads(par, off):
        return [f"ds_read_b128 {ar(KF(par, f))}, v2 offset:{off + 512*(f>>2) + 64*(f&3)}" for f in range(8)]
    def vreads(par, off):
        return [f"ds_read_b64_tr_b16 {ar(VF(par, dt) + 2*w, 2)}, v3 offset:{off + 512*w + 32*dt}" for dt in range(8) for w in range(2)]
    def qper(par, dmas, post, endwait, reads=True, mf=True, need=None, side=(), c0=False):
        mfl = []
        if mf:
            for dt in range(8):
                for i in range(6):
                    a = OACC(i, dt)
                    mfl.append(f"{MF} {vr(a)}, {ar(QA(par^1, dt))}, {ar(QB(par^1, i))}, {'0' if c0 else vr(a)}")
        rl = []
        if reads:
            for i in range(6):
                rl.append([f"ds_read_b128 {ar(QB(par, i))}, v14 offset:{2048*i}"])
            for dt in range(8):
                for w in range(2):
                    rl.append([f"ds_read_b64_tr_b16 {ar(QA(par, dt) + 2*w, 2)}, v{30 + (dt & 1)} offset:{512*w + 32*dt}"])
        gaps = {}
        dch = dma_chain(list(dmas or []))
        if dch: spread(gaps, dch, 0, 38, cap=3)
        if rl: spread(gaps, rl, 0, 34)
        assert not gaps or max(gaps) < 38
        for n, t in enumerate(post):
            gaps.setdefault(38 + n // 2, []).append(t)
        for g in gaps: gaps[g] = [t for t in gaps[g] if t]
        if side: spread(gaps, [[t] for t in side], 0, 36 if len(side) < 20 else 44)
        s = Stream()
        s("s_barrier", need if need is not None else ("s[48:51]:4 s[44:47]:6" if par == 0 else "s[48:51]:4 s[44:47]:9"))
        if mf:
            assert max(gaps) <= 47, max(gaps)
            s.extend(interleave(mfl, gaps))
        else:
            for k in sorted(gaps):
                for t in gaps[k]: s(t)
        if endwait: s(endwait)
        return s
    def upd(par, dma=True):
        l = []
        if dma: l += WADV + ["s_add_u32 s73, s80, s69"]
        l += ["s_mov_b32 s10, s80", "s_mov_b32 s80, s81", "s_mov_b32 s81, s82", "s_mov_b32 s82, s10",
              "v_add_u32 v30, s80, v26", "v_add_u32 v31, s80, v27"]
        if par == 0:
            l += ["v_add_u32 v14, s66, v29"]
        else:
            if dma: l += XADV + ["s_add_u32 s74, s66, s70"]
            l += ["s_mov_b32 s10, s66", "s_mov_b32 s66, s67", "s_mov_b32 s67, s83", "s_mov_b32 s83, s10"]
            l.append("v_add_u32 v14, s66, v28")
        return l
    def qd(par): return xdma("s74", 0, range(3*par, 3*par+3)) + wdma("s73", 0)
    ADV = "s_add_u32 s71, s71, 1024\ns_and_b32 s71, s71, 0x3ffff"
    kvp = kvdma("s75", 0) + [(ADV, f"buffer_load_dwordx4 {ar(4*n)}, v0, s[52:55], s71 offen {cfg.nt_kv}") for n in range(24)]
    wov = ["s_mul_i32 s10, s60, 320", "v_add_u32 v9, s10, v1"]
    for t in range(5):
        wov += [f"v_add_u32 v22, {64*t}, v9",
                "v_mul_u32_u24 v23, 3277, v22",
                "v_lshrrev_b32 v23, 16, v23",
                "v_mul_u32_u24 v24, 20, v23",
                "v_sub_u32 v24, v22, v24",
                "v_bfe_u32 v22, v23, 2, 1",
                "v_lshlrev_b32 v22, 1, v22",
                "v_xor_b32 v24, v24, v22",
                "v_mul_u32_u24 v23, 1280, v23",
                f"v_lshl_add_u32 v{4+t}, v24, 4, v23"]
    def flush(t):
        return [("", f"ds_write_b128 v25, {ar(32*(t-1) + 4*c)} offset:{CH*c}") for c in range(8)]
    tw2 = [("s_lshl_b32 s11, s5, 2\ns_add_u32 s11, s11, s60\ns_mul_i32 s11, s11, 10240\nv_mul_u32_u24 v17, 160, v1", f"buffer_load_dword a252, v17, s[92:95], s11 offen {cfg.nt_tw}"),
           ("", f"buffer_load_dword a253, v17, s[92:95], s11 offen offset:80 {cfg.nt_tw}")] if cfg.warm_wo == 2 else []
    if cfg.preflag:
        tw2 = tw2 + [("v_mov_b32 v32, s30\nv_mov_b32 v34, 0\nv_mov_b32 v35, 0\nv_add_u32 v33, 65536, v32", "global_store_dwordx2 v32, v[34:35], s[40:41] sc1"),
                     ("", "global_store_dwordx2 v33, v[34:35], s[40:41] sc1")]
    nper = [0] * 21
    p = cfg.kvp0; left = 32
    while left:
        nper[p] += 1; left -= 1; p += 1
        if p > cfg.kvp1: p = cfg.kvp0
    if cfg.kvb == 1:
        nper = [0] * 21
        for q in (4, 8, 12, 16): nper[q] = 8
    if cfg.kvb == 2:
        nper = [0] * 21
        for q in (6, 11, 16): nper[q] = 11
        nper[16] = 10
    if cfg.kvb == 3:
        nper = [0] * 21
        for q in (2, 4, 6, 8, 10, 12, 14, 16): nper[q] = 4
    lt = []
    for x in late.ins:
        if x.op in ("s_addc_u32", "s_cselect_b32"): lt[-1] += "\n" + x.text
        else: lt.append(x.text)
    lateg = [lt[k:k+14] for k in range(0, len(lt), 14)]
    q0 = None; qloop = Stream(); qtail = Stream()
    prev_extra = (0, 4, 2)[cfg.up]; pos = 0
    wov += ["v_lshrrev_b32 v22, 2, v1", "v_mul_u32_u24 v23, 320, v22", "v_lshl_add_u32 v23, v20, 3, v23", "v_bfe_u32 v22, v1, 4, 1",
            "v_lshl_add_u32 v9, v22, 5, v23", "v_xor_b32 v22, 1, v22", "v_lshl_add_u32 v10, v22, 5, v23",
            "v_add_u32 v11, 131072, v0", "v_add_u32 v12, 262144, v0", "s_mul_i32 s70, s60, 5120"]
    for sidx in range(20):
        par = sidx & 1
        own = qd(par) if sidx <= 15 else (wdma("s73", 0) if sidx <= 17 else [])
        ex_ = kvp[pos:pos + nper[sidx]]; pos += nper[sidx]
        if sidx == cfg.upp: ex_ = ex_ + upb
        dm = own + ex_
        post = upd(par, sidx <= 16) if sidx <= 18 else []
        need = None
        nvm = len(dm) + prev_extra
        if sidx == 17:
            need = "s[48:51]:4 s[44:47]:6"
            post = post + [f"s_add_u32 s10, s75, {SLOT}", "v_add_u32 v25, s10, v0"]
            nvm = min(nvm, 4 + len(ex_) + prev_extra)
        if sidx >= 18:
            need = "s[48:51]:4 s[44:47]:0" if sidx == 18 else "s[48:51]:0 s[44:47]:0"
            dm = flush(sidx - 17) + (tw2 if sidx == cfg.twp else [])
            post = post + [f"v_add_u32 v25, {SLOT}, v25"]
        endw = f"s_waitcnt vmcnt({nvm}) lgkmcnt(0)"
        if sidx == 17: endw = "WAIT17"
        if sidx == 18: endw = f"s_waitcnt vmcnt({len(tw2) if cfg.twp == 18 else 0}) lgkmcnt(0)"
        if sidx == 19: endw = "s_waitcnt lgkmcnt(0)"
        if sidx == 20: endw = "s_waitcnt lgkmcnt(0)"
        if endw == "WAIT17":
            later = 32 - 16 + 4 * sum(1 for q in range(21) if q <= 17 and sum(nper[:q]) >= 16) + 3 * sum(1 for q in range(16) if sum(nper[:q]) >= 16)
            endw = f"s_waitcnt vmcnt({min(nvm, later)}) lgkmcnt(0)"
        if cfg.x_nowait and sidx < 17: endw = "s_waitcnt vmcnt(40) lgkmcnt(0)"
        if cfg.x_nodma and sidx < 18: dm = []
        side = {18: wov[:31], 19: wov[31:]}.get(sidx, [])
        if 2 <= sidx < 2 + len(lateg): side = lateg[sidx - 2]
        if cfg.wb:
            dm = own if sidx < 18 else dm
            b0 = cfg.wb
            if sidx < 18: endw = None
        per = qper(par, dm, post, endw, reads=True, mf=(sidx > 0), need=need, side=side, c0=(sidx == 1))
        if cfg.wb and sidx < 18:
            def bw(p): return (p - b0) % 4 if b0 <= p < b0 + 16 else None
            if bw(sidx) is not None:
                blk = Stream()
                blk(f"s_cmp_lg_u32 s60, {bw(sidx)}"); blk(f"s_cbranch_scc1 L_NB{sidx}")
                t_ = (sidx - b0) // 4
                for m_, d_ in kvp[8*t_: 8*t_ + 8]: blk(m_, f"only{bw(sidx)}"); blk(d_, f"only{bw(sidx)}")
                blk(f"L_NB{sidx}:")
                k_ = max(k for k, x in enumerate(per.ins) if x.kind == "dma") + 1
                while per.ins[k_ - 1].kind != "mfma" and k_ < len(per.ins): k_ += 1
                per.ins[k_:k_] = blk.ins
            lax_ = {x for x in (bw(sidx), bw(sidx - 1)) if x is not None}
            n_ = len(own)
            if lax_:
                mask = sum(1 << x for x in lax_)
                per(f"s_bitcmp1_b32 {mask}, s60"); per(f"s_waitcnt vmcnt({n_ + 8}) lgkmcnt(0)"); per(f"s_cbranch_scc1 L_NW{sidx}")
                per(f"s_waitcnt vmcnt({n_})", f"not{mask}"); per(f"L_NW{sidx}:")
            else: per(f"s_waitcnt vmcnt({n_}) lgkmcnt(0)")
        if sidx == 0:
            q0 = per; q0.ins = pad_hazards(q0.ins)
        elif sidx < 15: qloop.extend(per)
        else:
            if sidx == 15: stamp(qtail, cfg, 15)
            qtail.extend(per)
        prev_extra = len(ex_)
    stamp(qtail, cfg, 2)
    def qepi(i):
        l = []
        for kk in range(4):
            b = OACC(i, 2*kk)
            if cfg.pkq:
                for p in range(4): l.append(f"v_pk_mul_f32 {vr(b+2*p,2)}, {vr(b+2*p,2)}, s[76:77]")
            else:
                for p in range(8): l.append(f"v_mul_f32 v{b+p}, s76, v{b+p}")
        for kk in range(4):
            b = OACC(i, 2*kk)
            for p in range(4): l.append(f"v_cvt_pk_bf16_f32 v{b+p}, v{b+2*p}, v{b+2*p+1}")
        for kk in range(4):
            b = OACC(i, 2*kk)
            l += [f"v_permlane16_swap_b32 v{b}, v{b+2}", f"v_permlane16_swap_b32 v{b+1}, v{b+3}"]
        for kk in range(4):
            b = OACC(i, 2*kk)
            for p in range(4): l.append(f"v_accvgpr_write_b32 a{QF(i,kk)+p}, v{b+p}")
        return l
    def redu(i):
        n = NEGM(i)
        return [f"v_max3_f32 v{n}, v{n}, v{n+1}, v{n+2}", f"v_max_f32 v{n}, v{n}, v{n+3}",
                f"v_mov_b32 v{n+1}, v{n}", f"v_permlane16_swap_b32 v{n}, v{n+1}", f"v_max_f32 v{n}, v{n}, v{n+1}",
                f"v_mov_b32 v{n+1}, v{n}", f"v_permlane32_swap_b32 v{n}, v{n+1}", f"v_max_f32 v{n}, v{n}, v{n+1}",
                f"v_sub_f32 v{n+3}, 0, v{n}", f"v_sub_f32 v{n+2}, 0, v{n}", f"v_sub_f32 v{n+1}, 0, v{n}", f"v_sub_f32 v{n}, 0, v{n}"]
    def M(i): return [f"{MF} {vr(OACC(i, dt))}, {ar(QA(1, dt))}, {ar(QB(1, i))}, {vr(OACC(i, dt))}" for dt in range(8)]
    def Rm(i): return [f"{MF} {vr(NEGM(i))}, {ar(KF(0, kk))}, {ar(QF(i, kk))}, {'0' if kk == 0 else vr(NEGM(i))}" for kk in range(4)]
    def merge(valu, other):
        out = []; n = len(valu); m = len(other); k = 0
        for x, t in enumerate(valu):
            while k < m and k * n <= x * m: out.append(other[k]); k += 1
            out.append(t)
        return out + other[k:]
    INIT = [f"s_add_u32 s73, s75, {2*SLOT}", "s_mov_b32 s72, s75", f"s_mov_b32 s74, {2*SLOT}", f"s_mov_b32 s68, {cfg.ltrips - 1}"]
    qe = Stream()
    qe("s_barrier")
    lds = [d for _, d in flush(3)] + kreads(0, 0) + vreads(0, 0)
    for t in merge(lds, M(0) + M(1)): qe(t)
    for t in INIT: qe(t)
    for t in merge(qepi(0), M(2)): qe(t)
    qe("s_waitcnt lgkmcnt(0)")
    for t in merge(qepi(1), M(3) + Rm(0)): qe(t)
    for t in merge(merge(qepi(2), [""] * 12 + redu(0)), M(4) + Rm(1)): qe(t)
    for t in merge(merge(qepi(3), [""] * 12 + redu(1)), M(5) + Rm(2)): qe(t)
    for t in merge(merge(qepi(4), [""] * 12 + redu(2)), Rm(3) + [""] * 4): qe(t)
    for t in merge(merge(qepi(5), redu(3)), Rm(4) + [""] * 4): qe(t)
    for t in Rm(5) + redu(4) + redu(5): qe(t)
    stamp(qe, cfg, 3)
    qe.ins = pad_hazards(qe.ins, qtail.ins[-16:])
    st = Stream()
    for t in INIT: st(t)
    st("s_barrier", "s[52:55]:0")
    for t in kreads(0, 0) + vreads(0, 0): st(t)
    for i in R6:
        for t in redu(i): st(t)
    st("s_waitcnt lgkmcnt(0)")
    st("s_branch L_W0")
    st.ins = pad_hazards(st.ins)

    def E(u, r):
        x = SREG(u & 1, r >> 2) + (r & 3)
        return f"v_exp_f32 v{x}, v{x}"
    def C(u, c):
        x = SREG(u & 1, 0) + 2 * c
        return f"v_cvt_pk_bf16_f32 v{PREG(u & 1) + c}, v{x}, v{x+1}"
    def QK(u, j):
        i = u % 6; l = []
        for kt in range(2):
            for kk in range(4):
                d = vr(SREG(u & 1, kt))
                c = vr(NEGM(i)) if kk == 0 else d
                l.append(f"{MF} {d}, {ar(KF(j & 1, 4*kt + kk))}, {ar(QF(i, kk))}, {c}")
        return l
    def PV(u):
        if u < 0: return [None] * 9
        i = u % 6; j = u // 6; l = []
        for dt in range(8):
            d = vr(OACC(i, dt))
            l.append(f"{MF} {d}, {ar(VF(j & 1, dt))}, {vr(PREG(u & 1))}, {'0' if j == 0 else d}")
        d = ar(LACC(i))
        l.append(f"{MF} {d}, {ar(ONES)}, {vr(PREG(u & 1))}, {'0' if j == 0 else d}")
        return l

    RCP = [40, 44, 48, 52, 42, 46]
    def epi(i):
        r = RCP[i]
        l = [f"v_accvgpr_read_b32 v{r}, a{LACC(i)}",
             f"v_cmp_nge_f32 vcc, s15, v{r}",
             f"v_rcp_f32 v{r}, v{r}",
             "s_nop 0",
             "s_or_b64 s[12:13], s[12:13], vcc"]
        for dtp in range(4):
            b = OACC(i, 2*dtp)
            if cfg.pke > i:
                for p in range(4): l.append(f"v_mul_f32 v{b+2*p}, v{r}, v{b+2*p}\nv_mul_f32 v{b+2*p+1}, v{r}, v{b+2*p+1}")
            else:
                for p in range(4): l.append(f"v_pk_mul_f32 {vr(b+2*p,2)}, {vr(b+2*p,2)}, {vr(r,2)} op_sel_hi:[1,0]")
            for p in range(4): l.append(f"v_cvt_pk_bf16_f32 v{b+p}, v{b+2*p}, v{b+2*p+1}")
            l.append(f"buffer_store_dwordx4 {vr(b)}, v0, s[56:59], s14 offen offset:{1024*dtp} {cfg.ost}")
            l.append(f"ds_write_b128 v13, {vr(b)} offset:{12288*dtp + 1024*i}")
        l.append("s_add_u32 s14, s14, 131072")
        return l
    def fill(gaps, base, n, items):
        for k, t in enumerate(items): gaps.setdefault(base + (k * n) // len(items), []).append(t)

    LT = cfg.ltrips
    NCH = [cfg.n01, cfg.n01] + [8] * (2 * LT)
    rem = 224 - sum(NCH); ntl = 29 - len(NCH)
    last29 = min(cfg.use29 - 1, rem) if cfg.use29 else 0
    rem -= last29
    for k in range(ntl): x = min(8, -(-rem // (ntl - k))) if cfg.use29 else min(8, rem); NCH.append(x); rem -= x
    NCH += [last29, 0, 0]
    assert sum(NCH) == 224 and len(NCH) == 32, NCH
    G0 = [32 + sum(NCH[:j]) for j in range(33)]
    def allowed(j): return max(0, G0[j + 1] - 8 * min(32, j + 3))
    for j in range(30): assert G0[j + 1] >= 8 * min(32, j + 3) and G0[j + 1] <= 8 * (j + 5), (j, NCH)
    def window(j, head=(), endw=None, inloop=False, reads=True, extra=(), last=False):
        par = j & 1
        need = f"s[52:55]:{allowed(j - 1) if j else 0}"
        mfl = []; gaps = {}
        def put(i, k, t): gaps.setdefault(17*i + k, []).append(t)
        for i in range(6):
            u = 6*j + i
            mfl += QK(u, j) + PV(u - 2)
            for n, k in enumerate((9, 11, 13, 15)): put(i, k, E(u, n))
            if u >= 1:
                for n, k in enumerate((0, 2, 4, 6)): put(i, k, E(u-1, 4+n))
                put(i, 1, C(u-1, 0)); put(i, 1, C(u-1, 1)); put(i, 5, C(u-1, 2)); put(i, 8, C(u-1, 3))
        off = SLOT if par == 0 else 0
        for t in head: put(0, 3, t)
        if reads:
            kr = kreads(par ^ 1, off); vrd = vreads(par ^ 1, off)
            kpos = [(0, 7), (0, 12), (1, 3), (1, 7)]
            for n, (i, k) in enumerate(kpos):
                put(i, k, kr[2*n]); put(i, k, kr[2*n+1])
            vpos = [(i, k) for i in (2, 3, 4, 5) for k in (3, 7)]
            for n, (i, k) in enumerate(vpos):
                put(i, k, vrd[2*n]); put(i, k, vrd[2*n+1])
        n = NCH[j]; g0 = G0[j]
        if n:
            dall = [(0, 10), (0, 16), (1, 12), (2, 10), (3, 10), (3, 16), (4, 12), (5, 10)]
            mall = [(0, 8), (0, 10), (0, 16), (1, 12), (2, 10), (3, 10), (3, 16), (4, 12)]
            aall = [(0, 3), (0, 14), (1, 10), (1, 14), (2, 14), (3, 12), (4, 10), (4, 14)]
            if cfg.d3 == 1:
                dall[3] = (2, 16); mall[4] = (2, 16); aall[4] = (3, 5)
            if cfg.even:
                dall = [(0, 10), (1, 5), (1, 16), (2, 14), (3, 10), (4, 5), (4, 16), (5, 12)]
                mall = [(0, 8), (0, 10), (1, 8), (1, 16), (2, 14), (3, 10), (4, 8), (4, 16)]
                aall = [(0, 3), (0, 14), (1, 10), (2, 10), (2, 16), (3, 14), (4, 10), (5, 10)]
            if cfg.burst:
                a_, b_ = cfg.burst - 1, cfg.burst + 2
                dall = [(a_, 10), (a_, 12), (a_, 14), (a_, 16), (b_, 10), (b_, 12), (b_, 14), (b_, 16)]
                mall = [(a_, 8), (a_, 10), (a_, 12), (a_, 14), (b_, 8), (b_, 10), (b_, 12), (b_, 14)]
                aall = [(a_, 5), (a_, 11), (a_, 13), (a_, 15), (b_, 5), (b_, 11), (b_, 13), (b_, 15)]
            sel = list(range(n)) if j == 29 else [(k * 8) // n for k in range(n)]
            items = []
            for c, k in enumerate(sel):
                g = g0 + c; tile = g >> 3
                if not inloop: m = f"s_add_u32 m0, s75, {SLOT * (tile & 3) + CH * (g & 7)}"
                elif (tile >> 1) % 2 == (j >> 1) % 2: m = f"s_add_u32 m0, s73, {SLOT * (tile & 1) + CH * (g & 7)}"
                else: m = f"s_add_u32 m0, s72, {SLOT * (tile & 1) + CH * (g & 7)}"
                items.append((k, m))
            for k, m in items:
                if cfg.slide: put(*dall[k], f"s_waitcnt vmcnt({cfg.slide + (1 if (cfg.smix >> k) & 1 else 0)})")
                put(*dall[k], f"buffer_load_dwordx4 v0, s[52:55], s71 offen {cfg.nt_kv} lds")
            for k, m in items:
                put(*mall[k], m)
                put(*aall[k], "s_add_u32 s71, s71, 1024"); put(*aall[k], "s_and_b32 s71, s71, 0x3ffff")
        if inloop and par == 1:
            put(5, 16, "s_mov_b32 s72, s73"); put(5, 16, "s_sub_u32 s73, s73, s74")
        if par == 0:
            put(2, 12, "v_add_u32 v2, s74, v2")
            put(5, 14, "v_add_u32 v3, s74, v3")
        else:
            put(5, 14, "s_sub_u32 s74, 0, s74")
        fpos = [(i, k) for i in range(6) for k in (10, 12, 14, 16)]
        fpos = [x for x in fpos if x not in ((0, 12), (2, 12), (5, 14)) and not gaps.get(17*x[0] + x[1])]
        assert len(extra) <= len(fpos)
        for grp, (i, k) in zip(extra, fpos):
            for t in grp: put(i, k, t)
        if last:
            u = 6*j + 5
            mfl += PV(u - 1) + PV(u)
            b = 102
            for k, t in ((0, E(u,4)), (1, C(u,0)), (1, C(u,1)), (2, E(u,5)), (3, E(u,6)), (4, C(u,2)), (5, E(u,7)), (7, C(u,3))):
                gaps.setdefault(b + k, []).append(t)
            fill(gaps, 17*3 + 4, 17, epi(0))
            fill(gaps, 17*4 + 4, 17, epi(1))
            fill(gaps, 17*5 + 4, 17, epi(2))
            fill(gaps, b + 4, 9, epi(3))
            fill(gaps, b + 13, 5, epi(4)[:16])
        s = Stream()
        s("s_barrier", need)
        s.extend(interleave(mfl, gaps))
        if endw != "": s(endw or f"s_waitcnt vmcnt({min(cfg.kvwt if j < cfg.freej else 16, allowed(j))}) lgkmcnt(0)")
        return s
    w0 = Stream()
    w0("L_W0:")
    w0.extend(window(0, endw=f"s_waitcnt vmcnt({cfg.kvw0}) lgkmcnt(0)"))
    w0.extend(window(1, endw=f"s_waitcnt vmcnt({cfg.kvw1}) lgkmcnt(0)"))
    w0.ins = pad_hazards(w0.ins, qe.ins[-16:])
    loop = Stream()
    loop("L_LOOP:")
    if cfg.lax:
        for jj, lb in ((2, "L_LX0"), (3, "L_LX1")):
            loop.extend(window(jj, endw="", inloop=True, extra=([["s_lshr_b32 s43, s43, 1"]] if cfg.dith else [])))
            if cfg.dith:
                loop("s_bitcmp0_b32 s43, 0")
                loop(f"s_waitcnt vmcnt({cfg.kvwE}) lgkmcnt(0)")
                loop(f"s_cbranch_scc1 {lb}")
                loop(f"s_waitcnt vmcnt({cfg.kvw})", "pace")
            else:
                loop("s_cmp_lt_u32 s68, s42")
                loop(f"s_waitcnt vmcnt({min(cfg.kvw3, allowed(2))}) lgkmcnt(0)")
                loop(f"s_cbranch_scc1 {lb}")
                loop("s_cmp_lt_u32 s68, s43" if not cfg.early else f"s_cmp_ge_u32 s68, {cfg.ltrips - cfg.early}")
                loop(f"s_waitcnt vmcnt({cfg.kvwE})", "pace")
                loop(f"s_cbranch_scc1 {lb}")
                loop(f"s_waitcnt vmcnt({cfg.kvw})", "pace")
            loop(f"{lb}:")
    else:
        loop.extend(window(2)); loop.extend(window(3))
    if cfg.stamps == 2:
        loop("s_memrealtime s[98:99]")
        loop("s_sub_u32 m0, 28, s68")
        loop("s_waitcnt lgkmcnt(0)")
        loop("v_writelane_b32 v15, s98, m0")
    loop("s_sub_u32 s68, s68, 1")
    loop("s_cbranch_scc0 L_LOOP")
    tail = Stream()
    stamp(tail, cfg, 12)
    cw = [["s_lshl_b32 s10, s5, 2", "s_add_u32 s10, s10, s60"], ["s_lshl_b32 s10, s10, 9", "v_and_b32 v13, 3, v1"],
          ["v_lshl_add_u32 v13, v13, 7, s10"], ["global_load_dword a252, v13, s[96:97]"]] if cfg.rewarm else []
    for jj in range(2 * LT + 2, 29): tail.extend(window(jj, extra=(cw if jj == 2 * LT + 2 else [])))
    wx = [["s_mul_i32 s64, s6, 327680"]]
    for st_ in range(3):
        ch = dma_chain(wodma("s70", WOR[st_]))
        ch[-1] = ch[-1] + WOADV
        wx[-1] = wx[-1] + ch[0]; ch = ch[1:]
        wx += ch
    ex = [[f"s_mov_b32 s15, {f32bits(float('inf') if (cfg.x_nowait or cfg.x_nodma) else (THR if not cfg.force_fb else 1.0)):#x}", "s_mov_b64 s[12:13], 0"],
          ["s_mov_b32 s14, 0", "s_mul_i32 s10, s9, 49152"],
          ["s_mul_i32 s11, s8, 6144", "s_add_u32 s10, s10, s11"],
          [f"s_add_u32 s10, s10, {OWN_OFF}", "v_add_u32 v13, s10, v0"]]
    if cfg.wo_win == 29:
        assert NCH[29] == 0
        tail.extend(window(29, extra=wx, endw="s_waitcnt vmcnt(15) lgkmcnt(0)"))
        tail.extend(window(30, extra=ex, endw="s_waitcnt lgkmcnt(0)"))
    else:
        tail.extend(window(29, extra=ex))
        tail.extend(window(30, extra=wx, endw="s_waitcnt lgkmcnt(0)"))
    stamp(tail, cfg, 13)
    tail.extend(window(31, reads=False, last=True, endw=""))
    stamp(tail, cfg, 4)
    tail.ins = pad_hazards(tail.ins, loop.ins[-16:])
    ep = Stream()
    ep("s_lshl_b32 s10, s7, 3")
    ep("v_mov_b32 v16, s10")
    ep("global_load_dwordx2 v[56:57], v16, s[38:39] sc1")
    ep("v_mov_b32 v58, s30")
    ep("v_add_u32 v60, 65536, v58")
    ep("v_and_b32 v59, 7, v1")
    ep("v_lshl_add_u32 v59, v59, 7, s31")
    ep("v_and_b32 v61, 3, v1")
    ep("v_max_u32 v61, 1, v61")
    ep("v_add_u32 v61, s4, v61")
    ep("v_and_b32 v61, 3, v61")
    ep("v_lshl_add_u32 v61, v61, 10, s32")
    ep("v_add_u32 v62, s33, v0")
    ep("v_add_u32 v63, 49152, v62")
    for t in epi(4)[16:] + epi(5): ep(t)
    ep("s_cmp_lg_u64 s[12:13], 0")
    ep("s_cselect_b32 s10, 1, 0")
    ep("v_mov_b32 v16, s10")
    ep("s_lshl_b32 s10, s60, 2")
    ep(f"s_add_u32 s10, s10, {FLAG_OFF}")
    ep("v_mov_b32 v17, s10")
    ep(f"v_mov_b32 v18, {FLAG_OFF}")
    ep("ds_write_b32 v17, v16")
    ep("global_load_dwordx2 v[228:229], v59, s[40:41] sc1")
    ep("s_waitcnt vmcnt(26) lgkmcnt(0)")
    ep("s_barrier", "s[84:87]:0")
    ep("ds_read_b128 v[20:23], v18")
    for nt in range(10):
        for w in range(2): ep(f"ds_read_b64_tr_b16 {vr(TA(0, nt) + 2*w, 2)}, v{9 + (nt & 1)} offset:{WOR[0] + 5120*w + 32*(nt & ~1)}")
    own = [f"ds_read_b128 {ar(TOWN(u, i))}, v{62 + (u >> 2)} offset:{12288*(u & 3) + 1024*i}" for u in range(8) for i in range(3)]
    for t in own[:6]: ep(t)
    ep("s_waitcnt lgkmcnt(15)")
    ep("v_or_b32 v20, v20, v21")
    ep("v_or3_b32 v20, v20, v22, v23")
    ep("v_readfirstlane_b32 s10, v20")
    ep("s_andn2_b32 s10, s10, s78")
    if cfg.x_nowait or cfg.x_nodma: ep("s_mov_b32 s10, 0")
    ep("s_cmp_lg_u32 s10, 0")
    ep("s_cbranch_scc1 L_FALLBACK")
    stamp(ep, cfg, 5)
    def signal(s, w):
        s(f"s_waitcnt vmcnt({w})")
        s(f"s_mov_b32 s79, {SPIN_MAX}")
        s("L_TAG:")
        s("v_readfirstlane_b32 s10, v56")
        s("s_nop 0")
        s("s_cmp_lg_u32 s10, 0")
        s("s_cbranch_scc1 L_TAGOK")
        s("s_lshl_b32 s10, s7, 3")
        s("v_mov_b32 v230, s10")
        s("s_sleep 2")
        s("s_sub_u32 s79, s79, 1")
        s("global_load_dwordx2 v[56:57], v230, s[38:39] sc1")
        s("s_waitcnt vmcnt(0)", "spin")
        s("s_cbranch_scc0 L_TAG")
        s("L_TAGOK:")
        s("global_store_dwordx2 v58, v[56:57], s[40:41] sc1")
    if cfg.sigp < 0: signal(ep, 1)
    ep("s_waitcnt lgkmcnt(0)")
    stamp(ep, cfg, 6)
    ep.ins = pad_hazards(ep.ins, tail.ins[-16:])

    def poll(s, lbl, vaddr, first_issued):
        s(f"s_mov_b32 s79, {SPIN_MAX}")
        if first_issued: s(f"s_branch {lbl}_C")
        s(f"{lbl}:")
        s(f"global_load_dwordx2 v[228:229], {vaddr}, s[40:41] sc1")
        s(f"{lbl}_C:")
        s("s_waitcnt vmcnt(0)")
        s("v_cmp_ne_u64 vcc, v[228:229], v[56:57]")
        s("s_sub_u32 s79, s79, 1")
        s(f"s_cbranch_scc1 {lbl}_OK")
        s("s_cmp_lg_u64 vcc, 0")
        s(f"s_cbranch_scc1 {lbl}")
        s(f"{lbl}_OK:")
    def OB(p, i):
        t, u = p >> 3, p & 7
        return (96 if t % 2 == 0 else 0) + 12 * u + 4 * i
    def oload(p, i):
        t, u = p >> 3, p & 7
        return f"buffer_load_dwordx4 {ar(OB(p, i))}, v{(0, 11, 12)[i]}, s[88:91], s{16 + 2*(t-1) + (u >> 2)} offen offset:{1024*(u & 3)} {cfg.old}"
    def treads2(p):
        st_ = p >> 1
        return [f"ds_read_b64_tr_b16 {vr(TA(p & 1, nt) + 2*w, 2)}, v{9 + (nt & 1)} offset:{WOR[st_ % 3] + 10240*(p & 1) + 5120*w + 32*(nt & ~1)}"
                for nt in range(10) for w in range(2)]
    FLD = "global_load_dwordx2 v[228:229], v59, s[40:41] sc1"
    def tper(p, items, pre=()):
        mfl = []
        for nt in range(10):
            for i in range(3):
                a = vr(TACC(i, nt))
                mfl.append(f"{MF} {a}, {vr(TA(p & 1, nt))}, {ar(OB(p, i))}, {'0' if p == 0 else a}")
        gaps = {}; s = Stream(); tags = []; grp = []
        if p & 1:
            s("s_barrier", "s[84:87]:5" if p <= 27 else "s[84:87]:0")
            stg = (p + 1) // 2 + 2
            if stg <= 15:
                ch = dma_chain(wodma("s70", WOR[stg % 3])); ch[-1] = ch[-1] + [WOADV[0]]
                grp += ch + [WOADV[1:]]; tags += [("w", stg)] * 5
        for tg_, t in items:
            grp.append([t])
            if tg_ is not None: tags.append(tg_)
        for t in pre: s(t)
        if grp: spread(gaps, grp, 0, 27, cap=2)
        spread(gaps, [[t] for t in treads2(p + 1)], 0, 24, cap=2)
        assert max(gaps, default=0) <= 29, max(gaps)
        s.extend(interleave(mfl, gaps))
        return s, tags
    def need_after(p):
        n = [("o", p + 1)]
        if p % 2 == 0: n.append(("w", p // 2 + 1))
        return n
    def minwait(q, needs):
        idx = [k for k, x in enumerate(q) if x in needs]
        return (len(q) - 1 - idx[-1]) if idx else None
    def check_partner(s, lbl, k):
        s(f"s_and_b64 s[10:11], s[22:23], s[{24 + 2*k}:{25 + 2*k}]")
        s(f"s_cbranch_scc0 {lbl}_OK")
        s(f"s_mov_b32 s79, {SPIN_MAX}")
        s(f"{lbl}:")
        s(FLD)
        s("s_waitcnt vmcnt(0)", "spin")
        s("v_cmp_ne_u64 s[22:23], v[228:229], v[56:57]")
        s("s_sub_u32 s79, s79, 1")
        s(f"s_cbranch_scc1 {lbl}_OK")
        s(f"s_and_b64 s[10:11], s[22:23], s[{24 + 2*k}:{25 + 2*k}]")
        s(f"s_cbranch_scc1 {lbl}")
        s(f"{lbl}_OK:")
    allo = [(("o", p), oload(p, i)) for p in range(8, 32) for i in range(3)]
    when = []
    for n in range(72):
        p = 8 + n // 3
        when.append(max(cfg.pollp + (n * 10) // cfg.orate, p - 15 if p >= 16 else 0, 8 if p >= 16 else 0))
    n0 = sum(1 for x in when if x < 8)
    p1 = allo[:n0]
    def trip0(mode, q):
        s = Stream(); q = list(q)
        fast = mode == "fast"
        first = cfg.dp if fast else cfg.pollp
        nsp = 8 - first - (1 if fast else 0)
        for u in (range(cfg.dp) if mode == "pre" else range(cfg.dp, 8)):
            items = []
            if u < 3: items += [(None, t) for t in own[6 + 6*u: 12 + 6*u]]
            if mode == "slow" and u == cfg.fldp: items.append((("f", 1), FLD))
            pre = Stream()
            if mode == "slow" and u == cfg.pollp:
                w = minwait(q, [('f', 1)])
                if w is not None: pre(f"s_waitcnt vmcnt({w})")
                pre("v_cmp_ne_u64 s[22:23], v[228:229], v[56:57]")
                pre("s_nop 0")
                check_partner(pre, "L_PA", 0)
                stamp(pre, cfg, 7)
            if mode != "pre" and first <= u < first + nsp:
                k = u - first
                items += p1[(k * n0) // nsp: ((k + 1) * n0) // nsp]
            s.extend(pre)
            st_, tags = tper(u, items)
            s.extend(st_); q += tags
            if mode == "pre" and u == cfg.sigp:
                w = minwait(q, [("ost", 0)]); signal(s, w); q = q[len(q) - w:] + [("s", 0)]
            nd = need_after(u)
            if fast and u == 7: nd = nd + [("w", 5)] + [x for x, _ in p1[:n0 - 4]]
            if mode == "pre" and u == cfg.dp - 1: nd = nd + [("f", 0)]
            w = minwait(q, nd)
            s(f"s_waitcnt vmcnt({w}) lgkmcnt(0)" if w is not None else "s_waitcnt lgkmcnt(0)")
            if w is not None: q = q[len(q) - w:] if w else []
            if cfg.stamps == 3: stamp(s, cfg, 16 + u)
        return s, q
    t0p, qp = trip0("pre", [("f", 0), ("s", 0)] if cfg.sigp < 0 else [("ost", 0), ("f", 0)])
    t0p("v_cmp_ne_u64 s[22:23], v[228:229], v[56:57]")
    t0p("s_nop 0")
    t0p("s_and_b64 s[10:11], s[22:23], s[24:25]")
    t0p("s_cbranch_scc0 L_T0F")
    t0, qs = trip0("slow", qp)
    t0("L_T1:")
    tf = Stream(); tf("L_T0F:")
    stamp(tf, cfg, 7)
    tf_, qf = trip0("fast", qp); tf.extend(tf_); tf("s_branch L_T1")
    tl = Stream()
    stamp(tl, cfg, 14)
    PS = 15360
    su = Stream()
    for t in ["s_lshl_b32 s34, s7, 2", "s_add_u32 s34, s34, s6", "s_lshl_b32 s34, s34, 2", "s_add_u32 s35, s34, s60", "s_lshl_b32 s35, s35, 2",
              "s_add_u32 s35, s35, s4", f"s_mul_i32 s35, s35, {PS}", f"s_add_u32 s35, s35, {P_OFF}", "s_add_u32 s52, s40, s35\ns_addc_u32 s53, s41, 0",
              "s_and_b32 s53, s53, 0xffff", f"s_mov_b32 s54, {PS}", f"v_add_u32 v231, {OWN_OFF}, v0",
              "s_add_u32 s35, s34, s4", f"s_mul_i32 s35, s35, {4*PS}", f"s_add_u32 s35, s35, {P_OFF}", "s_add_u32 s56, s40, s35\ns_addc_u32 s57, s41, 0",
              "s_and_b32 s57, s57, 0xffff", f"s_mov_b32 s58, {4*PS}",
              "s_mul_i32 s34, s62, 192", "s_mul_i32 s35, s4, 48", "s_add_u32 s34, s34, s35", "s_mul_i32 s34, s34, 2560", "s_mul_i32 s35, s61, 1280",
              "s_add_u32 s34, s34, s35", "s_mul_i32 s35, s6, 320", "s_add_u32 s34, s34, s35", "s_add_u32 s44, s36, s34\ns_addc_u32 s45, s37, 0",
              "s_and_b32 s45, s45, 0xffff", "s_sub_u32 s46, 3932160, s34",
              "v_and_b32 v237, 15, v1", "v_mul_u32_u24 v237, 2560, v237", "v_bfe_u32 v238, v1, 4, 1", "v_lshl_add_u32 v237, v238, 5, v237",
              "v_lshrrev_b32 v238, 5, v1", "v_lshl_add_u32 v233, v238, 4, v237", "s_lshl_b32 s34, s60, 10", "v_add_u32 v237, s34, v0"]: su.ins.append(t)
    for k in range(1, 4):
        su.ins += [f"s_add_u32 s34, s4, {k}", "s_and_b32 s34, s34, 3", f"s_mul_i32 s34, s34, {PS}", f"v_add_u32 v{233+k}, s34, v237"]
    su.ins += ["s_lshl_b32 s34, s60, 11", "v_add_u32 v232, s34, v231", "s_mov_b32 s12, 4096", "s_mov_b32 s13, 8192", "s_mov_b32 s15, 12288",
               "s_cmp_eq_u32 s60, 3\ns_cselect_b32 s14, 0x40000000, 12288", "s_mov_b32 s67, 0xffff0000"]
    for m in range(4):
        su.ins += [f"s_add_u32 s34, s60, {4*m}", "s_mul_i32 s35, s34, 13", "s_lshr_b32 s35, s35, 6", "s_mul_i32 s3, s35, 5", "s_sub_u32 s3, s34, s3",
                   f"s_mul_i32 s35, s35, {16*2560}", "s_lshl_b32 s3, s3, 6", f"s_add_u32 s{80+m}, s35, s3"]
    su.ins += ["s_cmp_eq_u32 s60, 3\ns_cselect_b32 s83, 0x40000000, s83"]
    sul = su.ins; nsu = -(-len(sul) // 4)
    for p in range(8, 31):
        items = []
        pre = Stream()
        if p == when[24]: check_partner(pre, "L_PA2", 1)
        if p == when[48]: check_partner(pre, "L_PA3", 2)
        items += [allo[n] for n in range(72) if when[n] == p]
        if p >= 27: items += [(None, t) for t in sul[(p - 27) * nsu:(p - 26) * nsu]]
        tl.extend(pre)
        st_, tags = tper(p, items)
        tl.extend(st_); qs += tags; qf += tags
        ws_ = [w for w in (minwait(qs, need_after(p)), minwait(qf, need_after(p))) if w is not None]
        tl(f"s_waitcnt vmcnt({min(ws_)}) lgkmcnt(0)" if ws_ else "s_waitcnt lgkmcnt(0)")
        if ws_:
            w = min(ws_)
            qs = qs[max(0, len(qs) - w):] if w else []
            qf = qf[max(0, len(qf) - w):] if w else []
    fin = Stream()
    def lastper(ownslab):
        mfl = [f"{MF} {vr(TACC(i, nt))}, {vr(TA(1, nt))}, {ar(OB(31, i))}, {vr(TACC(i, nt))}" for nt in range(10) for i in range(3)]
        gaps = {}
        for k in range(5):
            l = []
            for i in range(3):
                pp = 5*i + k; b = 64 + 8*pp
                if ownslab: l += [f"ds_write_b128 v231, {vr(b + 4*h)} offset:{1024*(2*pp + h)}" for h in range(2)]
                else:
                    l += [f"v_cvt_pk_bf16_f32 v{b+p}, v{b+2*p}, v{b+2*p+1}" for p in range(4)]
                    l.append(f"buffer_store_dwordx4 {vr(b)}, v0, s[52:55], {('0', 's12', 's13', 's15')[pp >> 2]} offen offset:{1024*(pp & 3)} {cfg.pst}")
            for n, t in enumerate(l): gaps.setdefault(min(29, 6*k + 8 + (n * 6) // len(l)), []).append(t)
        return interleave(mfl, gaps)
    fin("s_cmp_eq_u32 s60, s4")
    fin("s_cbranch_scc1 L_OWNSLAB")
    fin.extend(lastper(False))
    fin("s_branch L_SLABDONE")
    fin("L_OWNSLAB:")
    fin.extend(lastper(True))
    fin("L_SLABDONE:")
    stamp(fin, cfg, 8)
    fin("s_waitcnt vmcnt(0) lgkmcnt(0)")
    fin("global_store_dwordx2 v60, v[56:57], s[40:41] sc1")
    fin("s_barrier")
    for m in range(4):
        for h in range(2):
            fin(f"ds_read_b128 {vr(64 + 32*m + 4*h)}, v232 offset:{8192*m + 1024*h}")
    stamp(fin, cfg, 9)
    if cfg.poll2:
        fin(f"s_mov_b32 s79, {SPIN_MAX}")
        fin("global_load_dwordx2 v[228:229], v61, s[40:41] sc1")
        fin("s_sleep 6")
        fin("L_PB:")
        fin("global_load_dwordx2 v[226:227], v61, s[40:41] sc1")
        fin("s_waitcnt vmcnt(1)")
        fin("v_cmp_ne_u64 vcc, v[228:229], v[56:57]")
        fin("s_sub_u32 s79, s79, 1")
        fin("s_cbranch_scc1 L_PB_OK")
        fin("s_cmp_eq_u64 vcc, 0")
        fin("s_cbranch_scc1 L_PB_OK")
        fin("global_load_dwordx2 v[228:229], v61, s[40:41] sc1")
        fin("s_waitcnt vmcnt(1)")
        fin("v_cmp_ne_u64 vcc, v[226:227], v[56:57]")
        fin("s_nop 1")
        fin("s_cmp_lg_u64 vcc, 0")
        fin("s_cbranch_scc1 L_PB")
        fin("L_PB_OK:")
    else:
        poll(fin, "L_PB", "v61", False)
    stamp(fin, cfg, 10)
    for m in range(4):
        so = ("0", "s12", "s13", "s14")[m]
        for k in range(3):
            fin(f"buffer_load_dwordx4 {vr(64 + 32*m + 8 + 4*k)}, v{234+k}, s[56:59], {so} offen {cfg.pld}")
    fin("s_waitcnt lgkmcnt(0)")
    for m in range(4):
        fin(f"s_waitcnt vmcnt({9 - 3*m + m})")
        d = 64 + 32*m
        for k in range(3):
            for p in range(4):
                x = d + 8 + 4*k + p
                fin(f"v_lshlrev_b32 v{d+20+2*p}, 16, v{x}")
                fin(f"v_and_b32 v{d+21+2*p}, s67, v{x}")
            for p in range(4):
                fin(f"v_pk_add_f32 {vr(d+2*p,2)}, {vr(d+2*p,2)}, {vr(d+20+2*p,2)}")
        for p in range(4): fin(f"v_cvt_pk_bf16_f32 v{d+p}, v{d+2*p}, v{d+2*p+1}")
        fin(f"v_permlane16_swap_b32 v{d}, v{d+2}")
        fin(f"v_permlane16_swap_b32 v{d+1}, v{d+3}")
        fin(f"buffer_store_dwordx4 {vr(d)}, v233, s[44:47], s{80+m} offen {cfg.outst}")
    if cfg.stamps:
        fin("s_waitcnt vmcnt(0)")
        stamp(fin, cfg, 11)
        fin("s_lshl_b32 s10, s2, 2")
        fin("s_add_u32 s10, s10, s60")
        fin("s_lshl_b32 s10, s10, 8")
        fin(f"s_add_u32 s10, s10, {STAMP_OFF}")
        fin("v_lshlrev_b32 v16, 2, v1")
        fin("v_add_u32 v16, s10, v16")
        fin("global_store_dword v16, v15, s[40:41]")
    if cfg.diag:
        a_, b_ = cfg.diag // 100, cfg.diag % 100
        fin(f"v_readlane_b32 s10, v15, {a_ % 32}")
        fin(f"v_readlane_b32 s11, v15, {b_}")
        fin(f"v_readlane_b32 s12, v15, 11")
        fin("s_nop 4")
        fin("s_sub_u32 s10, s11, s10")
        fin("s_lshl_b32 s10, s10, 2")
        fin("L_DIAG:")
        fin("s_memrealtime s[98:99]")
        fin("s_waitcnt lgkmcnt(0)")
        fin("s_sub_u32 s11, s98, s12")
        fin("s_cmp_lt_u32 s11, s10")
        fin("s_cbranch_scc1 L_DIAG")
    fin("L_END:")
    fin("s_endpgm")
    fin.ins = pad_hazards(fin.ins, tl.ins[-16:])
    fb = Stream()
    fb("L_FALLBACK:")
    fb("s_mov_b32 s78, 1")
    fb("s_mov_b32 s71, 0")
    fb("s_mov_b32 s72, 4096")
    fb("s_mov_b32 s68, 31")
    fb("s_waitcnt vmcnt(0) lgkmcnt(0)")
    for i in R6: fb(f"v_mov_b32 v{NEGM(i)}, 0xff800000")
    fbl = Stream()
    fbl("L_FBLOOP:")
    fbl("s_barrier")
    for m, d in kvdma("s75", 0):
        fbl(m); fbl("s_nop 0"); fbl(d)
    for t in kvadv: fbl(t)
    fbl("s_waitcnt vmcnt(0)")
    fbl("s_barrier")
    for t in kreads(0, 0): fbl(t)
    fbl("s_waitcnt lgkmcnt(0)")
    for kt in range(2):
        for kk in range(4):
            for i in R6:
                d = vr(O0 + 8*i + 4*kt)
                fbl(f"{MF} {d}, {ar(KF(0, 4*kt+kk))}, {ar(QF(i, kk))}, {'0' if kk == 0 else d}")
    fbl("s_nop 7")
    for p in range(4):
        for i in R6:
            fbl(f"v_max3_f32 v{NEGM(i)}, v{NEGM(i)}, v{O0+8*i+2*p}, v{O0+8*i+2*p+1}")
    fbl("s_sub_u32 s68, s68, 1")
    fbl("s_cbranch_scc0 L_FBLOOP")
    fb2 = Stream()
    for i in R6:
        for r in (1, 2, 3): fb2(f"v_mov_b32 v{NEGM(i)+r}, v{NEGM(i)}")
    fb2("s_barrier")
    for t in range(4):
        for m, d in kvdma("s75", t * SLOT):
            fb2(m); fb2("s_nop 0"); fb2(d)
        for x in kvadv: fb2(x)
    fb2("s_waitcnt vmcnt(0)")
    parts = [pro, q0, qloop, qtail, qe, w0, loop, tail, ep, t0p, t0, tl, fin, tf, fb, fbl, fb2, st]
    def mk(lst):
        t = []
        for p in lst: t += p.ins
        out = []; skip = False
        for x in t:
            if x.cmt == "pace": continue
            if x.cmt == "spin": out.pop(); continue
            out.append(x)
        return out
    tr = mk([pro, q0, qloop, qtail, qe, w0, loop, loop, tail, ep, t0p, t0, tl, fin])
    tr3 = mk([tail, ep, t0p, tf, tl, fin])
    cut = [k for k, x in enumerate(ep.ins) if "L_FALLBACK" in x.text][0]
    epc = Stream(); epc.ins = ep.ins[:cut+1]
    tr2 = mk([loop, tail, epc, fb, fbl, fbl, fb2, st, w0])
    rules = [("s[44:47]", 0), ("s[48:51]", 0), ("s[52:55]", 0), ("s[84:87]", 0)]
    errs = []
    def forw(t, w):
        return [x for x in t if not (x.cmt and ((x.cmt.startswith("only") and int(x.cmt[4:]) != w) or (x.cmt.startswith("not") and (int(x.cmt[3:]) >> w) & 1)))]
    for nm_, t in [(f"main{w}", forw(tr, w)) for w in range(4)] + [("fb", tr2), ("fast", tr3)]:
        errs += check_hazards(t, nm_) + check_waits(t, nm_) + check_dma(t, rules, nm_) + check_scc(t, nm_)
    errs = [e for e in errs if "_load_dword a252" not in e]
    return parts, errs

KD = """.amdhsa_kernel {name}
  .amdhsa_next_free_vgpr 512
  .amdhsa_next_free_sgpr 102
  .amdhsa_accum_offset 256
  .amdhsa_group_segment_fixed_size 0
  .amdhsa_kernarg_size 104
  .amdhsa_user_sgpr_count 2
  .amdhsa_user_sgpr_kernarg_segment_ptr 1
  .amdhsa_system_sgpr_workgroup_id_x 1
.end_amdhsa_kernel
"""

DOC = """; Fused kernel (generated by my own script): one workgroup per CU = (block, batch, head pair), 4 waves x 96 queries.
;     recomputes the exact row max over all keys and reruns the attention with it (L_FALLBACK).
"""

def build_asm(cfg):
    ref = open(f"cdna_kernels/{NAME}.s.ref").read()
    head = []
    for line in ref.splitlines():
        if line.startswith(";") and "@launch" not in line: head.append(line)
        elif not line.startswith(";"): break
    nm = NAME + "_kernel"
    out = "\n".join(head) + "\n"
    out += "; @launch grid=(256,1,1) block=(256,1,1) lds=163840\n"
    out += '.amdgcn_target "amdgcn-amd-amdhsa--gfx950"\n'
    out += DOC
    out += '.text\n'
    parts, errs = gen(cfg)
    out += f".globl {nm}\n.p2align 8\n.type {nm},@function\n{nm}:\n"
    for p in parts: out += p.text()
    out += f".fill (67584 - (. - {nm})) / 4, 4, 0xbf800000\n"
    out += '.section .rodata,"a"\n.p2align 6\n' + KD.format(name=nm)
    return out, errs

if __name__ == "__main__":
    cfg = Cfg()
    outp = f"cdna_kernels/{NAME}.s"
    for a in sys.argv[1:]:
        if a.startswith("out="): outp = a[4:]; continue
        k, v = a.split("=")
        cur = getattr(cfg, k)
        setattr(cfg, k, type(cur)(int(v)) if not isinstance(cur, str) else v.replace("+", " "))
    asm, errs = build_asm(cfg)
    for e in errs[:6]: print(e[:200])
    print(len(errs), "errors")
    open(outp, "w").write(asm)
    print("wrote", outp, len(asm), "bytes")
```
